```python
import torch

def _softmax(x, axis=-1):
    return torch.softmax(x, dim=axis)

def _gelu(x):
    return torch.nn.functional.gelu(x, approximate='tanh')

def _silu(x):
    return torch.nn.functional.silu(x)

def _sigmoid(x):
    return torch.sigmoid(x)

def _layernorm(x, axis=-1, eps=1e-05):
    m = x.mean(dim=axis, keepdim=True)
    v = x.var(dim=axis, keepdim=True, unbiased=False)
    return (x - m) / torch.sqrt(v + eps)

def _scatter_add(tgt, idx, src, axis=0):
    return tgt.clone().index_add_(axis, idx, src)

def _segment_sum(src, seg, n):
    out = torch.zeros((n,) + src.shape[1:], dtype=src.dtype)
    return out.index_add_(0, seg, src)

def _pad(x, pw):
    flat = tuple((v for pair in reversed(pw) for v in pair))
    return torch.nn.functional.pad(x, flat)
kernel_name = 'parallel_sum__memory_aug_recurrent_mem_tr__geglu_ffn__prompt'

def setup_inputs():

    _w = lambda a: (lambda t: t.to(torch.bfloat16) if t.is_floating_point() else t)(torch.as_tensor(a))

    def _A_setup():
        B, S, Dm = (1, 2048, 576)
        H, Dh = (32, 128)
        M, seg = (8, 32)
        seg = min(seg, S)
        S = S // seg * seg
        return {'x': _w((lambda *s: torch.randn(*s, dtype=torch.bfloat16) * 0.05)(B, S, Dm)), 'mem0': _w((lambda *s: torch.randn(*s, dtype=torch.bfloat16) * 1.6)(B, M, Dm)), 'Wq': _w((lambda *s: torch.randn(*s, dtype=torch.bfloat16) * 0.8)(Dm, H, Dh) * Dm ** (-0.5)), 'Wk': _w((lambda *s: torch.randn(*s, dtype=torch.bfloat16) * 0.8)(Dm, H, Dh) * Dm ** (-0.5)), 'Wv': _w((lambda *s: torch.randn(*s, dtype=torch.bfloat16) * 1.6)(Dm, H, Dh) * Dm ** (-0.5)), 'Wo': _w((lambda *s: torch.randn(*s, dtype=torch.bfloat16) * 1.6)(H, Dh, Dm) * (H * Dh) ** (-0.5)), 'seg_len': seg}
    _A_in = _A_setup()

    def _B_setup():
        B, S, D, F = (1, 2048, 576, 4608)
        return {'x': _w((lambda *s: torch.randn(*s, dtype=torch.bfloat16) * 0.05)(B, S, D)), 'w_gate': _w((lambda *s: torch.randn(*s, dtype=torch.bfloat16) * 0.05)(D, F)), 'w_up': _w((lambda *s: torch.randn(*s, dtype=torch.bfloat16) * 0.05)(D, F)), 'w_down': _w((lambda *s: torch.randn(*s, dtype=torch.bfloat16) * 0.05)(F, D))}
    _B_in = _B_setup()
    return {'A_x': _A_in['x'], 'A_mem0': _A_in['mem0'], 'A_Wq': _A_in['Wq'], 'A_Wk': _A_in['Wk'], 'A_Wv': _A_in['Wv'], 'A_Wo': _A_in['Wo'], 'A_seg_len': _A_in['seg_len'], 'B_x': _B_in['x'], 'B_w_gate': _B_in['w_gate'], 'B_w_up': _B_in['w_up'], 'B_w_down': _B_in['w_down']}

def reference(A_x, A_mem0, A_Wq, A_Wk, A_Wv, A_Wo, A_seg_len, B_x, B_w_gate, B_w_up, B_w_down):

    def _A_ref(x, mem0, Wq, Wk, Wv, Wo, seg_len):
        B, S, Dm = x.shape
        H, Dh = (Wq.shape[1], Wq.shape[2])
        M = mem0.shape[1]
        scale = Dh ** (-0.5)
        n_seg = S // seg_len
        L = M + seg_len
        idx = torch.arange(L)
        mask = (idx[:, None] < M) | (idx[:, None] >= idx[None, :])
        mem = mem0
        outs = []
        for s in range(n_seg):
            xs = x[:, s * seg_len:(s + 1) * seg_len, :].clone()
            h = torch.concatenate([mem, xs], axis=1)
            q = torch.einsum('btd,dhe->bhte', h, Wq)
            k = torch.einsum('btd,dhe->bhte', h, Wk)
            v = torch.einsum('btd,dhe->bhte', h, Wv)
            scores = torch.einsum('bhqe,bhke->bhqk', q, k) * scale
            scores = torch.where(mask[None, None], scores, -1000000000.0)
            p = _softmax(scores, axis=-1)
            o = torch.einsum('bhqk,bhke->bhqe', p, v)
            o = torch.einsum('bhte,hed->btd', o, Wo)
            mem = o[:, :M, :].clone()
            outs.append(o[:, M:, :])
        return torch.concatenate(outs, axis=1)

    def _B_ref(x, w_gate, w_up, w_down):
        return _gelu(x @ w_gate) * (x @ w_up) @ w_down
    x = A_x
    xn = _layernorm(x, axis=-1)
    return x + _A_ref(xn, A_mem0, A_Wq, A_Wk, A_Wv, A_Wo, A_seg_len) + _B_ref(xn, B_w_gate, B_w_up, B_w_down)
```

```python
import re

_REG = re.compile(r"^(-|\|)?(?:abs\()?([vas])(?:(\d+)|\[(\d+):(\d+)\])\)?\|?$")
TRANS = ("v_exp_f32", "v_log_f32", "v_rcp_f32", "v_rsq_f32", "v_sqrt_f32", "v_sin_f32", "v_cos_f32", "v_rcp_iflag_f32")

def regs_of(tok):
    tok = tok.strip()
    if tok in ("vcc",): return {("s", 106), ("s", 107)}
    if tok == "vcc_lo": return {("s", 106)}
    if tok == "vcc_hi": return {("s", 107)}
    if tok == "exec": return {("s", 126), ("s", 127)}
    if tok == "m0": return {("s", 124)}
    m = _REG.match(tok)
    if not m: return set()
    f = m.group(2)
    if m.group(3) is not None:
        return {(f, int(m.group(3)))}
    return {(f, i) for i in range(int(m.group(4)), int(m.group(5)) + 1)}

def split_ops(s):
    out, depth, cur = [], 0, ""
    for ch in s:
        if ch in "[(": depth += 1
        if ch in "])": depth -= 1
        if ch == "," and depth == 0:
            out.append(cur.strip()); cur = ""
        else:
            cur += ch
    if cur.strip(): out.append(cur.strip())
    return out

class Ins:
    __slots__ = ("text", "op", "ops", "rd", "wr", "kind", "passes", "srcc", "ab", "nop", "is_label", "is_branch", "target", "wide_store", "sdata", "dpp", "addr_s")
    def __init__(self, text):
        self.text = text
        t = text.split(";")[0].strip()
        self.is_label = t.endswith(":")
        self.is_branch = False; self.target = None
        self.rd = set(); self.wr = set(); self.kind = "other"; self.passes = 0
        self.srcc = set(); self.ab = set(); self.nop = 0; self.wide_store = False; self.sdata = set(); self.dpp = False
        self.addr_s = set()
        if self.is_label or not t or t.startswith("."):
            self.op = t; self.ops = []; self.kind = "label" if self.is_label else "dir"; return
        sp = t.split(None, 1)
        op = sp[0]; rest = sp[1] if len(sp) > 1 else ""
        self.op = op
        ops = split_ops(rest)
        clean = []
        for o in ops:
            parts = o.split()
            clean.append(parts[0] if parts else o)
        mods = rest
        self.ops = clean
        R = [regs_of(o) for o in clean]
        if op == "s_nop":
            self.kind = "nop"; self.nop = int(clean[0], 0) + 1; return
        if op.startswith("s_cbranch") or op == "s_branch":
            self.kind = "salu"; self.is_branch = True; self.target = clean[0]
            if "vcc" in op: self.rd |= regs_of("vcc")
            if "exec" in op: self.rd |= regs_of("exec")
            return
        if op.startswith("v_mfma") or op.startswith("v_smfmac"):
            self.kind = "xdl"
            self.passes = 8 if "32x32" in op else 4
            self.wr = R[0]
            if op.startswith("v_smfmac"):
                self.srcc = R[0]; self.ab = R[1] | R[2] | R[3]
            else:
                self.srcc = R[3]; self.ab = R[1] | R[2]
            self.rd = self.srcc | self.ab
            return
        if op.startswith("v_"):
            self.kind = "trans" if op.replace("_e32", "").replace("_e64", "") in TRANS else "valu"
            self.dpp = ("dpp" in op) or ("row_" in mods) or ("quad_perm" in mods)
            if op.startswith("v_permlane") and "swap" in op:
                self.kind = "permlane"; self.wr = R[0] | R[1]; self.rd = R[0] | R[1]; return
            if op.startswith("v_cmpx"):
                self.wr = R[0] | regs_of("exec"); self.rd = set().union(*R[1:]); return
            nd = 1
            if re.match(r"v_(add|sub|subrev|addc|subb|subbrev)_co_", op) or op.startswith("v_div_scale") or op.startswith("v_mad_u64"):
                nd = 2
            self.wr = set().union(*R[:nd])
            self.rd = set().union(*R[nd:]) if len(R) > nd else set()
            if re.match(r"v_(fmac|mac|pk_fmac|dot\w*c)", op) or self.dpp or op.startswith("v_writelane"):
                self.rd |= R[0]
            if op.startswith("v_div_fmas"): self.rd |= regs_of("vcc")
            if op.startswith("v_readfirstlane") or op.startswith("v_readlane"): self.kind = "readlane"
            return
        if op.startswith("ds_"):
            self.kind = "ds"
            if op.startswith("ds_read") or op.startswith("ds_bpermute") or op.startswith("ds_permute") or op.startswith("ds_swizzle") or "rtn" in op:
                self.wr = R[0]; self.rd = set().union(*R[1:])
            else:
                self.rd = set().union(*R)
            return
        if op.startswith("global_") or op.startswith("buffer_") or op.startswith("flat_"):
            self.kind = "vmem"
            if op in ("buffer_inv", "buffer_wbl2"): return
            lds = bool(re.search(r"\blds\b", mods)) or "_lds_" in op
            if "load" in op and not lds:
                self.wr = R[0]; self.rd = set().union(*R[1:])
            elif "atomic" in op and re.search(r"\bsc0\b", mods) and op.startswith("global"):
                self.wr = R[0]; self.rd = set().union(*R[1:])
            elif "atomic" in op and re.search(r"\bsc0\b", mods):
                self.wr = R[0]; self.rd = set().union(*R)
            else:
                self.rd = set().union(*R) if R else set()
            if lds: self.rd |= regs_of("m0")
            if "store" in op and ("x4" in op or "x3" in op):
                self.wide_store = True
                self.sdata = R[1] if op.startswith("global") else R[0]
            self.addr_s = {r for r in self.rd if r[0] == "s"}
            return
        if op.startswith("s_"):
            self.kind = "salu"
            if op in ("s_waitcnt", "s_barrier", "s_endpgm", "s_sleep", "s_setprio") or op.startswith("s_cmp") or op.startswith("s_bitcmp"):
                self.rd = set().union(*R) if R else set(); return
            if op.startswith("s_load") or op.startswith("s_memtime") or op.startswith("s_memrealtime") or op.startswith("s_buffer_load"):
                self.kind = "smem"
            self.wr = R[0] if R else set()
            self.rd = set().union(*R[1:]) if len(R) > 1 else set()
            if "saveexec" in op: self.wr |= regs_of("exec"); self.rd |= regs_of("exec")
            return

def vonly(s): return {r for r in s if r[0] in "va"}
def sonly(s): return {r for r in s if r[0] == "s"}

def need(p, c):
    n = 0
    VALU = ("valu", "trans", "permlane", "readlane")
    if p.kind in VALU:
        pv = vonly(p.wr); ps = sonly(p.wr)
        if c.kind == "xdl" and pv & c.rd: n = max(n, 2)
        if c.kind == "permlane" and pv & c.rd: n = max(n, 2)
        if c.kind in VALU and c.dpp and pv & c.rd: n = max(n, 2)
        if c.kind == "readlane" and pv & c.rd: n = max(n, 1)
        if p.kind == "trans" and c.kind in ("valu", "permlane", "readlane", "xdl") and pv & c.rd: n = max(n, 1 if c.kind != "xdl" else 2)
        if ps:
            if c.kind == "vmem" and ps & c.rd: n = max(n, 5)
            if c.kind in VALU and ps & c.rd: n = max(n, 4 if c.kind == "readlane" or c.op.startswith("v_writelane") else 2)
            if ps & regs_of("exec"):
                if c.kind == "xdl": n = max(n, 4)
                if c.kind in VALU and c.dpp: n = max(n, 5)
                if c.kind in ("readlane", "permlane"): n = max(n, 4)
            if c.kind == "salu" and ps & c.rd: n = max(n, 1)
    if p.kind == "xdl":
        D = p.wr
        t_full = {4: 8, 8: 12}[p.passes]; t_part = {4: 6, 8: 10}[p.passes]; war = {4: 3, 8: 7}[p.passes]
        if c.kind == "xdl":
            if D & c.ab: n = max(n, t_full)
            if D & c.srcc:
                if not (D == c.srcc and p.op == c.op): n = max(n, t_part)
            elif D & c.wr: n = max(n, t_part)
        elif c.kind in VALU + ("ds", "vmem"):
            if D & (c.rd | c.wr): n = max(n, t_full)
        if c.kind in VALU and (p.srcc & c.wr): n = max(n, war)
        if c.kind in ("ds", "vmem") and (p.srcc & c.wr): n = max(n, war)
    if p.kind == "vmem" and p.wide_store and (p.sdata & c.wr):
        n = max(n, 2 if c.kind in VALU else 1)
    if p.kind == "salu" and (regs_of("m0") & p.wr) and c.kind in ("vmem", "ds") and (regs_of("m0") & c.rd): n = max(n, 1)
    if p.kind == "salu" and (regs_of("exec") & p.wr) and c.kind == "xdl": n = max(n, 0)
    return n

class Asm:
    def __init__(self, auto=True):
        self.ins = []; self.auto = auto; self.uid = 0
    def label_name(self, base):
        self.uid += 1
        return f"{base}_{self.uid}"
    def _req(self, seq, c):
        dist = 0; extra = 0
        for p in reversed(seq):
            if p.kind in ("label", "dir"): continue
            r = need(p, c)
            if r > dist: extra = max(extra, r - dist)
            dist += p.nop if p.kind == "nop" else 1
            if dist > 24: break
        return extra
    def __call__(self, text):
        for line in text.strip("\n").split("\n"):
            line = line.strip()
            if not line or line.startswith(";"):
                continue
            c = Ins(line)
            if self.auto and c.kind not in ("label", "dir", "nop"):
                e = self._req(self.ins, c)
                while e > 0:
                    k = min(e, 16)
                    self.ins.append(Ins(f"s_nop {k-1}")); e -= k
            self.ins.append(c)
    def label(self, name): self(f"{name}:")
    def check_branches(self):
        pos = {i.op[:-1]: k for k, i in enumerate(self.ins) if i.is_label}
        bad = []
        for k, i in enumerate(self.ins):
            if i.is_branch and i.target in pos:
                head = self.ins[max(0, k - 40): k + 1]
                seq = list(head)
                for c in self.ins[pos[i.target]: pos[i.target] + 40]:
                    if c.kind not in ("label", "dir", "nop"):
                        dist = 0
                        for idx in range(len(seq) - 1, -1, -1):
                            p = seq[idx]
                            if p.kind in ("label", "dir"): continue
                            if idx < len(head):
                                r = need(p, c)
                                if r > dist: bad.append((i.text, p.text, c.text, r - dist))
                            dist += p.nop if p.kind == "nop" else 1
                            if dist > 24: break
                    seq.append(c)
                    if c.is_branch and c.op == "s_branch": break
        return bad
    def text(self):
        out = []
        for i in self.ins:
            out.append(i.text if (i.is_label or i.kind == "dir") else "    " + i.text)
        return "\n".join(out) + "\n"

def vr(b, n=1): return f"v{b}" if n == 1 else f"v[{b}:{b+n-1}]"
def ar(b, n=1): return f"a{b}" if n == 1 else f"a[{b}:{b+n-1}]"
def sr(b, n=1): return f"s{b}" if n == 1 else f"s[{b}:{b+n-1}]"
def R(b, n=1):
    if b >= 256: return ar(b - 256, n)
    assert b + n <= 256, (b, n)
    return vr(b, n)

def kernel_header(name):
    return f".globl {name}\n.p2align 8\n.type {name},@function\n{name}:\n"

def kernel_desc(name, vgpr, sgpr=102, accum=None):
    if accum is None: accum = (min(vgpr, 256) + 3) // 4 * 4
    return f""".p2align 6
.amdhsa_kernel {name}
  .amdhsa_next_free_vgpr {vgpr}
  .amdhsa_next_free_sgpr {sgpr}
  .amdhsa_accum_offset {accum}
  .amdhsa_group_segment_fixed_size 0
  .amdhsa_kernarg_size 112
  .amdhsa_user_sgpr_count 2
  .amdhsa_user_sgpr_kernarg_segment_ptr 1
  .amdhsa_system_sgpr_workgroup_id_x 1
.end_amdhsa_kernel
"""
```

```python
from asmlib import *
from layout import *
from rec import S_WS
S_GRP, S_TKT, S_XCC = 70, 71, 57
S_DBGP = 72

def entry(a, Lexit, nwg=256):
    a(f"""
s_load_dwordx2 s[{S_WS}:{S_WS+1}], s[0:1], {KA['ws']}
s_load_dwordx2 s[{S_DBGP}:{S_DBGP+1}], s[0:1], {KA['dbg']}
s_cmp_ge_u32 s2, {nwg}
s_cbranch_scc1 {Lexit}
s_getreg_b32 s{S_XCC}, hwreg(HW_REG_XCC_ID)
s_and_b32 s{S_XCC}, s{S_XCC}, 7
s_waitcnt lgkmcnt(0)
s_mov_b32 s{S_WS+2}, 0x10000000
s_mov_b32 s{S_WS+3}, 0x20000
""")
    Lskip = a.label_name("Lcl_skip"); Ltry = a.label_name("Lcl_try"); Lgot = a.label_name("Lcl_got")
    a(f"""
v_mov_b32 v4, 0
v_cmp_eq_u32 vcc, 0, v0
s_and_saveexec_b64 s[74:75], vcc
s_cbranch_execz {Lskip}
s_add_u32 s{S_GRP}, s{S_XCC}, 7
s_and_b32 s{S_GRP}, s{S_GRP}, 7
s_mov_b32 s76, 0
v_mov_b32 v2, 1
""")
    a.label(Ltry)
    a(f"""
s_lshl_b32 s77, s{S_GRP}, 2
v_mov_b32 v1, s77
global_atomic_add v3, v1, v2, s[{S_DBGP}:{S_DBGP+1}] sc0 sc1
s_waitcnt vmcnt(0)
v_readfirstlane_b32 s{S_TKT}, v3
s_cmp_lt_u32 s{S_TKT}, 32
s_cbranch_scc1 {Lgot}
s_add_u32 s{S_GRP}, s{S_GRP}, 1
s_and_b32 s{S_GRP}, s{S_GRP}, 7
s_add_u32 s76, s76, 1
s_cmp_lt_u32 s76, 8
s_cbranch_scc1 {Ltry}
s_mov_b32 s{S_GRP}, 8
""")
    a.label(Lgot)
    a(f"""
s_lshl_b32 s77, s{S_GRP}, 8
s_or_b32 s77, s77, s{S_TKT}
v_mov_b32 v3, s77
ds_write_b32 v4, v3
""")
    a.label(Lskip)
    a(f"""
s_mov_b64 exec, -1
s_waitcnt lgkmcnt(0)
s_barrier
ds_read_b32 v3, v4
s_waitcnt lgkmcnt(0)
v_readfirstlane_b32 s77, v3
s_barrier
s_lshr_b32 s{S_GRP}, s77, 8
s_and_b32 s{S_TKT}, s77, 0xff
s_cmp_gt_u32 s{S_GRP}, 7
s_cbranch_scc1 {Lexit}
""")
```

```python
MiB = 1 << 20
KA = dict(x=0, mem0=8, Wq=16, Wk=24, Wv=32, Wo=40, seg=48, Bx=56, Wg=64, Wu=72, Wd=80, out=88, dbg=96, ws=104)
WS_Q = 0
WS_K = 16 * MiB
WS_VT = 32 * MiB
WS_KM = 48 * MiB
WS_VM = 52 * MiB
WS_PART = 56 * MiB
WS_MEMT = 57 * MiB
MEMT_STRIDE = 16384
WS_OUTP = 64 * MiB
W_BYTES = 576 * 4096 * 2
DBG_TICKET = 0
DBG_X0 = 8
DBG_READY = 9
DBG_XMASK = 10
DBG_PROG = 16
DBG_KVRDY = 32
```

```python
from asmlib import *
from layout import *
import struct

L_WV = 0
L_MEMT = 147456
L_XT = 156672
L_SP = 158720
L_END = 163840
assert L_SP + 4 * 1280 == L_END

V_IDX, V_ARD, V_WV, V_XTW, V_XTR, V_SPW, V_SP0W, V_SPR, V_SP0R, V_OW, V_OR, V_PST, V_PLD, V_MST, V_MLD, V_KX, V_VX, V_JUNK = range(1, 19)
V_T = 19
KX = 20
ACC = 28
AB = 52
VX = 72

def WQ(c, t): return 256 + (c * 2 + t) * 8
def WK(c, t):
    i = c * 2 + t
    return 256 + 144 + i * 8 if i < 14 else 80 + (i - 14) * 8
def WO(n, ks): return 112 + (n * 2 + ks) * 8

S_H, S_W = 3, 4
S_WS = 8
S_WT = 12
S_PTR = 16
S_DBG = 26
S_PST, S_PLD, S_PST1, S_PST2 = 28, 29, 30, 31
S_L8 = 32
S_HF8 = 34
S_XK = 36
S_MCUR, S_MNXT, S_M3 = 37, 38, 39
S_KX, S_VX, S_KM, S_VM = 40, 41, 42, 43
S_TAG, S_STEP, S_TMP, S_TMP2 = 44, 45, 46, 47
S_PUB = 54
S_SC = 56
S_XCC = 57
S_MG = 58
S_PF, S_PF2 = 59, 60
S_T0 = 62
S_SPIN = 66
S_POIS = 67

SCALE_LOG2E = 0.08838834764831845 * 1.4426950408889634
def f32bits(x): return struct.unpack("<I", struct.pack("<f", x))[0]

def gamma_base(g):
    w, rho = divmod(g, 9)
    if rho < 8: return 144*w + 32*(rho >> 1) + 8*(rho & 1), 16
    return 144*w + 128, 8

class Ctr:
    def __init__(self, a, name, cap): self.a, self.name, self.cap, self.q = a, name, cap, []
    def issue(self, tag, text):
        self.a(text); self.q.append(tag)
    def wait(self, tag):
        if tag not in self.q: return
        last = max(i for i, t in enumerate(self.q) if t == tag)
        n = len(self.q) - 1 - last
        assert n <= self.cap, (tag, n)
        self.a(f"s_waitcnt {self.name}({n})"); self.q = self.q[last+1:]
    def wait_all(self):
        self.a(f"s_waitcnt {self.name}(0)"); self.q = []

def setup_consts(a):
    a(f"""
v_lshrrev_b32 v{V_T}, 6, v0
v_and_b32 v0, 63, v0
v_readfirstlane_b32 s{S_W}, v{V_T}
v_and_b32 v40, 15, v0
v_lshrrev_b32 v41, 4, v0
v_bfe_u32 v42, v0, 2, 2
v_and_b32 v43, 3, v0
v_and_b32 v44, 7, v0
v_bfe_u32 v45, v0, 3, 1
""")
    a(f"""
v_mov_b32 v46, 0x4444
v_mov_b32 v47, 0xeeee
v_and_b32 v48, 1, v0
v_cmp_eq_u32 vcc, 0, v48
v_cndmask_b32 v{V_IDX}, v47, v46, vcc
""")
    a(f"""
v_lshrrev_b32 v46, 1, v41
v_lshlrev_b32 v46, 4, v46
v_and_b32 v47, 1, v41
v_lshl_add_u32 v46, v47, 2, v46
v_add_u32 v46, v46, v42
v_lshlrev_b32 v46, 5, v46
v_lshl_add_u32 v46, v43, 3, v46
v_add_u32 v{V_ARD}, {L_MEMT}, v46
s_mul_i32 s{S_TMP}, s{S_W}, 36864
v_lshlrev_b32 v46, 4, v0
v_add_u32 v{V_WV}, s{S_TMP}, v46
""")
    a(f"""
s_lshl_b32 s{S_TMP}, s{S_W}, 9
s_add_u32 s{S_TMP}, s{S_TMP}, {L_XT}
v_lshlrev_b32 v46, 4, v40
v_lshl_add_u32 v46, v41, 2, v46
v_add_u32 v{V_XTW}, s{S_TMP}, v46
s_mul_i32 s{S_XK}, s{S_W}, 768
s_add_u32 s{S_XK}, s{S_XK}, {L_SP - L_XT}
""")
    a(f"""
v_lshrrev_b32 v46, 1, v41
v_lshlrev_b32 v46, 4, v46
v_and_b32 v47, 1, v41
v_lshl_add_u32 v46, v47, 2, v46
v_add_u32 v46, v46, v42
v_lshlrev_b32 v46, 4, v46
v_and_b32 v47, 1, v43
v_lshl_add_u32 v46, v47, 3, v46
v_add_u32 v{V_XTR}, s{S_TMP}, v46
""")
    a(f"""
s_mul_i32 s{S_TMP}, s{S_W}, 1280
v_lshl_add_u32 v46, v41, 3, v44
v_lshlrev_b32 v46, 4, v46
v_lshl_add_u32 v46, v45, 9, v46
v_add_u32 v{V_SPR}, {L_SP}, v46
v_add_u32 v{V_SPW}, s{S_TMP}, v{V_SPR}
v_and_b32 v47, 1, v41
v_lshl_add_u32 v48, v47, 3, v44
v_lshlrev_b32 v48, 4, v48
v_add_u32 v48, s{S_TMP}, v48
v_add_u32 v{V_SP0W}, {L_SP + 1024}, v48
v_lshrrev_b32 v46, 1, v41
v_lshl_add_u32 v46, v46, 3, v44
v_lshlrev_b32 v46, 4, v46
v_lshl_add_u32 v47, v47, 1, v45
v_lshl_add_u32 v46, v47, 2, v46
v_add_u32 v{V_SP0R}, {L_SP + 1024}, v46
""")
    a(f"""
s_lshl_b32 s{S_TMP}, s{S_W}, 2
v_lshrrev_b32 v46, 1, v41
v_add_u32 v46, s{S_TMP}, v46
v_lshlrev_b32 v47, 1, v44
v_xor_b32 v46, v46, v47
v_lshlrev_b32 v46, 4, v46
v_lshl_add_u32 v46, v44, 8, v46
v_and_b32 v48, 1, v41
v_lshl_add_u32 v46, v48, 3, v46
v_add_u32 v{V_OW}, {L_XT}, v46
""")
    a(f"""
v_lshrrev_b32 v47, 1, v40
v_and_b32 v48, 1, v0
v_lshl_add_u32 v46, v41, 1, v48
v_lshlrev_b32 v48, 1, v47
v_xor_b32 v46, v46, v48
v_lshlrev_b32 v46, 4, v46
v_lshl_add_u32 v46, v47, 8, v46
v_add_u32 v{V_OR}, {L_XT}, v46
""")
    a(f"""
s_lshl_b32 s{S_TMP}, s{S_W}, 3
v_lshrrev_b32 v46, 3, v0
v_add_u32 v46, s{S_TMP}, v46
v_mul_u32_u24 v46, 9216, v46
v_lshl_add_u32 v{V_PST}, v44, 4, v46
""")
    Lw2 = a.label_name("Lc2"); Lce = a.label_name("Lce")
    a(f"""
s_mul_i32 s{S_TMP}, s{S_H}, 9216
s_lshl_b32 s{S_TMP2}, s{S_W}, 12
s_add_u32 s{S_TMP}, s{S_TMP}, s{S_TMP2}
s_lshr_b32 s{S_PF}, s{S_H}, 3
s_mul_i32 s{S_PF}, s{S_PF}, 72
s_and_b32 s{S_PF2}, s{S_H}, 7
s_cmp_ge_u32 s{S_W}, 2
s_cbranch_scc1 {Lw2}
v_lshl_add_u32 v46, v41, 1, v45
v_lshlrev_b32 v46, 7, v46
v_lshl_add_u32 v46, v44, 4, v46
v_add_u32 v{V_PLD}, s{S_TMP}, v46
s_lshl_b32 s{S_PF2}, s{S_PF2}, 3
v_add_u32 v46, s{S_PF2}, v44
s_lshl_b32 s{S_TMP2}, s{S_W}, 5
s_add_u32 s{S_PF}, s{S_PF}, s{S_TMP2}
v_and_b32 v48, 15, v46
v_lshl_add_u32 v47, v41, 4, v48
v_add_u32 v47, s{S_PF}, v47
v_lshlrev_b32 v47, 5, v47
v_lshrrev_b32 v48, 4, v46
v_lshl_add_u32 v{V_MST}, v48, 3, v47
s_mov_b32 s{S_PUB}, 0x00ff00ff
s_branch {Lce}
""")
    a.label(Lw2)
    a(f"""
v_lshrrev_b32 v46, 1, v40
v_lshl_add_u32 v46, v46, 2, v41
v_lshlrev_b32 v46, 5, v46
v_and_b32 v47, 1, v0
v_lshl_add_u32 v46, v47, 4, v46
v_add_u32 v{V_PLD}, s{S_TMP}, v46
s_lshl_b32 s{S_PF2}, s{S_PF2}, 2
v_lshl_add_u32 v47, v47, 1, v41
v_add_u32 v47, s{S_PF2}, v47
v_and_b32 v48, 7, v47
s_add_u32 s{S_PF}, s{S_PF}, 64
v_add_u32 v48, s{S_PF}, v48
v_lshlrev_b32 v48, 5, v48
v_lshrrev_b32 v47, 3, v47
v_lshl_add_u32 v{V_MST}, v47, 3, v48
s_mov_b32 s{S_PUB}, 0x00030003
""")
    a.label(Lce)
    a(f"""
s_mul_i32 s{S_TMP}, s{S_W}, {192 * 16}
s_add_u32 s{S_TMP}, s{S_TMP}, {L_MEMT}
v_lshlrev_b32 v46, 4, v0
v_add_u32 v{V_MLD}, s{S_TMP}, v46
""")
    a(f"""
s_lshl_b32 s{S_TMP}, s{S_W}, 11
v_lshrrev_b32 v48, 1, v41
v_lshlrev_b32 v48, 10, v48
v_and_b32 v47, 1, v41
v_lshl_add_u32 v48, v47, 4, v48
v_add_u32 v48, s{S_TMP}, v48
v_lshrrev_b32 v46, 1, v42
v_lshlrev_b32 v46, 4, v46
v_and_b32 v47, 1, v42
v_lshl_add_u32 v46, v47, 2, v46
v_add_u32 v46, v46, v43
v_lshl_add_u32 v{V_KX}, v46, 5, v48
v_lshl_add_u32 v{V_VX}, v40, 5, v48
""")
    a(f"""
s_mov_b32 s{S_L8}, 0x00ff00ff
s_mov_b32 s{S_L8+1}, 0x00ff00ff
s_mov_b32 s{S_HF8}, 0xff00ff00
s_mov_b32 s{S_HF8+1}, 0xff00ff00
s_mov_b32 s{S_PUB+1}, 0
s_mov_b32 s{S_SC}, {f32bits(SCALE_LOG2E):#x}
s_mov_b32 s{S_POIS}, 0xfffffffe
s_lshl_b32 s{S_PST}, s{S_H}, 7
s_add_u32 s{S_PST}, s{S_PST}, {WS_PART}
s_add_u32 s{S_PST1}, s{S_PST}, 4096
s_lshl_b32 s{S_PST2}, s{S_H}, 5
s_add_u32 s{S_PST2}, s{S_PST2}, {WS_PART + 8192}
s_mov_b32 s{S_PLD}, {WS_PART}
s_mov_b32 s{S_MCUR}, {WS_MEMT}
s_mov_b32 s{S_MNXT}, {WS_MEMT + MEMT_STRIDE}
s_mov_b32 s{S_M3}, {WS_MEMT + 2 * MEMT_STRIDE}
s_lshl_b32 s{S_TMP}, s{S_H}, 19
s_add_u32 s{S_KX}, s{S_TMP}, {WS_K}
s_add_u32 s{S_VX}, s{S_TMP}, {WS_VT}
s_lshl_b32 s{S_TMP}, s{S_H}, 11
s_add_u32 s{S_KM}, s{S_TMP}, {WS_KM}
s_add_u32 s{S_VM}, s{S_TMP}, {WS_VM - L_XT}
s_mov_b32 s{S_STEP}, 0
s_mov_b32 s{S_TAG}, 1
""")

def single_addr(a, dst, tmp):
    a(f"""
s_lshl_b32 s{S_TMP}, s{S_W}, 3
v_lshrrev_b32 v{dst}, 4, v0
v_bfe_u32 v{tmp}, v0, 2, 1
v_lshl_add_u32 v{dst}, v{dst}, 1, v{tmp}
v_add_u32 v{dst}, s{S_TMP}, v{dst}
v_mul_u32_u24 v{dst}, 9216, v{dst}
v_and_b32 v{tmp}, 3, v0
v_lshl_add_u32 v{dst}, v{tmp}, 3, v{dst}
""")

def set_wsrd(a, ptr):
    a(f"""
s_mov_b32 s{S_WT}, s{ptr}
s_mov_b32 s{S_WT+1}, s{ptr+1}
s_mov_b32 s{S_WT+2}, {W_BYTES}
s_mov_b32 s{S_WT+3}, 0x20000
""")

def prologue(a):
    ws = f"s[{S_WS}:{S_WS+3}]"; wt = f"s[{S_WT}:{S_WT+3}]"
    a("v_mov_b32 v28, 0\nv_mov_b32 v29, 0\nv_mov_b32 v30, 0\nv_mov_b32 v31, 0\nv_mov_b32 v32, -1\nv_mov_b32 v33, -1")
    a(f"buffer_store_dwordx4 v[28:31], v{V_PST}, {ws}, s{S_PST} offen sc1")
    a(f"buffer_store_dwordx4 v[28:31], v{V_PST}, {ws}, s{S_PST1} offen sc1")
    single_addr(a, 34, 35)
    a(f"s_mov_b64 exec, s[{S_L8}:{S_L8+1}]")
    a(f"buffer_store_dwordx2 v[28:29], v34, {ws}, s{S_PST2} offen sc1")
    a(f"s_mov_b64 exec, -1\ns_cmp_eq_u32 s{S_W}, 3")
    L = a.label_name("Lnopois")
    a(f"s_cbranch_scc1 {L}\ns_mov_b64 exec, s[{S_PUB}:{S_PUB+1}]")
    a(f"buffer_store_dwordx2 v[32:33], v{V_MST}, {ws}, s{S_MNXT} offen sc1")
    a(f"buffer_store_dwordx2 v[32:33], v{V_MST}, {ws}, s{S_M3} offen sc1")
    a(f"s_mov_b64 exec, -1")
    a.label(L)
    a(f"""
s_mul_i32 s{S_TMP}, s{S_W}, {2 * 1152}
v_lshlrev_b32 v46, 1, v0
v_add_u32 v46, s{S_TMP}, v46
""")
    for tt in range(2):
        for j in range(9):
            a(f"global_load_ushort v{52 + tt*9 + j}, v46, s[{S_PTR}:{S_PTR+1}] offset:{tt*1152 + j*128}")
    a(f"s_lshl_b32 s{S_TMP}, s{S_W}, 3\ns_add_u32 s{S_TMP}, s{S_TMP}, {L_MEMT}\ns_mov_b32 s{S_TMP2}, 7282")
    for j in range(9):
        d = 28 + j
        a(f"""
v_add_u32 v46, {64*j}, v0
v_mul_u32_u24 v47, s{S_TMP2}, v46
v_lshrrev_b32 v47, 20, v47
v_mul_u32_u24 v48, 144, v47
v_sub_u32 v46, v46, v48
v_mul_u32_u24 v47, 72, v47
v_lshrrev_b32 v48, 5, v46
v_lshlrev_b32 v48, 4, v48
v_and_b32 v49, 15, v46
v_add_u32 v48, v48, v49
v_bfe_u32 v49, v46, 4, 1
v_and_b32 v50, 7, v46
v_add_u32 v50, 64, v50
v_bfe_u32 v51, v46, 3, 1
v_cmp_gt_u32 vcc, 128, v46
v_cndmask_b32 v48, v50, v48, vcc
v_cndmask_b32 v49, v51, v49, vcc
v_add_u32 v48, v48, v47
v_lshlrev_b32 v48, 5, v48
v_lshl_add_u32 v48, v49, 1, v48
v_add_u32 v{d}, s{S_TMP}, v48
""")
    a("s_waitcnt vmcnt(0)")
    for tt in range(2):
        for j in range(9):
            a(f"ds_write_b16 v{28+j}, v{52 + tt*9 + j} offset:{tt*4}")
    a("s_barrier")
    L = a.label_name("Lnoarr")
    a(f"""
s_cmp_lg_u32 s{S_W}, 0
s_cbranch_scc1 {L}
s_mul_i32 s{S_TMP}, s{S_XCC}, 6
s_mov_b64 s[{S_T0}:{S_T0+1}], 1
s_lshl_b64 s[{S_T0}:{S_T0+1}], s[{S_T0}:{S_T0+1}], s{S_TMP}
s_or_b32 s{S_T0+1}, s{S_T0+1}, 0x01000000
v_mov_b32 v38, s{S_T0}
v_mov_b32 v39, s{S_T0+1}
v_mov_b32 v37, 0
s_mov_b64 exec, 1
global_atomic_add_x2 v37, v[38:39], s[{S_DBG}:{S_DBG+1}] offset:{DBG_XMASK*4} sc1
s_mov_b64 exec, -1
""")
    a.label(L)
    a(f"""
s_mul_i32 s{S_TMP2}, s{S_W}, 36864
s_mul_i32 s{S_PF}, s{S_H}, 147456
s_mul_i32 s{S_PF2}, s{S_W}, 288
s_add_u32 s{S_PF}, s{S_PF}, s{S_PF2}
""")
    set_wsrd(a, S_PTR + 8)
    a(f"s_mov_b32 s{S_PF2}, 3641")
    for m in range(36):
        a(f"""
v_add_u32 v46, {64*m}, v0
v_mul_u32_u24 v47, s{S_PF2}, v46
v_lshrrev_b32 v47, 16, v47
v_mul_u32_u24 v48, 18, v47
v_sub_u32 v48, v46, v48
v_mul_u32_u24 v47, 1152, v47
v_lshl_add_u32 v47, v48, 4, v47
s_add_u32 s{S_TMP}, s{S_TMP2}, {m*1024}
s_mov_b32 m0, s{S_TMP}
buffer_load_dwordx4 v47, {wt}, s{S_PF} offen lds
""")
    a(f"""
v_lshrrev_b32 v46, 1, v41
v_lshlrev_b32 v46, 4, v46
v_lshrrev_b32 v47, 1, v42
v_lshl_add_u32 v46, v47, 3, v46
v_and_b32 v47, 1, v41
v_lshl_add_u32 v46, v47, 2, v46
v_and_b32 v47, 1, v42
v_add_u32 v46, v46, v47
v_mul_u32_u24 v46, 288, v46
v_lshl_add_u32 v46, v43, 3, v46
v_add_u32 v49, s{S_TMP2}, v46
""")
    a(f"""
v_and_b32 v46, 1, v41
v_lshlrev_b32 v46, 4, v46
v_lshrrev_b32 v47, 1, v42
v_lshl_add_u32 v46, v47, 3, v46
v_lshrrev_b32 v47, 1, v41
v_lshl_add_u32 v46, v47, 2, v46
v_and_b32 v47, 1, v42
v_add_u32 v46, v46, v47
v_lshlrev_b32 v46, 6, v46
v_lshl_add_u32 v46, v43, 3, v46
v_add_u32 v50, s{S_TMP2}, v46
""")
    a(f"""
s_lshl_b32 s{S_PF}, s{S_H}, 8
s_lshl_b32 s{S_PF2}, s{S_W}, 6
s_add_u32 s{S_PF}, s{S_PF}, s{S_PF2}
v_bfe_u32 v46, v0, 2, 3
v_lshrrev_b32 v47, 5, v0
v_lshl_add_u32 v48, v47, 3, v46
v_lshl_add_u32 v46, v47, 4, v46
v_lshlrev_b32 v46, 13, v46
v_lshl_add_u32 v46, v43, 4, v46
v_add_u32 v51, s{S_PF}, v46
v_lshlrev_b32 v48, 13, v48
v_lshl_add_u32 v48, v43, 4, v48
v_add_u32 v48, s{S_PF}, v48
""")
    def dma_chunk(c):
        for m in range(4):
            base, stride = gamma_base(4*c + m)
            a(f"""
s_add_u32 s{S_TMP}, s{S_TMP2}, {c*4096 + m*1024}
s_mov_b32 m0, s{S_TMP}
s_mov_b32 s{S_PF}, {base * 8192}
buffer_load_dwordx4 v{51 if stride == 16 else 48}, {wt}, s{S_PF} offen lds
""")
    def wo_half(ks):
        for n in range(9):
            for q in range(4):
                off = (64*ks + 32*(q >> 1) + 2*(q & 1)) * 288 + 32*n
                a(f"ds_read_b64_tr_b16 {R(WO(n, ks) + 2*q, 2)}, v49 offset:{off}")
            if n % 3 == 2: a("s_waitcnt lgkmcnt(0)")
    def rd_chunk(c, dst):
        for t in range(2):
            for q in range(4):
                off = c*4096 + (32*(q >> 1) + 2*(q & 1)) * 64 + 32*t
                a(f"ds_read_b64_tr_b16 {R(dst(c, t) + 2*q, 2)}, v50 offset:{off}")
        a("s_waitcnt lgkmcnt(0)")
    a("s_waitcnt vmcnt(18)")
    wo_half(0)
    set_wsrd(a, S_PTR + 2)
    for c in range(4): dma_chunk(c)
    a("s_waitcnt vmcnt(16)")
    wo_half(1)
    for c in range(4, 9): dma_chunk(c)
    for c in range(9):
        a("s_waitcnt vmcnt(32)")
        rd_chunk(c, WQ)
        if c == 0: set_wsrd(a, S_PTR + 4)
        dma_chunk(c)
    for c in range(9):
        a("s_waitcnt vmcnt(32)")
        rd_chunk(c, WK)
        if c == 0: set_wsrd(a, S_PTR + 6)
        dma_chunk(c)
    for c in range(9):
        a(f"s_waitcnt vmcnt({32 - 4*c})")
        rd_chunk(c, lambda c_, t: 52 + 8*t)
        for t in range(2):
            for hf in range(2):
                a(f"ds_write_b128 v{V_WV}, v[{52+8*t+4*hf}:{52+8*t+4*hf+3}] offset:{c*4096 + t*2048 + hf*1024}")
        a("s_waitcnt lgkmcnt(0)")

def handshake(a, Lfast, Lslow, Lfail):
    Lp = a.label_name("Lhs")
    a(f"v_mov_b32 v30, 0\ns_mov_b32 s{S_SPIN}, 0")
    a.label(Lp)
    a(f"""
global_load_dwordx2 v[28:29], v30, s[{S_DBG}:{S_DBG+1}] offset:{DBG_XMASK*4} sc1
s_add_u32 s{S_SPIN}, s{S_SPIN}, 1
s_cmp_gt_u32 s{S_SPIN}, 0x400000
s_cbranch_scc1 {Lfail}
s_waitcnt vmcnt(0)
v_readfirstlane_b32 s{S_T0}, v28
v_readfirstlane_b32 s{S_T0+1}, v29
s_lshr_b32 s{S_TMP}, s{S_T0+1}, 24
s_cmp_lt_u32 s{S_TMP}, 32
s_cbranch_scc1 {Lp}
s_mul_i32 s{S_TMP}, s{S_XCC}, 6
s_lshr_b64 s[{S_T0}:{S_T0+1}], s[{S_T0}:{S_T0+1}], s{S_TMP}
s_and_b32 s{S_T0}, s{S_T0}, 63
s_cmp_eq_u32 s{S_T0}, 32
s_cbranch_scc1 {Lfast}
s_branch {Lslow}
""")

S_ST = 84
def stamp(a, on, i):
    if not on: return
    a(f"""
s_memtime s[98:99]
s_waitcnt lgkmcnt(0)
s_sub_u32 s97, s98, s96
s_add_u32 s{S_ST+i}, s{S_ST+i}, s97
s_mov_b32 s96, s98
""")

def step_loop(a, fast, Ldone, Lfail, stamps=False, kv_wait=None):
    ws = f"s[{S_WS}:{S_WS+3}]"
    st = "" if fast else " sc1"
    L = Ctr(a, "lgkmcnt", 15)
    def stp(i):
        if stamps: L.q = []
        stamp(a, stamps, i)
    Ltop = a.label_name("Lstep"); Lnog = a.label_name("Lnog")
    q0, q1, k0, k1, v0_, v1_ = (ACC + 4*i for i in range(6))
    ABUF = (52, 56)
    if kv_wait: kv_wait(a, 0)
    a(f"buffer_load_dwordx4 v[{KX}:{KX+3}], v{V_KX}, {ws}, s{S_KX} offen sc1")
    a(f"buffer_load_dwordx4 v[{KX+4}:{KX+7}], v{V_KX}, {ws}, s{S_KX} offen offset:256 sc1")
    for r in range(24): a(f"v_mov_b32 v{ACC+r}, 0")
    a(f"s_waitcnt vmcnt(0)")
    if stamps:
        for i in range(12): a(f"s_mov_b32 s{S_ST+i}, 0")
        a("s_mov_b32 s100, 0\ns_mov_b32 s101, 0\ns_memtime s[96:97]\ns_waitcnt lgkmcnt(0)")
    a(f"s_branch {Lnog}")
    a.label(Ltop)
    stp(0)
    Lg = a.label_name("Lgather"); Lw3 = a.label_name("Lw3")
    a(f"s_cmp_lg_u32 s{S_W}, 3\ns_cbranch_scc1 {Lw3}\ns_waitcnt vmcnt(3)\ns_branch {Lnog}")
    a.label(Lw3)
    a(f"s_sub_u32 s{S_MG}, s{S_MCUR}, {L_MEMT}\ns_mov_b32 s{S_SPIN}, 0")
    a.label(Lg)
    G = 52
    for j in range(3):
        a(f"buffer_load_dwordx4 v[{G+4*j}:{G+4*j+3}], v{V_MLD}, {ws}, s{S_MG} offen offset:{1024*j} sc1")
    a(f"""
s_add_u32 s{S_SPIN}, s{S_SPIN}, 1
s_cmp_gt_u32 s{S_SPIN}, 0x100000
s_cbranch_scc1 {Lfail}
s_waitcnt vmcnt(0)
v_max3_u32 v{V_T}, v{G}, v{G+2}, v{G+4}
v_max3_u32 v64, v{G+6}, v{G+8}, v{G+10}
v_max_u32 v{V_T}, v{V_T}, v64
v_cmp_eq_u32 vcc, -1, v{V_T}
s_and_b64 exec, exec, vcc
s_cbranch_scc1 {Lg}
s_mov_b64 exec, -1
""")
    if stamps: a(f"s_add_u32 s100, s100, s{S_SPIN}")
    stp(1)
    for j in range(3):
        a(f"ds_write_b128 v{V_MLD}, v[{G+4*j}:{G+4*j+3}] offset:{1024*j}")
    a.label(Lnog)
    WBUF2 = (64, 72)
    def wrd(f):
        b = WBUF2[f % 2]
        for hf in range(2):
            L.issue(("W", f), f"ds_read_b128 v[{b+4*hf}:{b+4*hf+3}], v{V_WV} offset:{(f//2)*4096 + (f%2)*2048 + hf*1024}")
    L.q = []
    wrd(0); wrd(1)
    L.wait_all()
    a("s_barrier")
    stp(2)
    Lnp = a.label_name("Lnoprog")
    a(f"""
s_cmp_lg_u32 s{S_W}, 3
s_cbranch_scc1 {Lnp}
v_mov_b32 v{V_T}, s{S_STEP}
v_mov_b32 v52, s{S_H}
s_mov_b64 exec, 1
global_store_byte v52, v{V_T}, s[{S_DBG}:{S_DBG+1}] offset:{DBG_PROG*4} sc1
s_mov_b64 exec, -1
""")
    if kv_wait: kv_wait(a, 1)
    a(f"""
s_cmp_lt_u32 s{S_STEP}, 63
s_cselect_b32 s{S_PF2}, 8192, 0
v_lshlrev_b32 v52, 7, v0
s_add_u32 s{S_PF}, s{S_KX}, s{S_PF2}
s_add_u32 s{S_PF2}, s{S_VX}, s{S_PF2}
buffer_load_dword v{V_JUNK}, v52, {ws}, s{S_PF} offen sc1
buffer_load_dword v{V_JUNK}, v52, {ws}, s{S_PF2} offen sc1
""")
    a.label(Lnp)
    def ard(ks):
        b = ABUF[ks & 1]
        L.issue(("A", ks), f"ds_read_b64_tr_b16 v[{b}:{b+1}], v{V_ARD} offset:{1024*ks}")
        L.issue(("A", ks), f"ds_read_b64_tr_b16 v[{b+2}:{b+3}], v{V_ARD} offset:{1024*ks + 256}")
    ard(0); ard(1)
    for ks in range(9):
        A = f"v[{ABUF[ks&1]}:{ABUF[ks&1]+3}]"
        L.wait(("A", ks))
        def sm(acc, B): a(f"v_smfmac_f32_16x16x64_bf16 v[{acc}:{acc+3}], {A}, {B}, v{V_IDX}")
        last = ks == 8
        if not last:
            sm(q0, R(WQ(ks,0),8))
            L.wait(("W", 2*ks)); sm(v0_, f"v[{WBUF2[0]}:{WBUF2[0]+7}]"); wrd(2*ks + 2)
            sm(q1, R(WQ(ks,1),8)); sm(k0, R(WK(ks,0),8))
            L.wait(("W", 2*ks+1)); sm(v1_, f"v[{WBUF2[1]}:{WBUF2[1]+7}]"); wrd(2*ks + 3)
            sm(k1, R(WK(ks,1),8))
            if ks + 2 < 9: ard(ks + 2)
        else:
            sm(q0, R(WQ(ks,0),8)); sm(q1, R(WQ(ks,1),8)); sm(k0, R(WK(ks,0),8)); sm(k1, R(WK(ks,1),8))
            L.wait(("W", 2*ks)); sm(v0_, f"v[{WBUF2[0]}:{WBUF2[0]+7}]")
            L.wait(("W", 2*ks+1)); sm(v1_, f"v[{WBUF2[1]}:{WBUF2[1]+7}]")
    stp(3)
    QF, KF, T1, T2, T0 = 52, 56, 60, 64, 68
    def post(x, dst):
        a(f"v_add_f32 v{x}, v{x}, v{x+1}\nv_add_f32 v{x+2}, v{x+2}, v{x+3}\nv_cvt_pk_bf16_f32 v{dst}, v{x}, v{x+2}")
    post(q0, q0); post(q1, q1)
    L.issue("xq", f"ds_write2_b32 v{V_XTW}, v{q0}, v{q1} offset0:0 offset1:64")
    a(f"v_add_u32 v{V_T}, s{S_XK}, v{V_XTW}\nv_add_u32 v{T0}, s{S_XK}, v{V_XTR}")
    post(k0, k0); post(k1, k1)
    L.issue("xk", f"ds_write2_b32 v{V_T}, v{k0}, v{k1} offset0:0 offset1:64")
    L.issue("qf", f"ds_read_b64_tr_b16 v[{QF}:{QF+1}], v{V_XTR}")
    L.issue("qf", f"ds_read_b64_tr_b16 v[{QF+2}:{QF+3}], v{V_XTR} offset:128")
    L.issue("kf", f"ds_read_b64_tr_b16 v[{KF}:{KF+1}], v{T0}")
    L.issue("kf", f"ds_read_b64_tr_b16 v[{KF+2}:{KF+3}], v{T0} offset:128")
    a(f"buffer_load_dwordx4 v[{VX}:{VX+3}], v{V_VX}, {ws}, s{S_VX} offen sc1")
    a(f"buffer_load_dwordx4 v[{VX+4}:{VX+7}], v{V_VX}, {ws}, s{S_VX} offen offset:512 sc1")
    VP0, VP1 = v0_, v1_
    KMA = q0 + 1
    a(f"v_lshrrev_b32 v{KMA}, 10, v{V_VX}\nv_and_b32 v{KMA+1}, 0xf0, v{V_VX}\nv_lshl_or_b32 v{KMA}, v{KMA}, 8, v{KMA+1}")
    post(v0_, VP0); post(v1_, VP1)
    a(f"v_mov_b32 v{VP0+1}, 0\nv_mov_b32 v{VP1+1}, 0")
    a(f"buffer_store_dword v{VP0}, v{V_XTW}, {ws}, s{S_VM} offen sc1")
    a(f"buffer_store_dword v{VP1}, v{V_XTW}, {ws}, s{S_VM} offen offset:256 sc1")
    L.wait("qf")
    a(f"v_mfma_f32_16x16x32_bf16 v[{T1}:{T1+3}], v[{KX}:{KX+3}], v[{QF}:{QF+3}], 0")
    a(f"v_mfma_f32_16x16x32_bf16 v[{T2}:{T2+3}], v[{KX+4}:{KX+7}], v[{QF}:{QF+3}], 0")
    L.wait("kf")
    a(f"v_mfma_f32_16x16x32_bf16 v[{T0}:{T0+3}], v[{KF}:{KF+3}], v[{QF}:{QF+3}], 0")
    a(f"buffer_store_dwordx4 v[{KF}:{KF+3}], v{KMA}, {ws}, s{S_KM} offen sc1")
    a(f"s_cmp_eq_u32 s{S_STEP}, 63\ns_cbranch_scc1 {Ldone}")
    a(f"s_add_u32 s{S_KX}, s{S_KX}, 8192")
    a(f"buffer_load_dwordx4 v[{KX}:{KX+3}], v{V_KX}, {ws}, s{S_KX} offen sc1")
    a(f"buffer_load_dwordx4 v[{KX+4}:{KX+7}], v{V_KX}, {ws}, s{S_KX} offen offset:256 sc1")
    for r in range(4): a(f"v_cndmask_b32 v{T1+r}, v{T1+r}, v{T2+r}, s[{S_HF8}:{S_HF8+1}]")
    L.issue("sp", f"ds_write_b128 v{V_SPW}, v[{T1}:{T1+3}]")
    L.issue("sp", f"ds_write_b128 v{V_SP0W}, v[{T0}:{T0+3}]")
    ONE = 64
    for r in range(4): a(f"v_mov_b32 v{ONE+r}, 0x3f803f80")
    L.wait_all()
    stp(4)
    a("s_barrier")
    stp(5)
    X = 28; M = 52
    for w in range(4): L.issue(("x", w), f"ds_read_b128 v[{X+4*w}:{X+4*w+3}], v{V_SPR} offset:{1280*w}")
    for w in range(4): L.issue("m", f"ds_read_b32 v{M+w}, v{V_SP0R} offset:{1280*w}")
    a(f"s_add_u32 s{S_VX}, s{S_VX}, 8192\ns_add_u32 s{S_KM}, s{S_KM}, 65536\ns_add_u32 s{S_VM}, s{S_VM}, 65536")
    for r in (46, 47, 50, 51): a(f"v_mov_b32 v{r}, 0")
    L.wait(("x", 1))
    for r in range(4): a(f"v_add_f32 v{X+r}, v{X+r}, v{X+4+r}")
    L.wait(("x", 3))
    for r in range(4): a(f"v_add_f32 v{X+8+r}, v{X+8+r}, v{X+12+r}")
    L.wait("m")
    a(f"v_add_f32 v{M}, v{M}, v{M+1}\nv_add_f32 v{M+2}, v{M+2}, v{M+3}")
    for r in range(4): a(f"v_add_f32 v{X+r}, v{X+r}, v{X+8+r}")
    a(f"v_add_f32 v{M}, v{M}, v{M+2}")
    t = 60
    a(f"""
v_max3_f32 v{t}, v{X}, v{X+1}, v{X+2}
v_max3_f32 v{t}, v{t}, v{X+3}, v{M}
v_mov_b32 v32, 0
v_mov_b32 v33, 0
v_max_f32_dpp v{t}, v{t}, v{t} row_ror:8 row_mask:0xf bank_mask:0xf
v_mov_b32 v{t+1}, v{t}
v_mov_b32 v34, 0
v_mov_b32 v35, 0
v_permlane16_swap_b32 v{t}, v{t+1}
v_max_f32 v{t}, v{t}, v{t+1}
v_mov_b32 v{t+1}, v{t}
v_mov_b32 v36, 0
v_mov_b32 v37, 0
v_permlane32_swap_b32 v{t}, v{t+1}
v_max_f32 v{t}, v{t}, v{t+1}
v_mul_f32 v{t}, s{S_SC}, v{t}
""")
    vals = [M, X, X+1, X+2, X+3]
    for v in vals: a(f"v_fma_f32 v{v}, v{v}, s{S_SC}, -v{t}")
    for v in vals: a(f"v_exp_f32 v{v}, v{v}")
    PX, PM, O0, O1, LS = 60, 54, 68, 56, 40
    a(f"""
v_mov_b32_dpp v{M+1}, v{M} row_ror:8 row_mask:0xf bank_mask:0xf
v_cvt_pk_bf16_f32 v{PX}, v{X}, v{X+1}
v_cvt_pk_bf16_f32 v{PX+1}, v{X+2}, v{X+3}
v_cvt_pk_bf16_f32 v{PM}, v{M}, v{M+1}
v_mov_b32 v{PM+1}, 0
v_mov_b32_dpp v{PX+2}, v{PX} row_ror:8 row_mask:0xf bank_mask:0xf
v_mov_b32_dpp v{PX+3}, v{PX+1} row_ror:8 row_mask:0xf bank_mask:0xf
s_waitcnt vmcnt(5)
v_mfma_f32_16x16x16_bf16 v[{LS}:{LS+3}], v[{ONE}:{ONE+1}], v[{PM}:{PM+1}], 0
v_mfma_f32_16x16x16_bf16 v[{O0}:{O0+3}], v[{VP0}:{VP0+1}], v[{PM}:{PM+1}], 0
v_mfma_f32_16x16x16_bf16 v[{O1}:{O1+3}], v[{VP1}:{VP1+1}], v[{PM}:{PM+1}], 0
v_mfma_f32_16x16x32_bf16 v[{LS}:{LS+3}], v[{ONE}:{ONE+3}], v[{PX}:{PX+3}], v[{LS}:{LS+3}]
v_mfma_f32_16x16x32_bf16 v[{O0}:{O0+3}], v[{VX}:{VX+3}], v[{PX}:{PX+3}], v[{O0}:{O0+3}]
v_mfma_f32_16x16x32_bf16 v[{O1}:{O1+3}], v[{VX+4}:{VX+7}], v[{PX}:{PX+3}], v[{O1}:{O1+3}]
v_mov_b32 v28, 0
v_mov_b32 v29, 0
v_mov_b32 v30, 0
v_mov_b32 v31, 0
v_mov_b32 v38, 0
v_xor_b32 v{V_T}, 32, v{V_OW}
v_rcp_f32 v{LS}, v{LS}
v_mov_b32 v39, 0
""")
    for r in range(4): a(f"v_mul_f32 v{O0+r}, v{O0+r}, v{LS}")
    for r in range(4): a(f"v_mul_f32 v{O1+r}, v{O1+r}, v{LS}")
    a(f"""
v_cvt_pk_bf16_f32 v{O0}, v{O0}, v{O0+1}
v_cvt_pk_bf16_f32 v{O0+1}, v{O0+2}, v{O0+3}
v_cvt_pk_bf16_f32 v{O1}, v{O1}, v{O1+1}
v_cvt_pk_bf16_f32 v{O1+1}, v{O1+2}, v{O1+3}
s_mov_b64 exec, s[{S_L8}:{S_L8+1}]
ds_write_b64 v{V_OW}, v[{O0}:{O0+1}]
ds_write_b64 v{V_T}, v[{O1}:{O1+1}]
s_mov_b64 exec, -1
v_xor_b32 v{V_T}, 128, v{V_OR}
""")
    for r in (40, 41, 42, 43, 44, 48, 52, 53): a(f"v_mov_b32 v{r}, 0")
    L.wait_all()
    stp(6)
    a("s_barrier")
    stp(7)
    OA = 64
    L.issue("o0", f"ds_read_b128 v[{OA}:{OA+3}], v{V_OR}")
    L.issue("o1", f"ds_read_b128 v[{OA+4}:{OA+7}], v{V_T}")
    for r in range(54, 64): a(f"v_mov_b32 v{r}, 0")
    D = lambda n: 28 + 4*n
    def hsum(n):
        x = D(n)
        return [f"v_add_f32 v{x}, v{x}, v{x+1}", f"v_add_f32 v{x+2}, v{x+2}, v{x+3}"]
    def quad_ops(q):
        A_, B_, C_, E_ = (D(4*q + i) for i in range(4))
        o = 72 + 4*q
        ops = hsum(4*q) + hsum(4*q+1) + hsum(4*q+2) + hsum(4*q+3)
        ops += [f"v_cvt_pk_bf16_f32 v{o}, v{A_}, v{B_}", f"v_cvt_pk_bf16_f32 v{o+1}, v{A_+2}, v{B_+2}",
                f"v_cvt_pk_bf16_f32 v{o+2}, v{C_}, v{E_}", f"v_cvt_pk_bf16_f32 v{o+3}, v{C_+2}, v{E_+2}",
                f"v_bfi_b32 v{o}, 1, s{S_TAG}, v{o}",
                f"buffer_store_dwordx4 v[{o}:{o+3}], v{V_PST}, {ws}, s{S_PST if q == 0 else S_PST1} offen{st}"]
        return ops
    def single_ops():
        x = D(8)
        return hsum(8) + [
            f"v_mov_b32_dpp v{x+1}, v{x} row_ror:8 row_mask:0xf bank_mask:0xf",
            f"v_mov_b32_dpp v{x+3}, v{x+2} row_ror:8 row_mask:0xf bank_mask:0xf",
            f"v_cvt_pk_bf16_f32 v{x}, v{x}, v{x+1}", f"v_cvt_pk_bf16_f32 v{x+1}, v{x+2}, v{x+3}",
            f"v_bfi_b32 v{x}, 1, s{S_TAG}, v{x}",
            f"s_mov_b64 exec, s[{S_L8}:{S_L8+1}]\nbuffer_store_dwordx2 v[{x}:{x+1}], v{V_T}, {ws}, s{S_PST2} offen{st}\ns_mov_b64 exec, -1"]
    L.wait("o1")
    single_addr(a, V_T, 72)
    order = [8, 0, 1, 2, 3, 4, 5, 6, 7]
    seq = []
    for n in order:
        seq.append(f"v_smfmac_f32_16x16x64_bf16 v[{D(n)}:{D(n)+3}], v[{OA}:{OA+3}], {R(WO(n,0),8)}, v{V_IDX}")
        seq.append(f"v_smfmac_f32_16x16x64_bf16 v[{D(n)}:{D(n)+3}], v[{OA+4}:{OA+7}], {R(WO(n,1),8)}, v{V_IDX}")
    pend = []
    for i, ins in enumerate(seq):
        a(ins)
        if i == 5: pend += single_ops()
        if i == 13: pend += quad_ops(0)
        for _ in range(2):
            if pend: a(pend.pop(0))
    for p in pend: a(p)
    for p in quad_ops(1): a(p)
    stp(8)
    Lnr = a.label_name("Lnored"); Lr = a.label_name("Lred"); Lr2 = a.label_name("Lred2"); Lpub = a.label_name("Lpub"); Lw2 = a.label_name("Lw2")
    a(f"s_cmp_eq_u32 s{S_W}, 3\ns_cbranch_scc1 {Lnr}")
    SEL = 64; P = 28; Dr = 60
    a(f"s_mov_b32 s{S_SPIN}, 0\ns_sub_u32 s{S_TMP}, s{S_TAG}, 1")
    a(f"s_cmp_eq_u32 s{S_W}, 2\ns_cbranch_scc1 {Lw2}")
    def sel():
        a(f"""
v_and_b32 v{V_T}, 1, v0
v_lshlrev_b32 v{V_T}, 4, v{V_T}
v_mov_b32 v68, 0x3f80
v_lshlrev_b32 v68, v{V_T}, v68
v_bfe_u32 v{V_T}, v0, 1, 3
""")
        for d in range(4):
            a(f"v_cmp_eq_u32 vcc, {d}, v{V_T}\nv_cndmask_b32 v{SEL+d}, 0, v68, vcc")
    sel()
    a.label(Lr)
    for t_ in range(4):
        a(f"buffer_load_dwordx4 v[{P+4*t_}:{P+4*t_+3}], v{V_PLD}, {ws}, s{S_PLD} offen offset:{1024*t_} sc1")
    a(f"""
s_add_u32 s{S_SPIN}, s{S_SPIN}, 1
s_cmp_gt_u32 s{S_SPIN}, 0x100000
s_cbranch_scc1 {Lfail}
s_waitcnt vmcnt(0)
v_bitop3_b32 v{Dr}, v{P}, v{P+4}, s{S_TMP} bitop3:0x42
v_bitop3_b32 v{Dr+1}, v{P+8}, v{P+12}, s{S_TMP} bitop3:0x42
v_bitop3_b32 v{Dr}, v{Dr}, v{Dr+1}, 1 bitop3:0x80
v_cmp_eq_u32 vcc, 0, v{Dr}
s_and_b64 exec, exec, vcc
s_cbranch_scc1 {Lr}
s_mov_b64 exec, -1
""")
    if stamps: a(f"s_add_u32 s101, s101, s{S_SPIN}")
    stp(9)
    a(f"v_mfma_f32_16x16x32_bf16 v[{Dr}:{Dr+3}], v[{SEL}:{SEL+3}], v[{P}:{P+3}], 0")
    for t_ in range(1, 4):
        a(f"v_mfma_f32_16x16x32_bf16 v[{Dr}:{Dr+3}], v[{SEL}:{SEL+3}], v[{P+4*t_}:{P+4*t_+3}], v[{Dr}:{Dr+3}]")
    for r in range(44, 52): a(f"v_mov_b32 v{r}, 0")
    for r in range(4): a(f"v_add_f32_dpp v{Dr+r}, v{Dr+r}, v{Dr+r} row_ror:8 row_mask:0xf bank_mask:0xf")
    a(f"s_branch {Lpub}")
    a.label(Lw2)
    sel()
    a.label(Lr2)
    a(f"""
buffer_load_dwordx4 v[{P}:{P+3}], v{V_PLD}, {ws}, s{S_PLD} offen sc1
s_add_u32 s{S_SPIN}, s{S_SPIN}, 1
s_cmp_gt_u32 s{S_SPIN}, 0x100000
s_cbranch_scc1 {Lfail}
s_waitcnt vmcnt(0)
v_bitop3_b32 v{Dr}, v{P}, v{P+2}, s{S_TMP} bitop3:0x42
v_and_b32 v{Dr}, 1, v{Dr}
v_cmp_eq_u32 vcc, 0, v{Dr}
s_and_b64 exec, exec, vcc
s_cbranch_scc1 {Lr2}
s_mov_b64 exec, -1
""")
    if stamps: a(f"s_add_u32 s101, s101, s{S_SPIN}")
    stp(9)
    a(f"v_mfma_f32_16x16x32_bf16 v[{Dr}:{Dr+3}], v[{SEL}:{SEL+3}], v[{P}:{P+3}], 0")
    for r in range(44, 52): a(f"v_mov_b32 v{r}, 0")
    for sh in (2, 4, 8):
        for r in range(4): a(f"v_add_f32_dpp v{Dr+r}, v{Dr+r}, v{Dr+r} row_ror:{sh} row_mask:0xf bank_mask:0xf")
    a.label(Lpub)
    a(f"""
v_cvt_pk_bf16_f32 v{Dr}, v{Dr}, v{Dr+1}
v_cvt_pk_bf16_f32 v{Dr+1}, v{Dr+2}, v{Dr+3}
v_min_u32 v{Dr}, s{S_POIS}, v{Dr}
s_mov_b64 exec, s[{S_PUB}:{S_PUB+1}]
buffer_store_dwordx2 v[{Dr}:{Dr+1}], v{V_MST}, {ws}, s{S_MNXT} offen{st}
v_mov_b32 v68, -1
v_mov_b32 v69, -1
buffer_store_dwordx2 v[68:69], v{V_MST}, {ws}, s{S_MCUR} offen{st}
s_mov_b64 exec, -1
""")
    a.label(Lnr)
    stp(10)
    for r in range(24): a(f"v_mov_b32 v{ACC+r}, 0")
    a(f"""
s_mov_b32 s{S_TMP}, s{S_MCUR}
s_mov_b32 s{S_MCUR}, s{S_MNXT}
s_mov_b32 s{S_MNXT}, s{S_M3}
s_mov_b32 s{S_M3}, s{S_TMP}
s_xor_b32 s{S_TAG}, s{S_TAG}, 1
s_add_u32 s{S_STEP}, s{S_STEP}, 1
s_branch {Ltop}
""")

def finish(a):
    L = a.label_name("Lfin")
    a(f"""
s_waitcnt vmcnt(0)
s_barrier
s_cmp_lg_u32 s{S_W}, 3
s_cbranch_scc1 {L}
v_mov_b32 v{V_T}, 64
v_mov_b32 v52, s{S_H}
s_mov_b64 exec, 1
global_store_byte v52, v{V_T}, s[{S_DBG}:{S_DBG+1}] offset:{DBG_PROG*4} sc1
s_mov_b64 exec, -1
s_waitcnt vmcnt(0)
""")
    a.label(L)
```

```python
from asmlib import *
from layout import *

def reduce_kernel(nparts=14):
    a = Asm()
    a(f"""
s_load_dwordx2 s[8:9], s[0:1], {KA['ws']}
s_load_dwordx2 s[12:13], s[0:1], {KA['x']}
s_load_dwordx2 s[16:17], s[0:1], {KA['out']}
s_cmp_ge_u32 s2, 288
s_cbranch_scc1 Lred_exit
v_lshrrev_b32 v1, 6, v0
v_and_b32 v0, 63, v0
v_readfirstlane_b32 s3, v1
s_lshl_b32 s4, s2, 2
s_add_u32 s4, s4, s3            ; task 0..1151
s_mul_i32 s5, s4, 3641
s_lshr_b32 s5, s5, 16
s_mul_i32 s6, s5, 18
s_sub_u32 s6, s4, s6            ; nt
s_lshr_b32 s7, s5, 2            ; rb
s_and_b32 s20, s5, 3            ; w
s_mul_i32 s21, s7, {nparts*4}
s_add_u32 s21, s21, s20
s_mul_i32 s21, s21, 73728
s_lshl_b32 s22, s6, 12
s_add_u32 s21, s21, s22
s_add_u32 s21, s21, {WS_OUTP}
s_mul_i32 s23, s5, {32*1152}
s_lshl_b32 s22, s6, 6
s_add_u32 s23, s23, s22
v_lshlrev_b32 v2, 4, v0
v_and_b32 v3, 31, v0
v_mul_u32_u24 v3, 1152, v3
v_lshrrev_b32 v4, 5, v0
v_lshl_add_u32 v3, v4, 3, v3
s_waitcnt lgkmcnt(0)
s_mov_b32 s10, 0x10000000
s_mov_b32 s11, 0x20000
s_mov_b32 s14, {2048*1152}
s_mov_b32 s15, 0x20000
s_mov_b32 s18, {2048*1152}
s_mov_b32 s19, 0x20000
""")
    for q in range(4):
        a(f"buffer_load_dwordx2 v[{8+2*q}:{9+2*q}], v3, s[12:15], s23 offen offset:{16*q}")
    for j in range(nparts):
        for q in range(4):
            a(f"buffer_load_dwordx4 v[{16+16*j+4*q}:{19+16*j+4*q}], v2, s[8:11], s21 offen offset:{1024*q}")
        a(f"s_add_u32 s21, s21, {4*73728}")
    for j in range(1, nparts):
        a(f"s_waitcnt vmcnt({4*(nparts-1-j)})")
        for r in range(0, 16, 2):
            a(f"v_pk_add_f32 v[{16+r}:{17+r}], v[{16+r}:{17+r}], v[{16+16*j+r}:{17+16*j+r}]")
    for q in range(4):
        b = 16 + 4*q
        a(f"""
v_lshlrev_b32 v4, 16, v{8+2*q}
v_and_b32 v5, 0xffff0000, v{8+2*q}
v_lshlrev_b32 v6, 16, v{9+2*q}
v_and_b32 v7, 0xffff0000, v{9+2*q}
v_add_f32 v{b}, v{b}, v4
v_add_f32 v{b+1}, v{b+1}, v5
v_add_f32 v{b+2}, v{b+2}, v6
v_add_f32 v{b+3}, v{b+3}, v7
v_cvt_pk_bf16_f32 v{b}, v{b}, v{b+1}
v_cvt_pk_bf16_f32 v{b+1}, v{b+2}, v{b+3}
buffer_store_dwordx2 v[{b}:{b+1}], v3, s[16:19], s23 offen offset:{16*q}
""")
    a("s_waitcnt vmcnt(0)\nLred_exit:\ns_endpgm")
    return a.text(), 16 + 16*nparts
```

```python
from asmlib import *
from layout import *
from rec import Ctr, f32bits, S_WS

S_RB, S_W, S_J = 3, 4, 5
S_A = 12
S_B = 16
S_C = 20
S_PQ, S_PK, S_PV = 24, 26, 28
S_DBG = 30
S_CUR, S_NXT = 32, 33
S_IT, S_ITN, S_END = 34, 35, 36
S_T, S_T2, S_T3 = 37, 38, 39
S_WM0 = 40
S_OB = 41
S_CURC, S_NXTC = 42, 43
S_SPIN = 44
S_H, S_HN, S_HE = 45, 46, 47
S_K = 48
V_FR = 1
V_VO = 4
V_ST = 7
V_T = 9
V_FP = 10
FB = 16
ACC0 = 32
XF = 112
NFB = 4

def OUT(n):
    return 256 + 16*n if n < 16 else 80 + 16*(n - 16)

def load_ptr(a, dst, name):
    a(f"s_load_dwordx2 s[{dst}:{dst+1}], s[0:1], {KA[name]}")

def srd(a, d, ptr, nbytes):
    a(f"s_mov_b32 s{d}, s{ptr}\ns_mov_b32 s{d+1}, s{ptr+1}\ns_mov_b32 s{d+2}, {nbytes}\ns_mov_b32 s{d+3}, 0x20000")

def setup(a):
    a(f"""
v_lshrrev_b32 v{V_T}, 6, v0
v_and_b32 v0, 63, v0
v_readfirstlane_b32 s{S_W}, v{V_T}
v_lshrrev_b32 v10, 4, v0
v_bfe_u32 v11, v0, 2, 2
v_and_b32 v12, 3, v0
v_lshrrev_b32 v13, 2, v0
s_lshl_b32 s{S_WM0}, s{S_W}, 10
""")
    a(f"""
v_lshrrev_b32 v14, 1, v10
v_lshlrev_b32 v14, 9, v14
v_lshl_add_u32 v14, v11, 6, v14
v_and_b32 v15, 1, v10
v_lshl_add_u32 v14, v15, 5, v14
v_lshl_add_u32 v{V_FR}, v12, 3, v14
v_add_u32 v{V_FR+1}, 0x10000, v{V_FR}
v_add_u32 v{V_FR+2}, 0x20000, v{V_FR}
""")
    a(f"""
s_lshr_b32 s{S_T}, s{S_W}, 1
s_and_b32 s{S_T2}, s{S_W}, 1
s_lshl_b32 s{S_T3}, s{S_W}, 16
v_and_b32 v14, 7, v13
v_lshlrev_b32 v14, 13, v14
v_lshl_add_u32 v14, v12, 4, v14
v_lshrrev_b32 v15, 5, v0
v_lshl_add_u32 v14, v15, 6, v14
v_add_u32 v{V_VO}, s{S_T3}, v14
""")
    a(f"""
s_mul_i32 s{S_T3}, s{S_W}, {16*9216}
v_mul_u32_u24 v14, 9216, v13
v_lshl_add_u32 v14, v12, 4, v14
v_add_u32 v{V_VO+1}, s{S_T3}, v14
""")
    a(f"""
s_mul_i32 s{S_T3}, s{S_T2}, {16*1152}
s_lshl_b32 s{S_IT}, s{S_T}, 6
s_add_u32 s{S_T3}, s{S_T3}, s{S_IT}
v_bfe_u32 v14, v13, 2, 1
v_lshlrev_b32 v14, 3, v14
v_lshrrev_b32 v15, 3, v13
v_lshl_add_u32 v14, v15, 2, v14
v_and_b32 v15, 3, v13
v_add_u32 v14, v14, v15
v_mul_u32_u24 v14, 1152, v14
v_lshl_add_u32 v14, v12, 4, v14
v_add_u32 v{V_VO+2}, s{S_T3}, v14
""")
    a(f"""
s_lshl_b32 s{S_T}, s{S_RB}, 2
s_add_u32 s{S_T}, s{S_T}, s{S_W}
s_lshl_b32 s{S_T}, s{S_T}, 13
v_and_b32 v14, 31, v0
v_lshrrev_b32 v15, 5, v0
v_lshlrev_b32 v{V_ST}, 5, v14
v_lshl_add_u32 v{V_ST}, v15, 4, v{V_ST}
v_add_u32 v{V_ST}, s{S_T}, v{V_ST}
v_lshl_add_u32 v{V_FP}, v15, 9, v{V_FR}
v_add_u32 v{V_FP+1}, 0x10000, v{V_FP}
""")

def layernorm(a):
    load_ptr(a, S_PQ, 'x')
    a(f"""
s_lshl_b32 s{S_T}, s{S_RB}, 2
s_add_u32 s{S_T}, s{S_T}, s{S_W}
s_mul_i32 s{S_T}, s{S_T}, {32*1152}
v_and_b32 v14, 31, v0
v_mul_u32_u24 v14, 1152, v14
v_lshrrev_b32 v15, 5, v0
v_lshl_add_u32 v14, v15, 4, v14
s_waitcnt lgkmcnt(0)
""")
    srd(a, S_A, S_PQ, 2048*1152)
    for t in range(36):
        a(f"buffer_load_dwordx4 v[{XF+4*t}:{XF+4*t+3}], v14, s[{S_A}:{S_A+3}], s{S_T} offen offset:{32*t}")
    a("v_mov_b32 v16, 0x3f803f80")
    for i in range(4): a(f"v_mov_b32 v{20+i}, 0")
    for t in range(36):
        a(f"s_waitcnt vmcnt({35-t})")
        for i in range(4): a(f"v_dot2c_f32_bf16 v{20+i}, v{XF+4*t+i}, v16")
    a(f"""
s_nop 2
v_add_f32 v20, v20, v21
v_add_f32 v22, v22, v23
v_add_f32 v20, v20, v22
v_mov_b32 v21, v20
v_permlane32_swap_b32 v20, v21
v_add_f32 v20, v20, v21
v_mul_f32 v20, {f32bits(1.0/576):#x}, v20
v_cvt_pk_bf16_f32 v21, v20, v20
v_lshlrev_b32 v22, 16, v21
v_mov_b32 v23, v22
v_sub_f32 v24, v20, v22
v_mov_b64 v[26:27], 0
v_mov_b64 v[28:29], 0
""")
    for d in range(144):
        x = XF + d; t0 = 32 + 2*(d % 4); acc = 26 + 2*(d % 2)
        a(f"""
v_lshlrev_b32 v{t0}, 16, v{x}
v_and_b32 v{t0+1}, 0xffff0000, v{x}
v_pk_add_f32 v[{t0}:{t0+1}], v[{t0}:{t0+1}], v[22:23] neg_lo:[0,1] neg_hi:[0,1]
v_pk_fma_f32 v[{acc}:{acc+1}], v[{t0}:{t0+1}], v[{t0}:{t0+1}], v[{acc}:{acc+1}]
v_cvt_pk_bf16_f32 v{x}, v{t0}, v{t0+1}
""")
    a(f"""
v_pk_add_f32 v[26:27], v[26:27], v[28:29]
v_add_f32 v26, v26, v27
v_mov_b32 v27, v26
v_permlane32_swap_b32 v26, v27
v_add_f32 v26, v26, v27
v_mul_f32 v26, {f32bits(1.0/576):#x}, v26
v_fma_f32 v26, -v24, v24, v26
v_max_f32 v26, 0, v26
v_cvt_pk_bf16_f32 v26, v26, v26
v_lshlrev_b32 v26, 16, v26
v_add_f32 v26, {f32bits(1e-5):#x}, v26
v_cvt_pk_bf16_f32 v26, v26, v26
v_lshlrev_b32 v26, 16, v26
v_sqrt_f32 v26, v26
v_cvt_pk_bf16_f32 v26, v26, v26
v_lshlrev_b32 v26, 16, v26
v_rcp_f32 v26, v26
v_mov_b32 v27, v26
""")
    for d in range(144):
        x = XF + d; t0 = 32 + 2*(d % 4)
        a(f"""
v_lshlrev_b32 v{t0}, 16, v{x}
v_and_b32 v{t0+1}, 0xffff0000, v{x}
v_pk_mul_f32 v[{t0}:{t0+1}], v[{t0}:{t0+1}], v[26:27]
v_cvt_pk_bf16_f32 v{x}, v{t0}, v{t0+1}
""")

STAMPS = False
def wstamp(a, i, st=None):
    if not STAMPS: return
    a(f"""
s_memtime s[98:99]
s_waitcnt lgkmcnt(0)
s_sub_u32 s97, s98, s96
s_add_u32 s{84+i}, s{84+i}, s97
s_mov_b32 s96, s98
""")
def wstamp_init(a):
    if not STAMPS: return
    for i in range(12): a(f"s_mov_b32 s{84+i}, 0")
    a("s_memtime s[96:97]\ns_waitcnt lgkmcnt(0)")
def wstamp_dump(a, slot_sgpr):
    if not STAMPS: return
    a(f"s_lshl_b32 s97, s{slot_sgpr}, 2\ns_add_u32 s97, s97, s{S_W}\ns_lshl_b32 s97, s97, 6\ns_add_u32 s97, s97, {61*MiB}\nv_mov_b32 v32, 0\ns_mov_b64 exec, 1")
    for i in range(12): a(f"v_mov_b32 v{36+i}, s{84+i}")
    for i in range(3): a(f"buffer_store_dwordx4 v[{36+4*i}:{39+4*i}], v32, s[{S_WS}:{S_WS+3}], s97 offen offset:{16*i}")
    a("s_mov_b64 exec, -1\ns_waitcnt vmcnt(0)")

class Stream:
    def __init__(self, a, R, D):
        self.a, self.R, self.D = a, R, D
        self.V = Ctr(a, "vmcnt", 63); self.L = Ctr(a, "lgkmcnt", 15)
    def dma(self, slot, i, srd_, vo, sbase, const, tag):
        a = self.a
        a(f"s_add_u32 m0, s{S_WM0}, {slot*12288 + i*4096}")
        if const: a(f"s_add_u32 s{S_T}, s{sbase}, {const}"); so = S_T
        else: so = sbase
        self.V.issue(tag, f"buffer_load_dwordx4 v{vo}, s[{srd_}:{srd_+3}], s{so} offen lds")
    def rd(self, slot, f, buf, tag, paired=False):
        off = slot*12288 + f*1024
        if paired: off = slot*12288 + (f >> 1)*2048 + (f & 1)*512
        b = (V_FP if paired else V_FR) + (off >> 16); off &= 0xffff
        assert off + 256 < 65536
        d = FB + 4*buf
        self.L.issue(tag, f"ds_read_b64_tr_b16 v[{d}:{d+1}], v{b} offset:{off}")
        self.L.issue(tag, f"ds_read_b64_tr_b16 v[{d+2}:{d+3}], v{b} offset:{off+256}")

def qkv_phase(a, Lexit_fail=None, signal=None):
    ws = f"s[{S_WS}:{S_WS+3}]"
    R, D = 6, 4
    load_ptr(a, S_PQ, 'Wq'); load_ptr(a, S_PK, 'Wk'); load_ptr(a, S_PV, 'Wv')
    a("s_waitcnt lgkmcnt(0)")
    def item_src(c, dsrd, doff):
        a(f"""
s_min_u32 s{S_T2}, s{c}, 191
s_cmp_lt_u32 s{S_T2}, 64
s_cselect_b32 s{dsrd}, s{S_PK}, s{S_PV}
s_cselect_b32 s{dsrd+1}, s{S_PK+1}, s{S_PV+1}
s_cmp_lt_u32 s{S_T2}, 128
s_cselect_b32 s{dsrd}, s{dsrd}, s{S_PQ}
s_cselect_b32 s{dsrd+1}, s{dsrd+1}, s{S_PQ+1}
s_mov_b32 s{dsrd+2}, {W_BYTES}
s_mov_b32 s{dsrd+3}, 0x20000
s_and_b32 s{doff}, s{S_T2}, 63
s_lshl_b32 s{doff}, s{doff}, 7
""")
    S_NKV, S_NQ, S_R1, S_R2, S_I, S_N = S_K, S_K+1, S_K+2, S_K+3, S_K+4, S_K+5
    a(f"""
s_cmp_lt_u32 s{S_J}, 2
s_cselect_b32 s{S_NKV}, 10, 9
s_cmp_lt_u32 s{S_J}, 10
s_cselect_b32 s{S_N}, 14, 13
s_sub_u32 s{S_NQ}, s{S_N}, s{S_NKV}
s_sub_u32 s{S_R1}, s{S_RB}, s{S_NKV}
s_cmp_lt_u32 s{S_RB}, s{S_NKV}
s_cselect_b32 s{S_R1}, s{S_RB}, s{S_R1}
s_mov_b32 s{S_R2}, s{S_RB}
""")
    for _ in range(4):
        a(f"s_sub_u32 s{S_T}, s{S_R2}, s{S_NQ}\ns_cmp_lt_u32 s{S_R2}, s{S_NQ}\ns_cselect_b32 s{S_R2}, s{S_R2}, s{S_T}")
    def calc_c(add, dst):
        a(f"""
s_add_u32 s{S_T}, s{S_I}, {add}
s_add_u32 s{S_T2}, s{S_T}, s{S_R1}
s_sub_u32 s{S_T3}, s{S_T2}, s{S_NKV}
s_cmp_lt_u32 s{S_T2}, s{S_NKV}
s_cselect_b32 s{dst}, s{S_T2}, s{S_T3}
s_add_u32 s{S_T2}, s{S_T}, s{S_R2}
s_sub_u32 s{S_T3}, s{S_T2}, s{S_NQ}
s_cmp_lt_u32 s{S_T2}, s{S_N}
s_cselect_b32 s{S_T2}, s{S_T2}, s{S_T3}
s_cmp_lt_u32 s{S_T}, s{S_NKV}
s_cselect_b32 s{dst}, s{dst}, s{S_T2}
s_mul_i32 s{dst}, s{dst}, 14
s_add_u32 s{dst}, s{dst}, s{S_J}
s_cmp_lt_u32 s{S_T}, s{S_N}
s_cselect_b32 s{dst}, s{dst}, 192
""")
    a(f"s_mov_b32 s{S_I}, 0")
    calc_c(0, S_IT); calc_c(1, S_ITN)
    item_src(S_IT, S_A, S_CUR); item_src(S_ITN, S_B, S_NXT)
    st = Stream(a, R, D)
    def issue(p):
        pp = p % 6
        sr_, sb = (S_A, S_CUR) if p < 6 else (S_B, S_NXT)
        for i in range(3):
            st.dma(pp % R, i, sr_, V_VO, sb, (6*pp + 2*i)*16*8192, ("d", p))
    for p in range(D): issue(p)
    a("s_waitcnt vmcnt(0)\ns_barrier")
    wstamp(a, 1)
    st.V.q = []
    for f in range(NFB - 1): st.rd(0, f, f, ("f", f), True)
    pre_L = list(st.L.q)
    Lloop = a.label_name("Lqkv"); Lv = a.label_name("Lqkv_v"); Lnext = a.label_name("Lqkv_n"); Ldone = a.label_name("Lqkv_d")
    def body(isv, Vq):
        st.V.q = list(Vq); st.L.q = list(pre_L)
        for p in range(6):
            wstamp(a, 2)
            st.V.wait(("d", p + 1))
            wstamp(a, 3)
            a("s_barrier")
            wstamp(a, 4)
            issue(p + D)
            for f in range(12):
                phi = 12*p + f; t = phi >> 1; nt = phi & 1
                nx = phi + NFB - 1
                st.rd((nx // 12) % R, nx % 12, nx % NFB, ("f", nx % 72 if nx >= 72 else nx), True)
                st.L.wait(("f", phi))
                W = f"v[{FB+4*(phi%NFB)}:{FB+4*(phi%NFB)+3}]"; X = f"v[{XF+4*t}:{XF+4*t+3}]"
                acc = f"v[{ACC0+16*nt}:{ACC0+16*nt+15}]"
                A_, B_ = (X, W) if isv else (W, X)
                a(f"v_mfma_f32_32x32x16_bf16 {acc}, {A_}, {B_}, {acc if t else 0}")
        wstamp(a, 2)
        a(f"""
s_and_b32 s{S_T2}, s{S_IT}, 63
s_lshr_b32 s{S_OB}, s{S_T2}, 1
s_lshl_b32 s{S_OB}, s{S_OB}, 19
s_and_b32 s{S_T2}, s{S_T2}, 1
s_lshl_b32 s{S_T2}, s{S_T2}, 12
s_add_u32 s{S_OB}, s{S_OB}, s{S_T2}
""")
        if isv: a(f"s_add_u32 s{S_OB}, s{S_OB}, {WS_VT}")
        else: a(f"s_cmp_lt_u32 s{S_IT}, 64\ns_cselect_b32 s{S_T2}, {WS_K}, {WS_Q}\ns_add_u32 s{S_OB}, s{S_OB}, s{S_T2}")
        for nt in range(2):
            for u in range(2):
                b = ACC0 + 16*nt + 8*u; d = 64 + 4*(2*nt + u)
                for i in range(4): a(f"v_cvt_pk_bf16_f32 v{d+i}, v{b+2*i}, v{b+2*i+1}")
                st.V.issue("st", f"buffer_store_dwordx4 v[{d}:{d+3}], v{V_ST}, {ws}, s{S_OB} offen offset:{(2*nt+u)*1024} sc1")
        if signal: signal(a, st)
        wstamp(a, 5)
        return [(t_[0], t_[1] - 6) if isinstance(t_, tuple) and t_[0] == "d" else t_ for t_ in st.V.q]
    real = st.a
    scratch = Asm(); st.a = st.V.a = st.L.a = scratch
    g = globals()
    a_save = a
    def with_asm(x):
        nonlocal a
        a = x; st.a = st.V.a = st.L.a = x
    with_asm(scratch); q1 = body(False, []); q2 = body(False, q1); assert q1 == q2, (q1, q2)
    with_asm(a_save)
    a.label(Lloop)
    a(f"s_cmp_lt_u32 s{S_IT}, 64\ns_cbranch_scc1 {Lloop}_k\ns_cmp_lt_u32 s{S_IT}, 128\ns_cbranch_scc1 {Lv}")
    a.label(Lloop + "_k")
    body(False, q1)
    a(f"s_branch {Lnext}")
    a.label(Lv)
    body(True, q1)
    a.label(Lnext)
    a(f"""
s_mov_b32 s{S_IT}, s{S_ITN}
s_add_u32 s{S_I}, s{S_I}, 1
s_mov_b32 s{S_A}, s{S_B}
s_mov_b32 s{S_A+1}, s{S_B+1}
s_mov_b32 s{S_CUR}, s{S_NXT}
""")
    calc_c(1, S_ITN)
    item_src(S_ITN, S_B, S_NXT)
    a(f"s_cmp_lt_u32 s{S_IT}, 192\ns_cbranch_scc1 {Lloop}")
    a("s_waitcnt vmcnt(0) lgkmcnt(0)\ns_barrier")

GA, UA, GL, HF = 32, 48, 64, 72
V_C0 = 8
GELU_C0 = -2.0 * 0.7978845608028654 * 1.4426950408889634
GELU_C1 = GELU_C0 * 0.044715
WG_BYTES = 576 * 4608 * 2

def work_split(a):
    a(f"""
s_mul_i32 s{S_IT}, s{S_J}, 9
s_add_u32 s{S_END}, s{S_IT}, 9
s_mul_i32 s{S_H}, s{S_J}, 3
s_add_u32 s{S_HE}, s{S_H}, 3
s_cmp_lt_u32 s{S_J}, 4
s_cbranch_scc1 Lws_done
s_sub_u32 s{S_T}, s{S_J}, 4
s_mul_i32 s{S_IT}, s{S_T}, 11
s_add_u32 s{S_IT}, s{S_IT}, 36
s_add_u32 s{S_END}, s{S_IT}, 11
s_lshl_b32 s{S_H}, s{S_T}, 1
s_add_u32 s{S_H}, s{S_H}, 12
s_add_u32 s{S_HE}, s{S_H}, 2
s_cmp_lt_u32 s{S_J}, 12
s_cbranch_scc1 Lws_done
s_sub_u32 s{S_T}, s{S_J}, 12
s_mul_i32 s{S_IT}, s{S_T}, 10
s_add_u32 s{S_IT}, s{S_IT}, 124
s_add_u32 s{S_END}, s{S_IT}, 10
Lws_done:
""")

def gelu_ops(e0, e1):
    ops = []
    S_C1 = S_K + 8
    for e in range(e0, e1, 2):
        x0, x1 = GA + e, GA + e + 1; t0, t1 = 12 + (e & 2), 13 + (e & 2)
        ops += [f"v_mul_f32 v{t0}, v{x0}, v{x0}", f"v_mul_f32 v{t1}, v{x1}, v{x1}",
                f"v_fma_f32 v{t0}, v{t0}, s{S_C1}, v{V_C0}", f"v_fma_f32 v{t1}, v{t1}, s{S_C1}, v{V_C0}",
                f"v_mul_f32 v{t0}, v{t0}, v{x0}", f"v_mul_f32 v{t1}, v{t1}, v{x1}",
                f"v_exp_f32 v{t0}, v{t0}", f"v_exp_f32 v{t1}, v{t1}",
                f"v_add_f32 v{t0}, 1.0, v{t0}", f"v_add_f32 v{t1}, 1.0, v{t1}",
                f"v_rcp_f32 v{t0}, v{t0}", f"v_rcp_f32 v{t1}, v{t1}",
                f"v_mul_f32 v{t0}, v{t0}, v{x0}", f"v_mul_f32 v{t1}, v{t1}, v{x1}",
                f"v_cvt_pk_bf16_f32 v{GL + e//2}, v{t0}, v{t1}"]
    return ops

def h_ops():
    ops = []
    for e in range(0, 16, 2):
        t0, t1 = 12 + (e & 2), 13 + (e & 2)
        ops += [f"v_lshlrev_b32 v{t0}, 16, v{GL + e//2}", f"v_and_b32 v{t1}, 0xffff0000, v{GL + e//2}",
                f"v_mul_f32 v{t0}, v{t0}, v{UA+e}", f"v_mul_f32 v{t1}, v{t1}, v{UA+e+1}",
                f"v_cvt_pk_bf16_f32 v{HF + e//2}, v{t0}, v{t1}"]
    return ops

def zero_out_acc(a):
    for n in range(16):
        for r in range(16): a(f"v_accvgpr_write_b32 a{16*n + r}, 0")
    for r in range(80, 112, 2): a(f"v_mov_b64 v[{r}:{r+1}], 0")

def ffn_phase(a):
    R, D = 9, 7
    S_C1 = S_K + 8; S_FIRST = S_K + 9
    load_ptr(a, S_PQ, 'Wg'); load_ptr(a, S_PK, 'Wu'); load_ptr(a, S_PV, 'Wd')
    a(f"s_mov_b32 s{S_C1}, {f32bits(GELU_C1):#x}\nv_mov_b32 v{V_C0}, {f32bits(GELU_C0):#x}\ns_mov_b32 s{S_FIRST}, s{S_IT}\ns_waitcnt lgkmcnt(0)")
    srd(a, S_A, S_PQ, WG_BYTES); srd(a, S_B, S_PK, WG_BYTES); srd(a, S_C, S_PV, WG_BYTES)
    OOB = 0x7f000000
    def bases():
        a(f"""
s_lshl_b32 s{S_CUR}, s{S_IT}, 6
s_cmp_lt_u32 s{S_IT}, s{S_END}
s_cselect_b32 s{S_CUR}, s{S_CUR}, {OOB}
s_add_u32 s{S_T}, s{S_IT}, 1
s_lshl_b32 s{S_NXT}, s{S_T}, 6
s_cmp_lt_u32 s{S_T}, s{S_END}
s_cselect_b32 s{S_NXT}, s{S_NXT}, {OOB}
s_mul_i32 s{S_NXTC}, s{S_IT}, {32*1152}
s_sub_u32 s{S_CURC}, s{S_NXTC}, {32*1152}
s_cmp_lt_u32 s{S_IT}, s{S_END}
s_cselect_b32 s{S_NXTC}, s{S_NXTC}, {OOB}
s_cmp_gt_u32 s{S_IT}, s{S_FIRST}
s_cselect_b32 s{S_CURC}, s{S_CURC}, {OOB}
""")
    bases()
    st = Stream(a, R, D)
    def issue(p):
        pp = p % 9; nxt = p >= 9; grp, q = divmod(pp, 3)
        for i in range(3):
            if grp < 2:
                st.dma(pp, i, S_A if grp == 0 else S_B, V_VO + 1, S_NXT if nxt else S_CUR, (12*q + 4*i)*16*9216, ("d", p))
            else:
                st.dma(pp, i, S_C, V_VO + 2, S_NXTC if nxt else S_CURC, (6*q + 2*i)*64, ("d", p))
    for p in range(D): issue(p)
    zero_out_acc(a)
    a("s_waitcnt vmcnt(0)\ns_barrier")
    st.V.q = []
    for f in range(NFB - 1): st.rd(0, f, f, ("f", f))
    pre_L = list(st.L.q)
    def group(grp, full, valu):
        valu = list(valu)
        per = -(-len(valu) // 34) if full else 0
        for q in range(3):
            p = 3*grp + q
            st.V.wait(("d", p + 1))
            a("s_barrier")
            issue(p + D)
            for f in range(12):
                phi = 12*p + f; g = phi - 36*grp
                nx = phi + NFB - 1
                if not full and g < 36 - (NFB - 1): continue
                if not full and g == 36 - (NFB - 1):
                    st.L.wait_all()
                    for v in valu: a(v)
                    valu = []
                st.rd((nx // 12) % R, nx % 12, nx % NFB, ("f", nx % 108))
                if not full: continue
                st.L.wait(("f", phi))
                Wf = f"v[{FB+4*(phi%NFB)}:{FB+4*(phi%NFB)+3}]"
                if grp < 2:
                    acc = f"v[{(GA, UA)[grp]}:{(GA, UA)[grp]+15}]"
                    a(f"v_mfma_f32_32x32x16_bf16 {acc}, {Wf}, v[{XF+4*g}:{XF+4*g+3}], {acc if g else 0}")
                else:
                    n, u2 = g >> 1, g & 1
                    acc = R_(OUT(n), 16)
                    a(f"v_mfma_f32_32x32x16_bf16 {acc}, {Wf}, v[{HF+4*u2}:{HF+4*u2+3}], {acc}")
                if g >= 1:
                    for _ in range(per):
                        if valu: a(valu.pop(0))
        for v in valu: a(v)
    def rename(q): return [(t[0], t[1] - 9) for t in q]
    a_save = a
    def with_asm(x):
        nonlocal a
        a = x; st.a = st.V.a = st.L.a = x
    payload = [h_ops(), gelu_ops(0, 8), gelu_ops(8, 16)]
    with_asm(Asm())
    st.V.q = []; qs = None
    for it in range(2):
        qs = []
        for grp in range(3):
            qs.append(list(st.V.q)); st.L.q = [("f", 36*grp + k) for k in range(NFB - 1) for _ in range(2)]
            group(grp, True, payload[grp])
        st.V.q = rename(st.V.q)
    with_asm(a_save)
    Lloop = a.label_name("Lffn")
    a.label(Lloop)
    for grp in range(3):
        Ll = a.label_name("Lffn_l"); Le = a.label_name("Lffn_e")
        if grp < 2: a(f"s_cmp_lt_u32 s{S_IT}, s{S_END}\ns_cbranch_scc0 {Ll}")
        else: a(f"s_cmp_gt_u32 s{S_IT}, s{S_FIRST}\ns_cbranch_scc0 {Ll}")
        for full in (True, False):
            if not full: a.label(Ll)
            st.V.q = list(qs[grp]); st.L.q = [("f", 36*grp + k) for k in range(NFB - 1) for _ in range(2)]
            group(grp, full, payload[grp] if (full or grp != 1) else [])
            if full: a(f"s_branch {Le}")
        a.label(Le)
    a(f"s_add_u32 s{S_IT}, s{S_IT}, 1")
    bases()
    a(f"s_cmp_le_u32 s{S_IT}, s{S_END}\ns_cbranch_scc1 {Lloop}")
    a("s_waitcnt vmcnt(0) lgkmcnt(0)\ns_barrier")

R_ = R

QF, KF, KMF, VF, VMF = 112, 144, 176, 208, 240
SX, SM, PX, PM = 32, 48, 64, 72
OT, OB = 112, 176
S_MASK = 64
SCALE_LOG2E = 0.08838834764831845 * 1.4426950408889634

def attn_phase(a, wait_head=None):
    ws = f"s[{S_WS}:{S_WS+3}]"
    R, D = 12, 10
    S_SC = S_K + 8; S_SEG = S_K + 9; S_O1, S_O2 = S_K + 10, S_K + 11
    load_ptr(a, S_PQ, 'Wo')
    a(f"""
s_mov_b32 s{S_SC}, {f32bits(SCALE_LOG2E):#x}
s_lshl_b32 s{S_SEG}, s{S_RB}, 2
s_add_u32 s{S_SEG}, s{S_SEG}, s{S_W}
v_and_b32 v12, 31, v0
v_lshrrev_b32 v13, 5, v0
v_lshlrev_b32 v14, 2, v13
v_sub_u32 v14, v12, v14
""")
    for r in range(16):
        a(f"v_cmp_ge_i32 s[{S_MASK+2*r}:{S_MASK+2*r+1}], v14, {8*(r>>2) + (r&3)}")
    a(f"""
v_and_b32 v10, 7, v0
v_lshlrev_b32 v10, 5, v10
v_lshl_add_u32 v10, v13, 4, v10
v_lshlrev_b32 v11, 4, v12
v_lshl_add_u32 v11, v13, 3, v11
s_waitcnt lgkmcnt(0)
""")
    srd(a, S_A, S_PQ, W_BYTES)
    OOB = 0x7f000000
    def bases():
        a(f"""
s_mul_i32 s{S_CUR}, s{S_H}, 147456
s_add_u32 s{S_NXT}, s{S_CUR}, 147456
s_add_u32 s{S_T}, s{S_H}, 1
s_cmp_lt_u32 s{S_T}, s{S_HE}
s_cselect_b32 s{S_NXT}, s{S_NXT}, {OOB}
""")
    bases()
    st = Stream(a, R, D)
    def issue(p):
        pp = p % 12; te, q = divmod(pp, 3)
        for i in range(3):
            st.dma(pp, i, S_A, V_VO + 2, S_NXT if p >= 12 else S_CUR, te*32*1152 + (6*q + 2*i)*64, ("d", p))
    for p in range(D): issue(p)
    Lloop = a.label_name("Lattn")
    a.label(Lloop)
    if wait_head: wait_head(a)
    a(f"""
s_lshl_b32 s{S_O1}, s{S_H}, 19
s_add_u32 s{S_O2}, s{S_O1}, {WS_K}
""")
    for s_ in range(8):
        if s_ == 4: a(f"s_add_u32 s{S_O1}, s{S_O1}, 4096\ns_add_u32 s{S_O2}, s{S_O2}, 4096")
        a(f"buffer_load_dwordx4 v[{QF+4*s_}:{QF+4*s_+3}], v{V_ST}, {ws}, s{S_O1} offen offset:{(s_&3)*1024} sc1")
        a(f"buffer_load_dwordx4 v[{KF+4*s_}:{KF+4*s_+3}], v{V_ST}, {ws}, s{S_O2} offen offset:{(s_&3)*1024} sc1")
    a(f"""
s_lshl_b32 s{S_O1}, s{S_SEG}, 5
s_add_u32 s{S_O1}, s{S_O1}, s{S_H}
s_lshl_b32 s{S_O1}, s{S_O1}, 11
s_add_u32 s{S_O2}, s{S_O1}, {WS_VM}
s_add_u32 s{S_O1}, s{S_O1}, {WS_KM}
""")
    for s_ in range(8):
        a(f"buffer_load_dwordx4 v[{KMF+4*s_}:{KMF+4*s_+3}], v10, {ws}, s{S_O1} offen offset:{s_*256} sc1")
    for te in range(4):
        a(f"buffer_load_dwordx2 v[{VMF+4*te}:{VMF+4*te+1}], v11, {ws}, s{S_O2} offen offset:{te*512} sc1")
        a(f"v_mov_b64 v[{VMF+4*te+2}:{VMF+4*te+3}], 0")
    a(f"s_lshl_b32 s{S_O1}, s{S_H}, 19\ns_add_u32 s{S_O1}, s{S_O1}, {WS_VT}")
    for s_ in range(8):
        if s_ == 4: a(f"s_add_u32 s{S_O1}, s{S_O1}, 4096")
        a(f"buffer_load_dwordx4 v[{VF+4*s_}:{VF+4*s_+3}], v{V_ST}, {ws}, s{S_O1} offen offset:{(s_&3)*1024} sc1")
    a("s_waitcnt vmcnt(20)")
    for s_ in range(8):
        a(f"v_mfma_f32_32x32x16_bf16 v[{SX}:{SX+15}], v[{KF+4*s_}:{KF+4*s_+3}], v[{QF+4*s_}:{QF+4*s_+3}], {f'v[{SX}:{SX+15}]' if s_ else 0}")
    a("s_waitcnt vmcnt(12)")
    for s_ in range(8):
        a(f"v_mfma_f32_32x32x16_bf16 v[{SM}:{SM+15}], v[{KMF+4*s_}:{KMF+4*s_+3}], v[{QF+4*s_}:{QF+4*s_+3}], {f'v[{SM}:{SM+15}]' if s_ else 0}")
    a("v_mov_b32 v12, 0xff800000")
    for r in range(16):
        a(f"v_cndmask_b32 v{SX+r}, v12, v{SX+r}, s[{S_MASK+2*r}:{S_MASK+2*r+1}]")
    vals = [SX + r for r in range(16)] + [SM + r for r in range(4)]
    a(f"v_max3_f32 v12, v{vals[0]}, v{vals[1]}, v{vals[2]}")
    for i in range(3, 19, 2): a(f"v_max3_f32 v12, v12, v{vals[i]}, v{vals[i+1]}")
    a(f"""
v_max_f32 v12, v12, v{vals[19]}
v_mov_b32 v13, v12
v_permlane32_swap_b32 v12, v13
v_max_f32 v12, v12, v13
v_mul_f32 v12, s{S_SC}, v12
""")
    for v in vals: a(f"v_fma_f32 v{v}, v{v}, s{S_SC}, -v12")
    for v in vals: a(f"v_exp_f32 v{v}, v{v}")
    a(f"v_add_f32 v12, v{vals[0]}, v{vals[1]}\nv_add_f32 v13, v{vals[2]}, v{vals[3]}")
    for i in range(4, 20, 2): a(f"v_add_f32 v12, v12, v{vals[i]}\nv_add_f32 v13, v13, v{vals[i+1]}")
    a(f"""
v_add_f32 v12, v12, v13
v_mov_b32 v13, v12
v_permlane32_swap_b32 v12, v13
v_add_f32 v12, v12, v13
v_rcp_f32 v12, v12
""")
    for v in vals: a(f"v_mul_f32 v{v}, v{v}, v12")
    for i in range(8): a(f"v_cvt_pk_bf16_f32 v{PX+i}, v{SX+2*i}, v{SX+2*i+1}")
    a(f"v_cvt_pk_bf16_f32 v{PM}, v{SM}, v{SM+1}\nv_cvt_pk_bf16_f32 v{PM+1}, v{SM+2}, v{SM+3}\nv_mov_b64 v[{PM+2}:{PM+3}], 0")
    a("s_waitcnt vmcnt(0)")
    for te in range(4):
        o = f"v[{OT+16*te}:{OT+16*te+15}]"
        a(f"v_mfma_f32_32x32x16_bf16 {o}, v[{VMF+4*te}:{VMF+4*te+3}], v[{PM}:{PM+3}], 0")
        a(f"v_mfma_f32_32x32x16_bf16 {o}, v[{VF+8*te}:{VF+8*te+3}], v[{PX}:{PX+3}], {o}")
        a(f"v_mfma_f32_32x32x16_bf16 {o}, v[{VF+8*te+4}:{VF+8*te+7}], v[{PX+4}:{PX+7}], {o}")
    a("s_barrier")
    st.V.q = []; st.L.q = []
    for f in range(NFB - 1): st.rd(0, f, f, ("f", f))
    for te in range(4):
        for i in range(8): a(f"v_cvt_pk_bf16_f32 v{OB+8*te+i}, v{OT+16*te+2*i}, v{OT+16*te+2*i+1}")
    for p in range(12):
        te, q = divmod(p, 3)
        if p:
            st.V.wait(("d", p + 1))
            a("s_barrier")
        issue(p + D)
        for f in range(12):
            phi = 12*p + f; g = phi - 36*te
            nx = phi + NFB - 1
            if nx < 144: st.rd(nx // 12, nx % 12, nx % NFB, ("f", nx))
            st.L.wait(("f", phi))
            n, u2 = g >> 1, g & 1
            acc = R_(OUT(n), 16)
            a(f"v_mfma_f32_32x32x16_bf16 {acc}, v[{FB+4*(phi%NFB)}:{FB+4*(phi%NFB)+3}], v[{OB+8*te+4*u2}:{OB+8*te+4*u2+3}], {acc}")
    a(f"s_add_u32 s{S_H}, s{S_H}, 1")
    bases()
    a(f"s_cmp_lt_u32 s{S_H}, s{S_HE}\ns_cbranch_scc1 {Lloop}")

def store_partial(a, flags=""):
    ws = f"s[{S_WS}:{S_WS+3}]"
    a(f"""
s_mul_i32 s{S_T}, s{S_RB}, 14
s_add_u32 s{S_T}, s{S_T}, s{S_J}
s_lshl_b32 s{S_T}, s{S_T}, 2
s_add_u32 s{S_T}, s{S_T}, s{S_W}
s_mul_i32 s{S_T}, s{S_T}, 73728
s_add_u32 s{S_T}, s{S_T}, {WS_OUTP}
v_lshlrev_b32 v12, 4, v0
s_nop 7
""")
    for n in range(18):
        for q in range(4):
            a(f"buffer_store_dwordx4 {R_(OUT(n) + 4*q, 4)}, v12, {ws}, s{S_T} offen offset:{q*1024}{flags}")
        a(f"s_add_u32 s{S_T}, s{S_T}, 4096")
```

```python
import sys
from asmlib import *
from layout import *
import worker as W, rec, reduce as RD
from rec import S_WS
from entry import *
HDR = open("parallel_sum__memory_aug_recurrent_mem_tr__geglu_ffn__prompt.s.ref").read().split("; Override launch")[0]

def worker_ids(a):
    a(f"""
s_and_b32 s{W.S_RB}, s{S_TKT}, 15
s_lshr_b32 s{W.S_J}, s{S_TKT}, 4
s_lshl_b32 s77, s{S_GRP}, 1
s_add_u32 s{W.S_J}, s{W.S_J}, s77
""")
def chk(a):
    for b in a.check_branches(): print("HAZARD", b)
    return a.text()
def k_qkv():
    a = Asm(); a.uid = 1000
    entry(a, "Lq_exit"); a(f"s_cmp_eq_u32 s{S_GRP}, 7\ns_cbranch_scc1 Lq_exit"); worker_ids(a)
    W.setup(a); W.layernorm(a); W.qkv_phase(a)
    a("Lq_exit:\ns_endpgm"); return chk(a)
def k_rec():
    a = Asm(); a.uid = 2000
    entry(a, "Lr_exit")
    a(f"""
s_cmp_lg_u32 s{S_GRP}, 7
s_cbranch_scc1 Lr_exit
s_mov_b32 s{rec.S_H}, s{S_TKT}
s_mov_b32 s{rec.S_DBG}, s{S_DBGP}
s_mov_b32 s{rec.S_DBG+1}, s{S_DBGP+1}
s_load_dwordx2 s[{rec.S_PTR}:{rec.S_PTR+1}], s[0:1], {KA['mem0']}
s_load_dwordx2 s[{rec.S_PTR+2}:{rec.S_PTR+3}], s[0:1], {KA['Wq']}
s_load_dwordx2 s[{rec.S_PTR+4}:{rec.S_PTR+5}], s[0:1], {KA['Wk']}
s_load_dwordx2 s[{rec.S_PTR+6}:{rec.S_PTR+7}], s[0:1], {KA['Wv']}
s_load_dwordx2 s[{rec.S_PTR+8}:{rec.S_PTR+9}], s[0:1], {KA['Wo']}
s_waitcnt lgkmcnt(0)
""")
    rec.setup_consts(a); rec.prologue(a)
    rec.handshake(a, "Lr_fast", "Lr_slow", "Lr_exit")
    a.label("Lr_fast"); rec.step_loop(a, True, "Lr_done", "Lr_exit")
    a.label("Lr_slow"); rec.step_loop(a, False, "Lr_done", "Lr_exit")
    a.label("Lr_done"); rec.finish(a)
    a("Lr_exit:\ns_endpgm"); return chk(a)
def k_ffn():
    a = Asm(); a.uid = 3000
    entry(a, "Lf_exit"); a(f"s_cmp_eq_u32 s{S_GRP}, 7\ns_cbranch_scc1 Lf_exit"); worker_ids(a)
    W.setup(a); W.layernorm(a); W.work_split(a); W.ffn_phase(a); W.attn_phase(a); W.store_partial(a)
    a("s_waitcnt vmcnt(0)\nLf_exit:\ns_endpgm"); return chk(a)
rt, rv = RD.reduce_kernel()
s = HDR
s += "; @launch kernel=qkv_kernel grid=(256,1,1) block=(256,1,1) lds=163840\n"
s += "; @launch kernel=rec_kernel grid=(256,1,1) block=(256,1,1) lds=163840\n"
s += "; @launch kernel=ffn_kernel grid=(256,1,1) block=(256,1,1) lds=163840\n"
s += "; @launch kernel=red_kernel grid=(288,1,1) block=(256,1,1) lds=0\n"
s += '.amdgcn_target "amdgcn-amd-amdhsa--gfx950"\n.text\n'
for n, t in (("qkv_kernel", k_qkv()), ("rec_kernel", k_rec()), ("ffn_kernel", k_ffn()), ("red_kernel", rt)):
    s += kernel_header(n) + t
s += '.section .rodata,"a"\n'
for n in ("qkv_kernel", "rec_kernel", "ffn_kernel"): s += kernel_desc(n, 512, 102, 256)
s += kernel_desc("red_kernel", rv, 32)
open("parallel_sum__memory_aug_recurrent_mem_tr__geglu_ffn__prompt.s", "w").write(s)
print(len(s), "bytes")
```

```python
from asmlib import *
from layout import *
import struct

L_WV = 0
L_MEMT = 147456
L_XT = 156672
L_SP = 158720
L_END = 163840
assert L_SP + 4 * 1280 == L_END

V_IDX, V_ARD, V_WV, V_XTW, V_XTR, V_SPW, V_SP0W, V_SPR, V_SP0R, V_OW, V_OR, V_PST, V_PLD, V_MST, V_MLD, V_KX, V_VX, V_JUNK = range(1, 19)
V_T = 19
KX = 20
ACC = 28
AB = 52
VX = 72

def WQ(c, t): return 256 + (c * 2 + t) * 8
def WK(c, t):
    i = c * 2 + t
    return 256 + 144 + i * 8 if i < 14 else 80 + (i - 14) * 8
def WO(n, ks): return 112 + (n * 2 + ks) * 8

S_H, S_W = 3, 4
S_WS = 8
S_WT = 12
S_PTR = 16
S_DBG = 26
S_PST, S_PLD, S_PST1, S_PST2 = 28, 29, 30, 31
S_L8 = 32
S_HF8 = 34
S_XK = 36
S_MCUR, S_MNXT, S_M3 = 37, 38, 39
S_KX, S_VX, S_KM, S_VM = 40, 41, 42, 43
S_TAG, S_STEP, S_TMP, S_TMP2 = 44, 45, 46, 47
S_PUB = 54
S_SC = 56
S_XCC = 57
S_MG = 58
S_PF, S_PF2 = 59, 60
S_T0 = 62
S_SPIN = 66
S_POIS = 67

SCALE_LOG2E = 0.08838834764831845 * 1.4426950408889634
def f32bits(x): return struct.unpack("<I", struct.pack("<f", x))[0]

def gamma_base(g):
    w, rho = divmod(g, 9)
    if rho < 8: return 144*w + 32*(rho >> 1) + 8*(rho & 1), 16
    return 144*w + 128, 8

class Ctr:
    def __init__(self, a, name, cap): self.a, self.name, self.cap, self.q = a, name, cap, []
    def issue(self, tag, text):
        self.a(text); self.q.append(tag)
    def wait(self, tag):
        if tag not in self.q: return
        last = max(i for i, t in enumerate(self.q) if t == tag)
        n = len(self.q) - 1 - last
        assert n <= self.cap, (tag, n)
        self.a(f"s_waitcnt {self.name}({n})"); self.q = self.q[last+1:]
    def wait_all(self):
        self.a(f"s_waitcnt {self.name}(0)"); self.q = []

def setup_consts(a):
    a(f"""
v_lshrrev_b32 v{V_T}, 6, v0
v_and_b32 v0, 63, v0
v_readfirstlane_b32 s{S_W}, v{V_T}
v_and_b32 v40, 15, v0
v_lshrrev_b32 v41, 4, v0
v_bfe_u32 v42, v0, 2, 2
v_and_b32 v43, 3, v0
v_and_b32 v44, 7, v0
v_bfe_u32 v45, v0, 3, 1
""")
    a(f"""
v_mov_b32 v46, 0x4444
v_mov_b32 v47, 0xeeee
v_and_b32 v48, 1, v0
v_cmp_eq_u32 vcc, 0, v48
v_cndmask_b32 v{V_IDX}, v47, v46, vcc
""")
    a(f"""
v_lshrrev_b32 v46, 1, v41
v_lshlrev_b32 v46, 4, v46
v_and_b32 v47, 1, v41
v_lshl_add_u32 v46, v47, 2, v46
v_add_u32 v46, v46, v42
v_lshlrev_b32 v46, 5, v46
v_lshl_add_u32 v46, v43, 3, v46
v_add_u32 v{V_ARD}, {L_MEMT}, v46
s_mul_i32 s{S_TMP}, s{S_W}, 36864
v_lshlrev_b32 v46, 4, v0
v_add_u32 v{V_WV}, s{S_TMP}, v46
""")
    a(f"""
s_lshl_b32 s{S_TMP}, s{S_W}, 9
s_add_u32 s{S_TMP}, s{S_TMP}, {L_XT}
v_lshlrev_b32 v46, 4, v40
v_lshl_add_u32 v46, v41, 2, v46
v_add_u32 v{V_XTW}, s{S_TMP}, v46
s_mul_i32 s{S_XK}, s{S_W}, 768
s_add_u32 s{S_XK}, s{S_XK}, {L_SP - L_XT}
""")
    a(f"""
v_lshrrev_b32 v46, 1, v41
v_lshlrev_b32 v46, 4, v46
v_and_b32 v47, 1, v41
v_lshl_add_u32 v46, v47, 2, v46
v_add_u32 v46, v46, v42
v_lshlrev_b32 v46, 4, v46
v_and_b32 v47, 1, v43
v_lshl_add_u32 v46, v47, 3, v46
v_add_u32 v{V_XTR}, s{S_TMP}, v46
""")
    a(f"""
s_mul_i32 s{S_TMP}, s{S_W}, 1280
v_lshl_add_u32 v46, v41, 3, v44
v_lshlrev_b32 v46, 4, v46
v_lshl_add_u32 v46, v45, 9, v46
v_add_u32 v{V_SPR}, {L_SP}, v46
v_add_u32 v{V_SPW}, s{S_TMP}, v{V_SPR}
v_and_b32 v47, 1, v41
v_lshl_add_u32 v48, v47, 3, v44
v_lshlrev_b32 v48, 4, v48
v_add_u32 v48, s{S_TMP}, v48
v_add_u32 v{V_SP0W}, {L_SP + 1024}, v48
v_lshrrev_b32 v46, 1, v41
v_lshl_add_u32 v46, v46, 3, v44
v_lshlrev_b32 v46, 4, v46
v_lshl_add_u32 v47, v47, 1, v45
v_lshl_add_u32 v46, v47, 2, v46
v_add_u32 v{V_SP0R}, {L_SP + 1024}, v46
""")
    a(f"""
s_lshl_b32 s{S_TMP}, s{S_W}, 2
v_lshrrev_b32 v46, 1, v41
v_add_u32 v46, s{S_TMP}, v46
v_lshlrev_b32 v47, 1, v44
v_xor_b32 v46, v46, v47
v_lshlrev_b32 v46, 4, v46
v_lshl_add_u32 v46, v44, 8, v46
v_and_b32 v48, 1, v41
v_lshl_add_u32 v46, v48, 3, v46
v_add_u32 v{V_OW}, {L_XT}, v46
""")
    a(f"""
v_lshrrev_b32 v47, 1, v40
v_and_b32 v48, 1, v0
v_lshl_add_u32 v46, v41, 1, v48
v_lshlrev_b32 v48, 1, v47
v_xor_b32 v46, v46, v48
v_lshlrev_b32 v46, 4, v46
v_lshl_add_u32 v46, v47, 8, v46
v_add_u32 v{V_OR}, {L_XT}, v46
""")
    a(f"""
s_lshl_b32 s{S_TMP}, s{S_W}, 3
v_lshrrev_b32 v46, 3, v0
v_add_u32 v46, s{S_TMP}, v46
v_mul_u32_u24 v46, 9216, v46
v_lshl_add_u32 v{V_PST}, v44, 4, v46
""")
    Lw2 = a.label_name("Lc2"); Lce = a.label_name("Lce")
    a(f"""
s_mul_i32 s{S_TMP}, s{S_H}, 9216
s_lshl_b32 s{S_TMP2}, s{S_W}, 12
s_add_u32 s{S_TMP}, s{S_TMP}, s{S_TMP2}
s_lshr_b32 s{S_PF}, s{S_H}, 3
s_mul_i32 s{S_PF}, s{S_PF}, 72
s_and_b32 s{S_PF2}, s{S_H}, 7
s_cmp_ge_u32 s{S_W}, 2
s_cbranch_scc1 {Lw2}
v_lshl_add_u32 v46, v41, 1, v45
v_lshlrev_b32 v46, 7, v46
v_lshl_add_u32 v46, v44, 4, v46
v_add_u32 v{V_PLD}, s{S_TMP}, v46
s_lshl_b32 s{S_PF2}, s{S_PF2}, 3
v_add_u32 v46, s{S_PF2}, v44
s_lshl_b32 s{S_TMP2}, s{S_W}, 5
s_add_u32 s{S_PF}, s{S_PF}, s{S_TMP2}
v_and_b32 v48, 15, v46
v_lshl_add_u32 v47, v41, 4, v48
v_add_u32 v47, s{S_PF}, v47
v_lshlrev_b32 v47, 5, v47
v_lshrrev_b32 v48, 4, v46
v_lshl_add_u32 v{V_MST}, v48, 3, v47
s_mov_b32 s{S_PUB}, 0x00ff00ff
s_branch {Lce}
""")
    a.label(Lw2)
    a(f"""
v_lshrrev_b32 v46, 1, v40
v_lshl_add_u32 v46, v46, 2, v41
v_lshlrev_b32 v46, 5, v46
v_and_b32 v47, 1, v0
v_lshl_add_u32 v46, v47, 4, v46
v_add_u32 v{V_PLD}, s{S_TMP}, v46
s_lshl_b32 s{S_PF2}, s{S_PF2}, 2
v_lshl_add_u32 v47, v47, 1, v41
v_add_u32 v47, s{S_PF2}, v47
v_and_b32 v48, 7, v47
s_add_u32 s{S_PF}, s{S_PF}, 64
v_add_u32 v48, s{S_PF}, v48
v_lshlrev_b32 v48, 5, v48
v_lshrrev_b32 v47, 3, v47
v_lshl_add_u32 v{V_MST}, v47, 3, v48
s_mov_b32 s{S_PUB}, 0x00030003
""")
    a.label(Lce)
    a(f"""
s_mul_i32 s{S_TMP}, s{S_W}, {192 * 16}
s_add_u32 s{S_TMP}, s{S_TMP}, {L_MEMT}
v_lshlrev_b32 v46, 4, v0
v_add_u32 v{V_MLD}, s{S_TMP}, v46
""")
    a(f"""
s_lshl_b32 s{S_TMP}, s{S_W}, 11
v_lshrrev_b32 v48, 1, v41
v_lshlrev_b32 v48, 10, v48
v_and_b32 v47, 1, v41
v_lshl_add_u32 v48, v47, 4, v48
v_add_u32 v48, s{S_TMP}, v48
v_lshrrev_b32 v46, 1, v42
v_lshlrev_b32 v46, 4, v46
v_and_b32 v47, 1, v42
v_lshl_add_u32 v46, v47, 2, v46
v_add_u32 v46, v46, v43
v_lshl_add_u32 v{V_KX}, v46, 5, v48
v_lshl_add_u32 v{V_VX}, v40, 5, v48
""")
    a(f"""
s_mov_b32 s{S_L8}, 0x00ff00ff
s_mov_b32 s{S_L8+1}, 0x00ff00ff
s_mov_b32 s{S_HF8}, 0xff00ff00
s_mov_b32 s{S_HF8+1}, 0xff00ff00
s_mov_b32 s{S_PUB+1}, 0
s_mov_b32 s{S_SC}, {f32bits(SCALE_LOG2E):#x}
s_mov_b32 s{S_POIS}, 0xfffffffe
s_lshl_b32 s{S_PST}, s{S_H}, 7
s_add_u32 s{S_PST}, s{S_PST}, {WS_PART}
s_add_u32 s{S_PST1}, s{S_PST}, 4096
s_lshl_b32 s{S_PST2}, s{S_H}, 5
s_add_u32 s{S_PST2}, s{S_PST2}, {WS_PART + 8192}
s_mov_b32 s{S_PLD}, {WS_PART}
s_mov_b32 s{S_MCUR}, {WS_MEMT}
s_mov_b32 s{S_MNXT}, {WS_MEMT + MEMT_STRIDE}
s_mov_b32 s{S_M3}, {WS_MEMT + 2 * MEMT_STRIDE}
s_lshl_b32 s{S_TMP}, s{S_H}, 19
s_add_u32 s{S_KX}, s{S_TMP}, {WS_K}
s_add_u32 s{S_VX}, s{S_TMP}, {WS_VT}
s_lshl_b32 s{S_TMP}, s{S_H}, 11
s_add_u32 s{S_KM}, s{S_TMP}, {WS_KM}
s_add_u32 s{S_VM}, s{S_TMP}, {WS_VM - L_XT}
s_mov_b32 s{S_STEP}, 0
s_mov_b32 s{S_TAG}, 1
""")

def single_addr(a, dst, tmp):
    a(f"""
s_lshl_b32 s{S_TMP}, s{S_W}, 3
v_lshrrev_b32 v{dst}, 4, v0
v_bfe_u32 v{tmp}, v0, 2, 1
v_lshl_add_u32 v{dst}, v{dst}, 1, v{tmp}
v_add_u32 v{dst}, s{S_TMP}, v{dst}
v_mul_u32_u24 v{dst}, 9216, v{dst}
v_and_b32 v{tmp}, 3, v0
v_lshl_add_u32 v{dst}, v{tmp}, 3, v{dst}
""")

def set_wsrd(a, ptr):
    a(f"""
s_mov_b32 s{S_WT}, s{ptr}
s_mov_b32 s{S_WT+1}, s{ptr+1}
s_mov_b32 s{S_WT+2}, {W_BYTES}
s_mov_b32 s{S_WT+3}, 0x20000
""")

def prologue(a):
    ws = f"s[{S_WS}:{S_WS+3}]"; wt = f"s[{S_WT}:{S_WT+3}]"
    a("v_mov_b32 v28, 0\nv_mov_b32 v29, 0\nv_mov_b32 v30, 0\nv_mov_b32 v31, 0\nv_mov_b32 v32, -1\nv_mov_b32 v33, -1")
    a(f"buffer_store_dwordx4 v[28:31], v{V_PST}, {ws}, s{S_PST} offen sc1")
    a(f"buffer_store_dwordx4 v[28:31], v{V_PST}, {ws}, s{S_PST1} offen sc1")
    single_addr(a, 34, 35)
    a(f"s_mov_b64 exec, s[{S_L8}:{S_L8+1}]")
    a(f"buffer_store_dwordx2 v[28:29], v34, {ws}, s{S_PST2} offen sc1")
    a(f"s_mov_b64 exec, -1\ns_cmp_eq_u32 s{S_W}, 3")
    L = a.label_name("Lnopois")
    a(f"s_cbranch_scc1 {L}\ns_mov_b64 exec, s[{S_PUB}:{S_PUB+1}]")
    a(f"buffer_store_dwordx2 v[32:33], v{V_MST}, {ws}, s{S_MNXT} offen sc1")
    a(f"buffer_store_dwordx2 v[32:33], v{V_MST}, {ws}, s{S_M3} offen sc1")
    a(f"s_mov_b64 exec, -1")
    a.label(L)
    a(f"""
s_mul_i32 s{S_TMP}, s{S_W}, {2 * 1152}
v_lshlrev_b32 v46, 1, v0
v_add_u32 v46, s{S_TMP}, v46
""")
    for tt in range(2):
        for j in range(9):
            a(f"global_load_ushort v{52 + tt*9 + j}, v46, s[{S_PTR}:{S_PTR+1}] offset:{tt*1152 + j*128}")
    a(f"s_lshl_b32 s{S_TMP}, s{S_W}, 3\ns_add_u32 s{S_TMP}, s{S_TMP}, {L_MEMT}\ns_mov_b32 s{S_TMP2}, 7282")
    for j in range(9):
        d = 28 + j
        a(f"""
v_add_u32 v46, {64*j}, v0
v_mul_u32_u24 v47, s{S_TMP2}, v46
v_lshrrev_b32 v47, 20, v47
v_mul_u32_u24 v48, 144, v47
v_sub_u32 v46, v46, v48
v_mul_u32_u24 v47, 72, v47
v_lshrrev_b32 v48, 5, v46
v_lshlrev_b32 v48, 4, v48
v_and_b32 v49, 15, v46
v_add_u32 v48, v48, v49
v_bfe_u32 v49, v46, 4, 1
v_and_b32 v50, 7, v46
v_add_u32 v50, 64, v50
v_bfe_u32 v51, v46, 3, 1
v_cmp_gt_u32 vcc, 128, v46
v_cndmask_b32 v48, v50, v48, vcc
v_cndmask_b32 v49, v51, v49, vcc
v_add_u32 v48, v48, v47
v_lshlrev_b32 v48, 5, v48
v_lshl_add_u32 v48, v49, 1, v48
v_add_u32 v{d}, s{S_TMP}, v48
""")
    a("s_waitcnt vmcnt(0)")
    for tt in range(2):
        for j in range(9):
            a(f"ds_write_b16 v{28+j}, v{52 + tt*9 + j} offset:{tt*4}")
    a("s_barrier")
    L = a.label_name("Lnoarr")
    a(f"""
s_cmp_lg_u32 s{S_W}, 0
s_cbranch_scc1 {L}
s_mul_i32 s{S_TMP}, s{S_XCC}, 6
s_mov_b64 s[{S_T0}:{S_T0+1}], 1
s_lshl_b64 s[{S_T0}:{S_T0+1}], s[{S_T0}:{S_T0+1}], s{S_TMP}
s_or_b32 s{S_T0+1}, s{S_T0+1}, 0x01000000
v_mov_b32 v38, s{S_T0}
v_mov_b32 v39, s{S_T0+1}
v_mov_b32 v37, 0
s_mov_b64 exec, 1
global_atomic_add_x2 v37, v[38:39], s[{S_DBG}:{S_DBG+1}] offset:{DBG_XMASK*4} sc1
s_mov_b64 exec, -1
""")
    a.label(L)
    a(f"""
s_mul_i32 s{S_TMP2}, s{S_W}, 36864
s_mul_i32 s{S_PF}, s{S_H}, 147456
s_mul_i32 s{S_PF2}, s{S_W}, 288
s_add_u32 s{S_PF}, s{S_PF}, s{S_PF2}
""")
    set_wsrd(a, S_PTR + 8)
    a(f"s_mov_b32 s{S_PF2}, 3641")
    for m in range(36):
        a(f"""
v_add_u32 v46, {64*m}, v0
v_mul_u32_u24 v47, s{S_PF2}, v46
v_lshrrev_b32 v47, 16, v47
v_mul_u32_u24 v48, 18, v47
v_sub_u32 v48, v46, v48
v_mul_u32_u24 v47, 1152, v47
v_lshl_add_u32 v47, v48, 4, v47
s_add_u32 s{S_TMP}, s{S_TMP2}, {m*1024}
s_mov_b32 m0, s{S_TMP}
buffer_load_dwordx4 v47, {wt}, s{S_PF} offen lds
""")
    a(f"""
v_lshrrev_b32 v46, 1, v41
v_lshlrev_b32 v46, 4, v46
v_lshrrev_b32 v47, 1, v42
v_lshl_add_u32 v46, v47, 3, v46
v_and_b32 v47, 1, v41
v_lshl_add_u32 v46, v47, 2, v46
v_and_b32 v47, 1, v42
v_add_u32 v46, v46, v47
v_mul_u32_u24 v46, 288, v46
v_lshl_add_u32 v46, v43, 3, v46
v_add_u32 v49, s{S_TMP2}, v46
""")
    a(f"""
v_and_b32 v46, 1, v41
v_lshlrev_b32 v46, 4, v46
v_lshrrev_b32 v47, 1, v42
v_lshl_add_u32 v46, v47, 3, v46
v_lshrrev_b32 v47, 1, v41
v_lshl_add_u32 v46, v47, 2, v46
v_and_b32 v47, 1, v42
v_add_u32 v46, v46, v47
v_lshlrev_b32 v46, 6, v46
v_lshl_add_u32 v46, v43, 3, v46
v_add_u32 v50, s{S_TMP2}, v46
""")
    a(f"""
s_lshl_b32 s{S_PF}, s{S_H}, 8
s_lshl_b32 s{S_PF2}, s{S_W}, 6
s_add_u32 s{S_PF}, s{S_PF}, s{S_PF2}
v_bfe_u32 v46, v0, 2, 3
v_lshrrev_b32 v47, 5, v0
v_lshl_add_u32 v48, v47, 3, v46
v_lshl_add_u32 v46, v47, 4, v46
v_lshlrev_b32 v46, 13, v46
v_lshl_add_u32 v46, v43, 4, v46
v_add_u32 v51, s{S_PF}, v46
v_lshlrev_b32 v48, 13, v48
v_lshl_add_u32 v48, v43, 4, v48
v_add_u32 v48, s{S_PF}, v48
""")
    def dma_chunk(c):
        for m in range(4):
            base, stride = gamma_base(4*c + m)
            a(f"""
s_add_u32 s{S_TMP}, s{S_TMP2}, {c*4096 + m*1024}
s_mov_b32 m0, s{S_TMP}
s_mov_b32 s{S_PF}, {base * 8192}
buffer_load_dwordx4 v{51 if stride == 16 else 48}, {wt}, s{S_PF} offen lds
""")
    def wo_half(ks):
        for n in range(9):
            for q in range(4):
                off = (64*ks + 32*(q >> 1) + 2*(q & 1)) * 288 + 32*n
                a(f"ds_read_b64_tr_b16 {R(WO(n, ks) + 2*q, 2)}, v49 offset:{off}")
            if n % 3 == 2: a("s_waitcnt lgkmcnt(0)")
    def rd_chunk(c, dst):
        for t in range(2):
            for q in range(4):
                off = c*4096 + (32*(q >> 1) + 2*(q & 1)) * 64 + 32*t
                a(f"ds_read_b64_tr_b16 {R(dst(c, t) + 2*q, 2)}, v50 offset:{off}")
        a("s_waitcnt lgkmcnt(0)")
    a("s_waitcnt vmcnt(18)")
    wo_half(0)
    set_wsrd(a, S_PTR + 2)
    for c in range(4): dma_chunk(c)
    a("s_waitcnt vmcnt(16)")
    wo_half(1)
    for c in range(4, 9): dma_chunk(c)
    for c in range(9):
        a("s_waitcnt vmcnt(32)")
        rd_chunk(c, WQ)
        if c == 0: set_wsrd(a, S_PTR + 4)
        dma_chunk(c)
    for c in range(9):
        a("s_waitcnt vmcnt(32)")
        rd_chunk(c, WK)
        if c == 0: set_wsrd(a, S_PTR + 6)
        dma_chunk(c)
    for c in range(9):
        a(f"s_waitcnt vmcnt({32 - 4*c})")
        rd_chunk(c, lambda c_, t: 52 + 8*t)
        for t in range(2):
            for hf in range(2):
                a(f"ds_write_b128 v{V_WV}, v[{52+8*t+4*hf}:{52+8*t+4*hf+3}] offset:{c*4096 + t*2048 + hf*1024}")
        a("s_waitcnt lgkmcnt(0)")

def handshake(a, Lfast, Lslow, Lfail):
    Lp = a.label_name("Lhs")
    a(f"v_mov_b32 v30, 0\ns_mov_b32 s{S_SPIN}, 0")
    a.label(Lp)
    a(f"""
global_load_dwordx2 v[28:29], v30, s[{S_DBG}:{S_DBG+1}] offset:{DBG_XMASK*4} sc1
s_add_u32 s{S_SPIN}, s{S_SPIN}, 1
s_cmp_gt_u32 s{S_SPIN}, 0x400000
s_cbranch_scc1 {Lfail}
s_waitcnt vmcnt(0)
v_readfirstlane_b32 s{S_T0}, v28
v_readfirstlane_b32 s{S_T0+1}, v29
s_lshr_b32 s{S_TMP}, s{S_T0+1}, 24
s_cmp_lt_u32 s{S_TMP}, 32
s_cbranch_scc1 {Lp}
s_mul_i32 s{S_TMP}, s{S_XCC}, 6
s_lshr_b64 s[{S_T0}:{S_T0+1}], s[{S_T0}:{S_T0+1}], s{S_TMP}
s_and_b32 s{S_T0}, s{S_T0}, 63
s_cmp_eq_u32 s{S_T0}, 32
s_cbranch_scc1 {Lfast}
s_branch {Lslow}
""")

S_ST = 84
def stamp(a, on, i):
    if not on: return
    a(f"""
s_memtime s[98:99]
s_waitcnt lgkmcnt(0)
s_sub_u32 s97, s98, s96
s_add_u32 s{S_ST+i}, s{S_ST+i}, s97
s_mov_b32 s96, s98
""")

def step_loop(a, fast, Ldone, Lfail, stamps=False, kv_wait=None):
    ws = f"s[{S_WS}:{S_WS+3}]"
    st = "" if fast else " sc1"
    L = Ctr(a, "lgkmcnt", 15)
    def stp(i):
        if stamps: L.q = []
        stamp(a, stamps, i)
    Ltop = a.label_name("Lstep"); Lnog = a.label_name("Lnog")
    q0, q1, k0, k1, v0_, v1_ = (ACC + 4*i for i in range(6))
    ABUF = (52, 56)
    if kv_wait: kv_wait(a, 0)
    a(f"buffer_load_dwordx4 v[{KX}:{KX+3}], v{V_KX}, {ws}, s{S_KX} offen sc1")
    a(f"buffer_load_dwordx4 v[{KX+4}:{KX+7}], v{V_KX}, {ws}, s{S_KX} offen offset:256 sc1")
    for r in range(24): a(f"v_mov_b32 v{ACC+r}, 0")
    a(f"s_waitcnt vmcnt(0)")
    if stamps:
        for i in range(12): a(f"s_mov_b32 s{S_ST+i}, 0")
        a("s_mov_b32 s100, 0\ns_mov_b32 s101, 0\ns_memtime s[96:97]\ns_waitcnt lgkmcnt(0)")
    a(f"s_branch {Lnog}")
    a.label(Ltop)
    stp(0)
    Lg = a.label_name("Lgather"); Lw3 = a.label_name("Lw3")
    a(f"s_cmp_lg_u32 s{S_W}, 3\ns_cbranch_scc1 {Lw3}\ns_waitcnt vmcnt(3)\ns_branch {Lnog}")
    a.label(Lw3)
    a(f"s_sub_u32 s{S_MG}, s{S_MCUR}, {L_MEMT}\ns_mov_b32 s{S_SPIN}, 0")
    a.label(Lg)
    G = 52
    for j in range(3):
        a(f"buffer_load_dwordx4 v[{G+4*j}:{G+4*j+3}], v{V_MLD}, {ws}, s{S_MG} offen offset:{1024*j} sc1")
    a(f"""
s_add_u32 s{S_SPIN}, s{S_SPIN}, 1
s_cmp_gt_u32 s{S_SPIN}, 0x100000
s_cbranch_scc1 {Lfail}
s_waitcnt vmcnt(0)
v_max3_u32 v{V_T}, v{G}, v{G+2}, v{G+4}
v_max3_u32 v64, v{G+6}, v{G+8}, v{G+10}
v_max_u32 v{V_T}, v{V_T}, v64
v_cmp_eq_u32 vcc, -1, v{V_T}
s_and_b64 exec, exec, vcc
s_cbranch_scc1 {Lg}
s_mov_b64 exec, -1
""")
    if stamps: a(f"s_add_u32 s100, s100, s{S_SPIN}")
    stp(1)
    for j in range(3):
        a(f"ds_write_b128 v{V_MLD}, v[{G+4*j}:{G+4*j+3}] offset:{1024*j}")
    a.label(Lnog)
    WBUF2 = (64, 72)
    def wrd(f):
        b = WBUF2[f % 2]
        for hf in range(2):
            L.issue(("W", f), f"ds_read_b128 v[{b+4*hf}:{b+4*hf+3}], v{V_WV} offset:{(f//2)*4096 + (f%2)*2048 + hf*1024}")
    L.q = []
    wrd(0); wrd(1)
    L.wait_all()
    a("s_barrier")
    stp(2)
    Lnp = a.label_name("Lnoprog")
    a(f"""
s_cmp_lg_u32 s{S_W}, 3
s_cbranch_scc1 {Lnp}
v_mov_b32 v{V_T}, s{S_STEP}
v_mov_b32 v52, s{S_H}
s_mov_b64 exec, 1
global_store_byte v52, v{V_T}, s[{S_DBG}:{S_DBG+1}] offset:{DBG_PROG*4} sc1
s_mov_b64 exec, -1
""")
    if kv_wait: kv_wait(a, 1)
    a(f"""
s_cmp_lt_u32 s{S_STEP}, 63
s_cselect_b32 s{S_PF2}, 8192, 0
v_lshlrev_b32 v52, 7, v0
s_add_u32 s{S_PF}, s{S_KX}, s{S_PF2}
s_add_u32 s{S_PF2}, s{S_VX}, s{S_PF2}
buffer_load_dword v{V_JUNK}, v52, {ws}, s{S_PF} offen sc1
buffer_load_dword v{V_JUNK}, v52, {ws}, s{S_PF2} offen sc1
""")
    a.label(Lnp)
    def ard(ks):
        b = ABUF[ks & 1]
        L.issue(("A", ks), f"ds_read_b64_tr_b16 v[{b}:{b+1}], v{V_ARD} offset:{1024*ks}")
        L.issue(("A", ks), f"ds_read_b64_tr_b16 v[{b+2}:{b+3}], v{V_ARD} offset:{1024*ks + 256}")
    ard(0); ard(1)
    for ks in range(9):
        A = f"v[{ABUF[ks&1]}:{ABUF[ks&1]+3}]"
        L.wait(("A", ks))
        def sm(acc, B): a(f"v_smfmac_f32_16x16x64_bf16 v[{acc}:{acc+3}], {A}, {B}, v{V_IDX}")
        last = ks == 8
        if not last:
            sm(q0, R(WQ(ks,0),8))
            L.wait(("W", 2*ks)); sm(v0_, f"v[{WBUF2[0]}:{WBUF2[0]+7}]"); wrd(2*ks + 2)
            sm(q1, R(WQ(ks,1),8)); sm(k0, R(WK(ks,0),8))
            L.wait(("W", 2*ks+1)); sm(v1_, f"v[{WBUF2[1]}:{WBUF2[1]+7}]"); wrd(2*ks + 3)
            sm(k1, R(WK(ks,1),8))
            if ks + 2 < 9: ard(ks + 2)
        else:
            sm(q0, R(WQ(ks,0),8)); sm(q1, R(WQ(ks,1),8)); sm(k0, R(WK(ks,0),8)); sm(k1, R(WK(ks,1),8))
            L.wait(("W", 2*ks)); sm(v0_, f"v[{WBUF2[0]}:{WBUF2[0]+7}]")
            L.wait(("W", 2*ks+1)); sm(v1_, f"v[{WBUF2[1]}:{WBUF2[1]+7}]")
    stp(3)
    QF, KF, T1, T2, T0 = 52, 56, 60, 64, 68
    def post(x, dst):
        a(f"v_add_f32 v{x}, v{x}, v{x+1}\nv_add_f32 v{x+2}, v{x+2}, v{x+3}\nv_cvt_pk_bf16_f32 v{dst}, v{x}, v{x+2}")
    post(q0, q0); post(q1, q1)
    L.issue("xq", f"ds_write2_b32 v{V_XTW}, v{q0}, v{q1} offset0:0 offset1:64")
    a(f"v_add_u32 v{V_T}, s{S_XK}, v{V_XTW}\nv_add_u32 v{T0}, s{S_XK}, v{V_XTR}")
    post(k0, k0); post(k1, k1)
    L.issue("xk", f"ds_write2_b32 v{V_T}, v{k0}, v{k1} offset0:0 offset1:64")
    L.issue("qf", f"ds_read_b64_tr_b16 v[{QF}:{QF+1}], v{V_XTR}")
    L.issue("qf", f"ds_read_b64_tr_b16 v[{QF+2}:{QF+3}], v{V_XTR} offset:128")
    L.issue("kf", f"ds_read_b64_tr_b16 v[{KF}:{KF+1}], v{T0}")
    L.issue("kf", f"ds_read_b64_tr_b16 v[{KF+2}:{KF+3}], v{T0} offset:128")
    a(f"buffer_load_dwordx4 v[{VX}:{VX+3}], v{V_VX}, {ws}, s{S_VX} offen sc1")
    a(f"buffer_load_dwordx4 v[{VX+4}:{VX+7}], v{V_VX}, {ws}, s{S_VX} offen offset:512 sc1")
    VP0, VP1 = v0_, v1_
    KMA = q0 + 1
    a(f"v_lshrrev_b32 v{KMA}, 10, v{V_VX}\nv_and_b32 v{KMA+1}, 0xf0, v{V_VX}\nv_lshl_or_b32 v{KMA}, v{KMA}, 8, v{KMA+1}")
    post(v0_, VP0); post(v1_, VP1)
    a(f"v_mov_b32 v{VP0+1}, 0\nv_mov_b32 v{VP1+1}, 0")
    a(f"buffer_store_dword v{VP0}, v{V_XTW}, {ws}, s{S_VM} offen sc1")
    a(f"buffer_store_dword v{VP1}, v{V_XTW}, {ws}, s{S_VM} offen offset:256 sc1")
    L.wait("qf")
    a(f"v_mfma_f32_16x16x32_bf16 v[{T1}:{T1+3}], v[{KX}:{KX+3}], v[{QF}:{QF+3}], 0")
    a(f"v_mfma_f32_16x16x32_bf16 v[{T2}:{T2+3}], v[{KX+4}:{KX+7}], v[{QF}:{QF+3}], 0")
    L.wait("kf")
    a(f"v_mfma_f32_16x16x32_bf16 v[{T0}:{T0+3}], v[{KF}:{KF+3}], v[{QF}:{QF+3}], 0")
    a(f"buffer_store_dwordx4 v[{KF}:{KF+3}], v{KMA}, {ws}, s{S_KM} offen sc1")
    a(f"s_cmp_eq_u32 s{S_STEP}, 63\ns_cbranch_scc1 {Ldone}")
    for r in range(4): a(f"v_cndmask_b32 v{T1+r}, v{T1+r}, v{T2+r}, s[{S_HF8}:{S_HF8+1}]")
    L.issue("sp", f"ds_write_b128 v{V_SPW}, v[{T1}:{T1+3}]")
    L.issue("sp", f"ds_write_b128 v{V_SP0W}, v[{T0}:{T0+3}]")
    ONE = 64
    for r in range(4): a(f"v_mov_b32 v{ONE+r}, 0x3f803f80")
    L.wait_all()
    stp(4)
    a("s_barrier")
    stp(5)
    X = 28; M = 52
    for w in range(4): L.issue(("x", w), f"ds_read_b128 v[{X+4*w}:{X+4*w+3}], v{V_SPR} offset:{1280*w}")
    for w in range(4): L.issue("m", f"ds_read_b32 v{M+w}, v{V_SP0R} offset:{1280*w}")
    a(f"s_add_u32 s{S_KX}, s{S_KX}, 8192")
    a(f"buffer_load_dwordx4 v[{KX}:{KX+3}], v{V_KX}, {ws}, s{S_KX} offen sc1")
    a(f"buffer_load_dwordx4 v[{KX+4}:{KX+7}], v{V_KX}, {ws}, s{S_KX} offen offset:256 sc1")
    a(f"s_add_u32 s{S_VX}, s{S_VX}, 8192\ns_add_u32 s{S_KM}, s{S_KM}, 65536\ns_add_u32 s{S_VM}, s{S_VM}, 65536")
    for r in (46, 47, 50, 51): a(f"v_mov_b32 v{r}, 0")
    L.wait(("x", 1))
    for r in range(4): a(f"v_add_f32 v{X+r}, v{X+r}, v{X+4+r}")
    L.wait(("x", 3))
    for r in range(4): a(f"v_add_f32 v{X+8+r}, v{X+8+r}, v{X+12+r}")
    L.wait("m")
    a(f"v_add_f32 v{M}, v{M}, v{M+1}\nv_add_f32 v{M+2}, v{M+2}, v{M+3}")
    for r in range(4): a(f"v_add_f32 v{X+r}, v{X+r}, v{X+8+r}")
    a(f"v_add_f32 v{M}, v{M}, v{M+2}")
    t = 60
    a(f"""
v_max3_f32 v{t}, v{X}, v{X+1}, v{X+2}
v_max3_f32 v{t}, v{t}, v{X+3}, v{M}
v_mov_b32 v32, 0
v_mov_b32 v33, 0
v_max_f32_dpp v{t}, v{t}, v{t} row_ror:8 row_mask:0xf bank_mask:0xf
v_mov_b32 v{t+1}, v{t}
v_mov_b32 v34, 0
v_mov_b32 v35, 0
v_permlane16_swap_b32 v{t}, v{t+1}
v_max_f32 v{t}, v{t}, v{t+1}
v_mov_b32 v{t+1}, v{t}
v_mov_b32 v36, 0
v_mov_b32 v37, 0
v_permlane32_swap_b32 v{t}, v{t+1}
v_max_f32 v{t}, v{t}, v{t+1}
v_mul_f32 v{t}, s{S_SC}, v{t}
""")
    vals = [M, X, X+1, X+2, X+3]
    for v in vals: a(f"v_fma_f32 v{v}, v{v}, s{S_SC}, -v{t}")
    for v in vals: a(f"v_exp_f32 v{v}, v{v}")
    PX, PM, O0, O1, LS = 60, 54, 68, 56, 40
    a(f"""
v_mov_b32_dpp v{M+1}, v{M} row_ror:8 row_mask:0xf bank_mask:0xf
v_cvt_pk_bf16_f32 v{PX}, v{X}, v{X+1}
v_cvt_pk_bf16_f32 v{PX+1}, v{X+2}, v{X+3}
v_cvt_pk_bf16_f32 v{PM}, v{M}, v{M+1}
v_mov_b32 v{PM+1}, 0
v_mov_b32_dpp v{PX+2}, v{PX} row_ror:8 row_mask:0xf bank_mask:0xf
v_mov_b32_dpp v{PX+3}, v{PX+1} row_ror:8 row_mask:0xf bank_mask:0xf
s_waitcnt vmcnt(5)
v_mfma_f32_16x16x16_bf16 v[{LS}:{LS+3}], v[{ONE}:{ONE+1}], v[{PM}:{PM+1}], 0
v_mfma_f32_16x16x16_bf16 v[{O0}:{O0+3}], v[{VP0}:{VP0+1}], v[{PM}:{PM+1}], 0
v_mfma_f32_16x16x16_bf16 v[{O1}:{O1+3}], v[{VP1}:{VP1+1}], v[{PM}:{PM+1}], 0
v_mfma_f32_16x16x32_bf16 v[{LS}:{LS+3}], v[{ONE}:{ONE+3}], v[{PX}:{PX+3}], v[{LS}:{LS+3}]
v_mfma_f32_16x16x32_bf16 v[{O0}:{O0+3}], v[{VX}:{VX+3}], v[{PX}:{PX+3}], v[{O0}:{O0+3}]
v_mfma_f32_16x16x32_bf16 v[{O1}:{O1+3}], v[{VX+4}:{VX+7}], v[{PX}:{PX+3}], v[{O1}:{O1+3}]
v_mov_b32 v28, 0
v_mov_b32 v29, 0
v_mov_b32 v30, 0
v_mov_b32 v31, 0
v_mov_b32 v38, 0
v_xor_b32 v{V_T}, 32, v{V_OW}
v_rcp_f32 v{LS}, v{LS}
v_mov_b32 v39, 0
""")
    for r in range(4): a(f"v_mul_f32 v{O0+r}, v{O0+r}, v{LS}")
    for r in range(4): a(f"v_mul_f32 v{O1+r}, v{O1+r}, v{LS}")
    a(f"""
v_cvt_pk_bf16_f32 v{O0}, v{O0}, v{O0+1}
v_cvt_pk_bf16_f32 v{O0+1}, v{O0+2}, v{O0+3}
v_cvt_pk_bf16_f32 v{O1}, v{O1}, v{O1+1}
v_cvt_pk_bf16_f32 v{O1+1}, v{O1+2}, v{O1+3}
s_mov_b64 exec, s[{S_L8}:{S_L8+1}]
ds_write_b64 v{V_OW}, v[{O0}:{O0+1}]
ds_write_b64 v{V_T}, v[{O1}:{O1+1}]
s_mov_b64 exec, -1
v_xor_b32 v{V_T}, 128, v{V_OR}
""")
    for r in (40, 41, 42, 43, 44, 48, 52, 53): a(f"v_mov_b32 v{r}, 0")
    L.wait_all()
    stp(6)
    a("s_barrier")
    stp(7)
    OA = 64
    L.issue("o0", f"ds_read_b128 v[{OA}:{OA+3}], v{V_OR}")
    L.issue("o1", f"ds_read_b128 v[{OA+4}:{OA+7}], v{V_T}")
    for r in range(54, 64): a(f"v_mov_b32 v{r}, 0")
    D = lambda n: 28 + 4*n
    def hsum(n):
        x = D(n)
        return [f"v_add_f32 v{x}, v{x}, v{x+1}", f"v_add_f32 v{x+2}, v{x+2}, v{x+3}"]
    def quad_ops(q):
        A_, B_, C_, E_ = (D(4*q + i) for i in range(4))
        o = 72 + 4*q
        ops = hsum(4*q) + hsum(4*q+1) + hsum(4*q+2) + hsum(4*q+3)
        ops += [f"v_cvt_pk_bf16_f32 v{o}, v{A_}, v{B_}", f"v_cvt_pk_bf16_f32 v{o+1}, v{A_+2}, v{B_+2}",
                f"v_cvt_pk_bf16_f32 v{o+2}, v{C_}, v{E_}", f"v_cvt_pk_bf16_f32 v{o+3}, v{C_+2}, v{E_+2}",
                f"v_bfi_b32 v{o}, 1, s{S_TAG}, v{o}",
                f"buffer_store_dwordx4 v[{o}:{o+3}], v{V_PST}, {ws}, s{S_PST if q == 0 else S_PST1} offen{st}"]
        return ops
    def single_ops():
        x = D(8)
        return hsum(8) + [
            f"v_mov_b32_dpp v{x+1}, v{x} row_ror:8 row_mask:0xf bank_mask:0xf",
            f"v_mov_b32_dpp v{x+3}, v{x+2} row_ror:8 row_mask:0xf bank_mask:0xf",
            f"v_cvt_pk_bf16_f32 v{x}, v{x}, v{x+1}", f"v_cvt_pk_bf16_f32 v{x+1}, v{x+2}, v{x+3}",
            f"v_bfi_b32 v{x}, 1, s{S_TAG}, v{x}",
            f"s_mov_b64 exec, s[{S_L8}:{S_L8+1}]\nbuffer_store_dwordx2 v[{x}:{x+1}], v{V_T}, {ws}, s{S_PST2} offen{st}\ns_mov_b64 exec, -1"]
    L.wait("o1")
    single_addr(a, V_T, 72)
    order = [8, 0, 1, 2, 3, 4, 5, 6, 7]
    seq = []
    for n in order:
        seq.append(f"v_smfmac_f32_16x16x64_bf16 v[{D(n)}:{D(n)+3}], v[{OA}:{OA+3}], {R(WO(n,0),8)}, v{V_IDX}")
        seq.append(f"v_smfmac_f32_16x16x64_bf16 v[{D(n)}:{D(n)+3}], v[{OA+4}:{OA+7}], {R(WO(n,1),8)}, v{V_IDX}")
    pend = []
    for i, ins in enumerate(seq):
        a(ins)
        if i == 5: pend += single_ops()
        if i == 13: pend += quad_ops(0)
        for _ in range(2):
            if pend: a(pend.pop(0))
    for p in pend: a(p)
    for p in quad_ops(1): a(p)
    stp(8)
    Lnr = a.label_name("Lnored"); Lr = a.label_name("Lred"); Lr2 = a.label_name("Lred2"); Lpub = a.label_name("Lpub"); Lw2 = a.label_name("Lw2")
    a(f"s_cmp_eq_u32 s{S_W}, 3\ns_cbranch_scc1 {Lnr}")
    SEL = 64; P = 28; Dr = 60
    a(f"s_mov_b32 s{S_SPIN}, 0\ns_sub_u32 s{S_TMP}, s{S_TAG}, 1")
    a(f"s_cmp_eq_u32 s{S_W}, 2\ns_cbranch_scc1 {Lw2}")
    def sel():
        a(f"""
v_and_b32 v{V_T}, 1, v0
v_lshlrev_b32 v{V_T}, 4, v{V_T}
v_mov_b32 v68, 0x3f80
v_lshlrev_b32 v68, v{V_T}, v68
v_bfe_u32 v{V_T}, v0, 1, 3
""")
        for d in range(4):
            a(f"v_cmp_eq_u32 vcc, {d}, v{V_T}\nv_cndmask_b32 v{SEL+d}, 0, v68, vcc")
    sel()
    a.label(Lr)
    for t_ in range(4):
        a(f"buffer_load_dwordx4 v[{P+4*t_}:{P+4*t_+3}], v{V_PLD}, {ws}, s{S_PLD} offen offset:{1024*t_} sc1")
    a(f"""
s_add_u32 s{S_SPIN}, s{S_SPIN}, 1
s_cmp_gt_u32 s{S_SPIN}, 0x100000
s_cbranch_scc1 {Lfail}
s_waitcnt vmcnt(0)
v_bitop3_b32 v{Dr}, v{P}, v{P+4}, s{S_TMP} bitop3:0x42
v_bitop3_b32 v{Dr+1}, v{P+8}, v{P+12}, s{S_TMP} bitop3:0x42
v_bitop3_b32 v{Dr}, v{Dr}, v{Dr+1}, 1 bitop3:0x80
v_cmp_eq_u32 vcc, 0, v{Dr}
s_and_b64 exec, exec, vcc
s_cbranch_scc1 {Lr}
s_mov_b64 exec, -1
""")
    if stamps: a(f"s_add_u32 s101, s101, s{S_SPIN}")
    stp(9)
    a(f"v_mfma_f32_16x16x32_bf16 v[{Dr}:{Dr+3}], v[{SEL}:{SEL+3}], v[{P}:{P+3}], 0")
    for t_ in range(1, 4):
        a(f"v_mfma_f32_16x16x32_bf16 v[{Dr}:{Dr+3}], v[{SEL}:{SEL+3}], v[{P+4*t_}:{P+4*t_+3}], v[{Dr}:{Dr+3}]")
    for r in range(44, 52): a(f"v_mov_b32 v{r}, 0")
    for r in range(4): a(f"v_add_f32_dpp v{Dr+r}, v{Dr+r}, v{Dr+r} row_ror:8 row_mask:0xf bank_mask:0xf")
    a(f"s_branch {Lpub}")
    a.label(Lw2)
    sel()
    a.label(Lr2)
    a(f"""
buffer_load_dwordx4 v[{P}:{P+3}], v{V_PLD}, {ws}, s{S_PLD} offen sc1
s_add_u32 s{S_SPIN}, s{S_SPIN}, 1
s_cmp_gt_u32 s{S_SPIN}, 0x100000
s_cbranch_scc1 {Lfail}
s_waitcnt vmcnt(0)
v_bitop3_b32 v{Dr}, v{P}, v{P+2}, s{S_TMP} bitop3:0x42
v_and_b32 v{Dr}, 1, v{Dr}
v_cmp_eq_u32 vcc, 0, v{Dr}
s_and_b64 exec, exec, vcc
s_cbranch_scc1 {Lr2}
s_mov_b64 exec, -1
""")
    if stamps: a(f"s_add_u32 s101, s101, s{S_SPIN}")
    stp(9)
    a(f"v_mfma_f32_16x16x32_bf16 v[{Dr}:{Dr+3}], v[{SEL}:{SEL+3}], v[{P}:{P+3}], 0")
    for r in range(44, 52): a(f"v_mov_b32 v{r}, 0")
    for sh in (2, 4, 8):
        for r in range(4): a(f"v_add_f32_dpp v{Dr+r}, v{Dr+r}, v{Dr+r} row_ror:{sh} row_mask:0xf bank_mask:0xf")
    a.label(Lpub)
    a(f"""
v_cvt_pk_bf16_f32 v{Dr}, v{Dr}, v{Dr+1}
v_cvt_pk_bf16_f32 v{Dr+1}, v{Dr+2}, v{Dr+3}
v_min_u32 v{Dr}, s{S_POIS}, v{Dr}
s_mov_b64 exec, s[{S_PUB}:{S_PUB+1}]
buffer_store_dwordx2 v[{Dr}:{Dr+1}], v{V_MST}, {ws}, s{S_MNXT} offen{st}
v_mov_b32 v68, -1
v_mov_b32 v69, -1
buffer_store_dwordx2 v[68:69], v{V_MST}, {ws}, s{S_MCUR} offen{st}
s_mov_b64 exec, -1
""")
    a.label(Lnr)
    stp(10)
    for r in range(24): a(f"v_mov_b32 v{ACC+r}, 0")
    a(f"""
s_mov_b32 s{S_TMP}, s{S_MCUR}
s_mov_b32 s{S_MCUR}, s{S_MNXT}
s_mov_b32 s{S_MNXT}, s{S_M3}
s_mov_b32 s{S_M3}, s{S_TMP}
s_xor_b32 s{S_TAG}, s{S_TAG}, 1
s_add_u32 s{S_STEP}, s{S_STEP}, 1
s_branch {Ltop}
""")

def finish(a):
    L = a.label_name("Lfin")
    a(f"""
s_waitcnt vmcnt(0)
s_barrier
s_cmp_lg_u32 s{S_W}, 3
s_cbranch_scc1 {L}
v_mov_b32 v{V_T}, 64
v_mov_b32 v52, s{S_H}
s_mov_b64 exec, 1
global_store_byte v52, v{V_T}, s[{S_DBG}:{S_DBG+1}] offset:{DBG_PROG*4} sc1
s_mov_b64 exec, -1
s_waitcnt vmcnt(0)
""")
    a.label(L)


def make_kv_wait(Lfail):
    def kv_wait(a, ahead):
        Lp = a.label_name("Lkvp"); Ls = a.label_name("Lkvs")
        a(f"""
s_add_u32 s{S_TMP}, s{S_STEP}, {ahead}
s_and_b32 s{S_TMP2}, s{S_TMP}, 3
s_cmp_lg_u32 s{S_TMP2}, 0
s_cbranch_scc1 {Ls}
s_cmp_gt_u32 s{S_TMP}, 63
s_cbranch_scc1 {Ls}
v_mov_b32 v52, s{S_TMP}
s_mov_b32 s{S_SPIN}, 0
""")
        a.label(Lp)
        a(f"""
global_load_dword v53, v52, s[{S_DBG}:{S_DBG+1}] offset:{DBG_KVRDY*4} sc1
s_add_u32 s{S_SPIN}, s{S_SPIN}, 1
s_cmp_gt_u32 s{S_SPIN}, 0x200000
s_cbranch_scc1 {Lfail}
s_waitcnt vmcnt(0)
v_readfirstlane_b32 s{S_TMP2}, v53
s_and_b32 s{S_TMP2}, s{S_TMP2}, 0xffff
s_cmp_lt_u32 s{S_TMP2}, 14
s_cbranch_scc0 {Ls}
s_sleep 8
s_branch {Lp}
""")
        a.label(Ls)
    return kv_wait
```

```python
from asmlib import *
from layout import *
from rec import Ctr, f32bits, S_WS

S_RB, S_W, S_J = 3, 4, 5
S_A = 12
S_B = 16
S_C = 20
S_PQ, S_PK, S_PV = 24, 26, 28
S_DBG = 30
S_CUR, S_NXT = 32, 33
S_IT, S_ITN, S_END = 34, 35, 36
S_T, S_T2, S_T3 = 37, 38, 39
S_WM0 = 40
S_OB = 41
S_CURC, S_NXTC = 42, 43
S_SPIN = 44
S_H, S_HN, S_HE = 45, 46, 47
S_K = 48
V_FR = 1
V_VO = 4
V_ST = 7
V_T = 9
V_FP = 10
FB = 16
ACC0 = 32
XF = 112
NFB = 4

def OUT(n):
    return 256 + 16*n if n < 16 else 80 + 16*(n - 16)

def load_ptr(a, dst, name):
    a(f"s_load_dwordx2 s[{dst}:{dst+1}], s[0:1], {KA[name]}")

def srd(a, d, ptr, nbytes):
    a(f"s_mov_b32 s{d}, s{ptr}\ns_mov_b32 s{d+1}, s{ptr+1}\ns_mov_b32 s{d+2}, {nbytes}\ns_mov_b32 s{d+3}, 0x20000")

def setup(a):
    a(f"""
v_lshrrev_b32 v{V_T}, 6, v0
v_and_b32 v0, 63, v0
v_readfirstlane_b32 s{S_W}, v{V_T}
v_lshrrev_b32 v10, 4, v0
v_bfe_u32 v11, v0, 2, 2
v_and_b32 v12, 3, v0
v_lshrrev_b32 v13, 2, v0
s_lshl_b32 s{S_WM0}, s{S_W}, 10
""")
    a(f"""
v_lshrrev_b32 v14, 1, v10
v_lshlrev_b32 v14, 9, v14
v_lshl_add_u32 v14, v11, 6, v14
v_and_b32 v15, 1, v10
v_lshl_add_u32 v14, v15, 5, v14
v_lshl_add_u32 v{V_FR}, v12, 3, v14
v_add_u32 v{V_FR+1}, 0x10000, v{V_FR}
v_add_u32 v{V_FR+2}, 0x20000, v{V_FR}
""")
    a(f"""
s_lshr_b32 s{S_T}, s{S_W}, 1
s_and_b32 s{S_T2}, s{S_W}, 1
s_lshl_b32 s{S_T3}, s{S_W}, 16
v_and_b32 v14, 7, v13
v_lshlrev_b32 v14, 13, v14
v_lshl_add_u32 v14, v12, 4, v14
v_lshrrev_b32 v15, 5, v0
v_lshl_add_u32 v14, v15, 6, v14
v_add_u32 v{V_VO}, s{S_T3}, v14
""")
    a(f"""
s_mul_i32 s{S_T3}, s{S_W}, {16*9216}
v_mul_u32_u24 v14, 9216, v13
v_lshl_add_u32 v14, v12, 4, v14
v_add_u32 v{V_VO+1}, s{S_T3}, v14
""")
    a(f"""
s_mul_i32 s{S_T3}, s{S_T2}, {16*1152}
s_lshl_b32 s{S_IT}, s{S_T}, 6
s_add_u32 s{S_T3}, s{S_T3}, s{S_IT}
v_bfe_u32 v14, v13, 2, 1
v_lshlrev_b32 v14, 3, v14
v_lshrrev_b32 v15, 3, v13
v_lshl_add_u32 v14, v15, 2, v14
v_and_b32 v15, 3, v13
v_add_u32 v14, v14, v15
v_mul_u32_u24 v14, 1152, v14
v_lshl_add_u32 v14, v12, 4, v14
v_add_u32 v{V_VO+2}, s{S_T3}, v14
""")
    a(f"""
s_lshl_b32 s{S_T}, s{S_RB}, 2
s_add_u32 s{S_T}, s{S_T}, s{S_W}
s_lshl_b32 s{S_T}, s{S_T}, 13
v_and_b32 v14, 31, v0
v_lshrrev_b32 v15, 5, v0
v_lshlrev_b32 v{V_ST}, 5, v14
v_lshl_add_u32 v{V_ST}, v15, 4, v{V_ST}
v_add_u32 v{V_ST}, s{S_T}, v{V_ST}
v_lshl_add_u32 v{V_FP}, v15, 9, v{V_FR}
v_add_u32 v{V_FP+1}, 0x10000, v{V_FP}
""")

def layernorm(a):
    load_ptr(a, S_PQ, 'x')
    a(f"""
s_lshl_b32 s{S_T}, s{S_RB}, 2
s_add_u32 s{S_T}, s{S_T}, s{S_W}
s_mul_i32 s{S_T}, s{S_T}, {32*1152}
v_and_b32 v14, 31, v0
v_mul_u32_u24 v14, 1152, v14
v_lshrrev_b32 v15, 5, v0
v_lshl_add_u32 v14, v15, 4, v14
s_waitcnt lgkmcnt(0)
""")
    srd(a, S_A, S_PQ, 2048*1152)
    for t in range(36):
        a(f"buffer_load_dwordx4 v[{XF+4*t}:{XF+4*t+3}], v14, s[{S_A}:{S_A+3}], s{S_T} offen offset:{32*t}")
    a("v_mov_b32 v16, 0x3f803f80")
    for i in range(4): a(f"v_mov_b32 v{20+i}, 0")
    for t in range(36):
        a(f"s_waitcnt vmcnt({35-t})")
        for i in range(4): a(f"v_dot2c_f32_bf16 v{20+i}, v{XF+4*t+i}, v16")
    a(f"""
s_nop 2
v_add_f32 v20, v20, v21
v_add_f32 v22, v22, v23
v_add_f32 v20, v20, v22
v_mov_b32 v21, v20
v_permlane32_swap_b32 v20, v21
v_add_f32 v20, v20, v21
v_mul_f32 v20, {f32bits(1.0/576):#x}, v20
v_cvt_pk_bf16_f32 v21, v20, v20
v_lshlrev_b32 v22, 16, v21
v_mov_b32 v23, v22
v_sub_f32 v24, v20, v22
v_mov_b64 v[26:27], 0
v_mov_b64 v[28:29], 0
""")
    for d in range(144):
        x = XF + d; t0 = 32 + 2*(d % 4); acc = 26 + 2*(d % 2)
        a(f"""
v_lshlrev_b32 v{t0}, 16, v{x}
v_and_b32 v{t0+1}, 0xffff0000, v{x}
v_pk_add_f32 v[{t0}:{t0+1}], v[{t0}:{t0+1}], v[22:23] neg_lo:[0,1] neg_hi:[0,1]
v_pk_fma_f32 v[{acc}:{acc+1}], v[{t0}:{t0+1}], v[{t0}:{t0+1}], v[{acc}:{acc+1}]
v_cvt_pk_bf16_f32 v{x}, v{t0}, v{t0+1}
""")
    a(f"""
v_pk_add_f32 v[26:27], v[26:27], v[28:29]
v_add_f32 v26, v26, v27
v_mov_b32 v27, v26
v_permlane32_swap_b32 v26, v27
v_add_f32 v26, v26, v27
v_mul_f32 v26, {f32bits(1.0/576):#x}, v26
v_fma_f32 v26, -v24, v24, v26
v_max_f32 v26, 0, v26
v_cvt_pk_bf16_f32 v26, v26, v26
v_lshlrev_b32 v26, 16, v26
v_add_f32 v26, {f32bits(1e-5):#x}, v26
v_cvt_pk_bf16_f32 v26, v26, v26
v_lshlrev_b32 v26, 16, v26
v_sqrt_f32 v26, v26
v_cvt_pk_bf16_f32 v26, v26, v26
v_lshlrev_b32 v26, 16, v26
v_rcp_f32 v26, v26
v_mov_b32 v27, v26
""")
    for d in range(144):
        x = XF + d; t0 = 32 + 2*(d % 4)
        a(f"""
v_lshlrev_b32 v{t0}, 16, v{x}
v_and_b32 v{t0+1}, 0xffff0000, v{x}
v_pk_mul_f32 v[{t0}:{t0+1}], v[{t0}:{t0+1}], v[26:27]
v_cvt_pk_bf16_f32 v{x}, v{t0}, v{t0+1}
""")

STAMPS = False
def wstamp(a, i, st=None):
    if not STAMPS: return
    a(f"""
s_memtime s[98:99]
s_waitcnt lgkmcnt(0)
s_sub_u32 s97, s98, s96
s_add_u32 s{84+i}, s{84+i}, s97
s_mov_b32 s96, s98
""")
def wstamp_init(a):
    if not STAMPS: return
    for i in range(12): a(f"s_mov_b32 s{84+i}, 0")
    a("s_memtime s[96:97]\ns_waitcnt lgkmcnt(0)")
def wstamp_dump(a, slot_sgpr):
    if not STAMPS: return
    a(f"s_lshl_b32 s97, s{slot_sgpr}, 2\ns_add_u32 s97, s97, s{S_W}\ns_lshl_b32 s97, s97, 6\ns_add_u32 s97, s97, {61*MiB}\nv_mov_b32 v32, 0\ns_mov_b64 exec, 1")
    for i in range(12): a(f"v_mov_b32 v{36+i}, s{84+i}")
    for i in range(3): a(f"buffer_store_dwordx4 v[{36+4*i}:{39+4*i}], v32, s[{S_WS}:{S_WS+3}], s97 offen offset:{16*i}")
    a("s_mov_b64 exec, -1\ns_waitcnt vmcnt(0)")

class Stream:
    def __init__(self, a, R, D):
        self.a, self.R, self.D = a, R, D
        self.V = Ctr(a, "vmcnt", 63); self.L = Ctr(a, "lgkmcnt", 15)
    def dma(self, slot, i, srd_, vo, sbase, const, tag):
        a = self.a
        a(f"s_add_u32 m0, s{S_WM0}, {slot*12288 + i*4096}")
        if const: a(f"s_add_u32 s{S_T}, s{sbase}, {const}"); so = S_T
        else: so = sbase
        self.V.issue(tag, f"buffer_load_dwordx4 v{vo}, s[{srd_}:{srd_+3}], s{so} offen lds")
    def rd(self, slot, f, buf, tag, paired=False):
        off = slot*12288 + f*1024
        if paired: off = slot*12288 + (f >> 1)*2048 + (f & 1)*512
        b = (V_FP if paired else V_FR) + (off >> 16); off &= 0xffff
        assert off + 256 < 65536
        d = FB + 4*buf
        self.L.issue(tag, f"ds_read_b64_tr_b16 v[{d}:{d+1}], v{b} offset:{off}")
        self.L.issue(tag, f"ds_read_b64_tr_b16 v[{d+2}:{d+3}], v{b} offset:{off+256}")

def qkv_phase(a, Lexit_fail=None, signal=None):
    ws = f"s[{S_WS}:{S_WS+3}]"
    R, D = 6, 4
    load_ptr(a, S_PQ, 'Wq'); load_ptr(a, S_PK, 'Wk'); load_ptr(a, S_PV, 'Wv')
    a("s_waitcnt lgkmcnt(0)")
    def item_src(c, dsrd, doff):
        a(f"""
s_min_u32 s{S_T2}, s{c}, 191
s_cmp_lt_u32 s{S_T2}, 64
s_cselect_b32 s{dsrd}, s{S_PK}, s{S_PV}
s_cselect_b32 s{dsrd+1}, s{S_PK+1}, s{S_PV+1}
s_cmp_lt_u32 s{S_T2}, 128
s_cselect_b32 s{dsrd}, s{dsrd}, s{S_PQ}
s_cselect_b32 s{dsrd+1}, s{dsrd+1}, s{S_PQ+1}
s_mov_b32 s{dsrd+2}, {W_BYTES}
s_mov_b32 s{dsrd+3}, 0x20000
s_and_b32 s{doff}, s{S_T2}, 63
s_lshl_b32 s{doff}, s{doff}, 7
""")
    S_NKV, S_NQ, S_R1, S_R2, S_I, S_N = S_K, S_K+1, S_K+2, S_K+3, S_K+4, S_K+5
    a(f"""
s_cmp_lt_u32 s{S_J}, 2
s_cselect_b32 s{S_NKV}, 10, 9
s_cmp_lt_u32 s{S_J}, 10
s_cselect_b32 s{S_N}, 14, 13
s_sub_u32 s{S_NQ}, s{S_N}, s{S_NKV}
s_sub_u32 s{S_R1}, s{S_RB}, s{S_NKV}
s_cmp_lt_u32 s{S_RB}, s{S_NKV}
s_cselect_b32 s{S_R1}, s{S_RB}, s{S_R1}
s_mov_b32 s{S_R2}, s{S_RB}
""")
    for _ in range(4):
        a(f"s_sub_u32 s{S_T}, s{S_R2}, s{S_NQ}\ns_cmp_lt_u32 s{S_R2}, s{S_NQ}\ns_cselect_b32 s{S_R2}, s{S_R2}, s{S_T}")
    def calc_c(add, dst):
        a(f"""
s_add_u32 s{S_T}, s{S_I}, {add}
s_add_u32 s{S_T2}, s{S_T}, s{S_R1}
s_sub_u32 s{S_T3}, s{S_T2}, s{S_NKV}
s_cmp_lt_u32 s{S_T2}, s{S_NKV}
s_cselect_b32 s{dst}, s{S_T2}, s{S_T3}
s_add_u32 s{S_T2}, s{S_T}, s{S_R2}
s_sub_u32 s{S_T3}, s{S_T2}, s{S_NQ}
s_cmp_lt_u32 s{S_T2}, s{S_N}
s_cselect_b32 s{S_T2}, s{S_T2}, s{S_T3}
s_cmp_lt_u32 s{S_T}, s{S_NKV}
s_cselect_b32 s{dst}, s{dst}, s{S_T2}
s_mul_i32 s{dst}, s{dst}, 14
s_add_u32 s{dst}, s{dst}, s{S_J}
s_cmp_lt_u32 s{S_T}, s{S_N}
s_cselect_b32 s{dst}, s{dst}, 192
""")
    a(f"s_mov_b32 s{S_I}, 0")
    calc_c(0, S_IT); calc_c(1, S_ITN)
    item_src(S_IT, S_A, S_CUR); item_src(S_ITN, S_B, S_NXT)
    st = Stream(a, R, D)
    def issue(p):
        pp = p % 6
        sr_, sb = (S_A, S_CUR) if p < 6 else (S_B, S_NXT)
        for i in range(3):
            st.dma(pp % R, i, sr_, V_VO, sb, (6*pp + 2*i)*16*8192, ("d", p))
    for p in range(D): issue(p)
    a("s_waitcnt vmcnt(0)\ns_barrier")
    wstamp(a, 1)
    st.V.q = []
    for f in range(NFB - 1): st.rd(0, f, f, ("f", f), True)
    pre_L = list(st.L.q)
    Lloop = a.label_name("Lqkv"); Lv = a.label_name("Lqkv_v"); Lnext = a.label_name("Lqkv_n"); Ldone = a.label_name("Lqkv_d")
    def body(isv, Vq):
        st.V.q = list(Vq); st.L.q = list(pre_L)
        for p in range(6):
            wstamp(a, 2)
            st.V.wait(("d", p + 1))
            wstamp(a, 3)
            a("s_barrier")
            wstamp(a, 4)
            if p == 3 and signal:
                Lns = a.label_name("Lnosig")
                a(f"s_cmp_lg_u32 s{S_I}, s{S_NKV}\ns_cbranch_scc1 {Lns}")
                signal(a, 1)
                a.label(Lns)
            issue(p + D)
            for f in range(12):
                phi = 12*p + f; t = phi >> 1; nt = phi & 1
                nx = phi + NFB - 1
                st.rd((nx // 12) % R, nx % 12, nx % NFB, ("f", nx % 72 if nx >= 72 else nx), True)
                st.L.wait(("f", phi))
                W = f"v[{FB+4*(phi%NFB)}:{FB+4*(phi%NFB)+3}]"; X = f"v[{XF+4*t}:{XF+4*t+3}]"
                acc = f"v[{ACC0+16*nt}:{ACC0+16*nt+15}]"
                A_, B_ = (X, W) if isv else (W, X)
                a(f"v_mfma_f32_32x32x16_bf16 {acc}, {A_}, {B_}, {acc if t else 0}")
        wstamp(a, 2)
        a(f"""
s_and_b32 s{S_T2}, s{S_IT}, 63
s_lshr_b32 s{S_OB}, s{S_T2}, 1
s_lshl_b32 s{S_OB}, s{S_OB}, 19
s_and_b32 s{S_T2}, s{S_T2}, 1
s_lshl_b32 s{S_T2}, s{S_T2}, 12
s_add_u32 s{S_OB}, s{S_OB}, s{S_T2}
""")
        if isv: a(f"s_add_u32 s{S_OB}, s{S_OB}, {WS_VT}")
        else: a(f"s_cmp_lt_u32 s{S_IT}, 64\ns_cselect_b32 s{S_T2}, {WS_K}, {WS_Q}\ns_add_u32 s{S_OB}, s{S_OB}, s{S_T2}")
        for nt in range(2):
            for u in range(2):
                b = ACC0 + 16*nt + 8*u; d = 64 + 4*(2*nt + u)
                for i in range(4): a(f"v_cvt_pk_bf16_f32 v{d+i}, v{b+2*i}, v{b+2*i+1}")
                st.V.issue("st", f"buffer_store_dwordx4 v[{d}:{d+3}], v{V_ST}, {ws}, s{S_OB} offen offset:{(2*nt+u)*1024} sc1")
        wstamp(a, 5)
        return [(t_[0], t_[1] - 6) if isinstance(t_, tuple) and t_[0] == "d" else t_ for t_ in st.V.q]
    real = st.a
    scratch = Asm(); st.a = st.V.a = st.L.a = scratch
    g = globals()
    a_save = a
    def with_asm(x):
        nonlocal a
        a = x; st.a = st.V.a = st.L.a = x
    with_asm(scratch); q1 = body(False, []); q2 = body(False, q1); assert q1 == q2, (q1, q2)
    with_asm(a_save)
    a.label(Lloop)
    a(f"s_cmp_lt_u32 s{S_IT}, 64\ns_cbranch_scc1 {Lloop}_k\ns_cmp_lt_u32 s{S_IT}, 128\ns_cbranch_scc1 {Lv}")
    a.label(Lloop + "_k")
    body(False, q1)
    a(f"s_branch {Lnext}")
    a.label(Lv)
    body(True, q1)
    a.label(Lnext)
    a(f"""
s_mov_b32 s{S_IT}, s{S_ITN}
s_add_u32 s{S_I}, s{S_I}, 1
s_mov_b32 s{S_A}, s{S_B}
s_mov_b32 s{S_A+1}, s{S_B+1}
s_mov_b32 s{S_CUR}, s{S_NXT}
""")
    calc_c(1, S_ITN)
    item_src(S_ITN, S_B, S_NXT)
    a(f"s_cmp_lt_u32 s{S_IT}, 192\ns_cbranch_scc1 {Lloop}")
    a("s_waitcnt vmcnt(0) lgkmcnt(0)\ns_barrier")
    if signal: signal(a, 0x10000)

GA, UA, GL, HF = 32, 48, 64, 72
V_C0 = 8
GELU_C0 = -2.0 * 0.7978845608028654 * 1.4426950408889634
GELU_C1 = GELU_C0 * 0.044715
WG_BYTES = 576 * 4608 * 2

def work_split(a):
    a(f"""
s_mul_i32 s{S_IT}, s{S_J}, 9
s_add_u32 s{S_END}, s{S_IT}, 9
s_mul_i32 s{S_H}, s{S_J}, 3
s_add_u32 s{S_HE}, s{S_H}, 3
s_cmp_lt_u32 s{S_J}, 4
s_cbranch_scc1 Lws_done
s_sub_u32 s{S_T}, s{S_J}, 4
s_mul_i32 s{S_IT}, s{S_T}, 11
s_add_u32 s{S_IT}, s{S_IT}, 36
s_add_u32 s{S_END}, s{S_IT}, 11
s_lshl_b32 s{S_H}, s{S_T}, 1
s_add_u32 s{S_H}, s{S_H}, 12
s_add_u32 s{S_HE}, s{S_H}, 2
s_cmp_lt_u32 s{S_J}, 12
s_cbranch_scc1 Lws_done
s_sub_u32 s{S_T}, s{S_J}, 12
s_mul_i32 s{S_IT}, s{S_T}, 10
s_add_u32 s{S_IT}, s{S_IT}, 124
s_add_u32 s{S_END}, s{S_IT}, 10
Lws_done:
""")

def gelu_ops(e0, e1):
    ops = []
    S_C1 = S_K + 8
    for e in range(e0, e1, 2):
        x0, x1 = GA + e, GA + e + 1; t0, t1 = 12 + (e & 2), 13 + (e & 2)
        ops += [f"v_mul_f32 v{t0}, v{x0}, v{x0}", f"v_mul_f32 v{t1}, v{x1}, v{x1}",
                f"v_fma_f32 v{t0}, v{t0}, s{S_C1}, v{V_C0}", f"v_fma_f32 v{t1}, v{t1}, s{S_C1}, v{V_C0}",
                f"v_mul_f32 v{t0}, v{t0}, v{x0}", f"v_mul_f32 v{t1}, v{t1}, v{x1}",
                f"v_exp_f32 v{t0}, v{t0}", f"v_exp_f32 v{t1}, v{t1}",
                f"v_add_f32 v{t0}, 1.0, v{t0}", f"v_add_f32 v{t1}, 1.0, v{t1}",
                f"v_rcp_f32 v{t0}, v{t0}", f"v_rcp_f32 v{t1}, v{t1}",
                f"v_mul_f32 v{t0}, v{t0}, v{x0}", f"v_mul_f32 v{t1}, v{t1}, v{x1}",
                f"v_cvt_pk_bf16_f32 v{GL + e//2}, v{t0}, v{t1}"]
    return ops

def h_ops():
    ops = []
    for e in range(0, 16, 2):
        t0, t1 = 12 + (e & 2), 13 + (e & 2)
        ops += [f"v_lshlrev_b32 v{t0}, 16, v{GL + e//2}", f"v_and_b32 v{t1}, 0xffff0000, v{GL + e//2}",
                f"v_mul_f32 v{t0}, v{t0}, v{UA+e}", f"v_mul_f32 v{t1}, v{t1}, v{UA+e+1}",
                f"v_cvt_pk_bf16_f32 v{HF + e//2}, v{t0}, v{t1}"]
    return ops

def zero_out_acc(a):
    for n in range(16):
        for r in range(16): a(f"v_accvgpr_write_b32 a{16*n + r}, 0")
    for r in range(80, 112, 2): a(f"v_mov_b64 v[{r}:{r+1}], 0")

def ffn_phase(a):
    R, D = 9, 7
    S_C1 = S_K + 8; S_FIRST = S_K + 9
    load_ptr(a, S_PQ, 'Wg'); load_ptr(a, S_PK, 'Wu'); load_ptr(a, S_PV, 'Wd')
    a(f"s_mov_b32 s{S_C1}, {f32bits(GELU_C1):#x}\nv_mov_b32 v{V_C0}, {f32bits(GELU_C0):#x}\ns_mov_b32 s{S_FIRST}, s{S_IT}\ns_waitcnt lgkmcnt(0)")
    srd(a, S_A, S_PQ, WG_BYTES); srd(a, S_B, S_PK, WG_BYTES); srd(a, S_C, S_PV, WG_BYTES)
    OOB = 0x7f000000
    def bases():
        a(f"""
s_lshl_b32 s{S_CUR}, s{S_IT}, 6
s_cmp_lt_u32 s{S_IT}, s{S_END}
s_cselect_b32 s{S_CUR}, s{S_CUR}, {OOB}
s_add_u32 s{S_T}, s{S_IT}, 1
s_lshl_b32 s{S_NXT}, s{S_T}, 6
s_cmp_lt_u32 s{S_T}, s{S_END}
s_cselect_b32 s{S_NXT}, s{S_NXT}, {OOB}
s_mul_i32 s{S_NXTC}, s{S_IT}, {32*1152}
s_sub_u32 s{S_CURC}, s{S_NXTC}, {32*1152}
s_cmp_lt_u32 s{S_IT}, s{S_END}
s_cselect_b32 s{S_NXTC}, s{S_NXTC}, {OOB}
s_cmp_gt_u32 s{S_IT}, s{S_FIRST}
s_cselect_b32 s{S_CURC}, s{S_CURC}, {OOB}
""")
    bases()
    st = Stream(a, R, D)
    def issue(p):
        pp = p % 9; nxt = p >= 9; grp, q = divmod(pp, 3)
        for i in range(3):
            if grp < 2:
                st.dma(pp, i, S_A if grp == 0 else S_B, V_VO + 1, S_NXT if nxt else S_CUR, (12*q + 4*i)*16*9216, ("d", p))
            else:
                st.dma(pp, i, S_C, V_VO + 2, S_NXTC if nxt else S_CURC, (6*q + 2*i)*64, ("d", p))
    for p in range(D): issue(p)
    zero_out_acc(a)
    a("s_waitcnt vmcnt(0)\ns_barrier")
    st.V.q = []
    for f in range(NFB - 1): st.rd(0, f, f, ("f", f))
    pre_L = list(st.L.q)
    def group(grp, full, valu):
        valu = list(valu)
        per = -(-len(valu) // 34) if full else 0
        for q in range(3):
            p = 3*grp + q
            st.V.wait(("d", p + 1))
            a("s_barrier")
            issue(p + D)
            for f in range(12):
                phi = 12*p + f; g = phi - 36*grp
                nx = phi + NFB - 1
                if not full and g < 36 - (NFB - 1): continue
                if not full and g == 36 - (NFB - 1):
                    st.L.wait_all()
                    for v in valu: a(v)
                    valu = []
                st.rd((nx // 12) % R, nx % 12, nx % NFB, ("f", nx % 108))
                if not full: continue
                st.L.wait(("f", phi))
                Wf = f"v[{FB+4*(phi%NFB)}:{FB+4*(phi%NFB)+3}]"
                if grp < 2:
                    acc = f"v[{(GA, UA)[grp]}:{(GA, UA)[grp]+15}]"
                    a(f"v_mfma_f32_32x32x16_bf16 {acc}, {Wf}, v[{XF+4*g}:{XF+4*g+3}], {acc if g else 0}")
                else:
                    n, u2 = g >> 1, g & 1
                    acc = R_(OUT(n), 16)
                    a(f"v_mfma_f32_32x32x16_bf16 {acc}, {Wf}, v[{HF+4*u2}:{HF+4*u2+3}], {acc}")
                if g >= 1:
                    for _ in range(per):
                        if valu: a(valu.pop(0))
        for v in valu: a(v)
    def rename(q): return [(t[0], t[1] - 9) for t in q]
    a_save = a
    def with_asm(x):
        nonlocal a
        a = x; st.a = st.V.a = st.L.a = x
    payload = [h_ops(), gelu_ops(0, 8), gelu_ops(8, 16)]
    with_asm(Asm())
    st.V.q = []; qs = None
    for it in range(2):
        qs = []
        for grp in range(3):
            qs.append(list(st.V.q)); st.L.q = [("f", 36*grp + k) for k in range(NFB - 1) for _ in range(2)]
            group(grp, True, payload[grp])
        st.V.q = rename(st.V.q)
    with_asm(a_save)
    Lloop = a.label_name("Lffn")
    a.label(Lloop)
    for grp in range(3):
        Ll = a.label_name("Lffn_l"); Le = a.label_name("Lffn_e")
        if grp < 2: a(f"s_cmp_lt_u32 s{S_IT}, s{S_END}\ns_cbranch_scc0 {Ll}")
        else: a(f"s_cmp_gt_u32 s{S_IT}, s{S_FIRST}\ns_cbranch_scc0 {Ll}")
        for full in (True, False):
            if not full: a.label(Ll)
            st.V.q = list(qs[grp]); st.L.q = [("f", 36*grp + k) for k in range(NFB - 1) for _ in range(2)]
            group(grp, full, payload[grp] if (full or grp != 1) else [])
            if full: a(f"s_branch {Le}")
        a.label(Le)
    a(f"s_add_u32 s{S_IT}, s{S_IT}, 1")
    bases()
    a(f"s_cmp_le_u32 s{S_IT}, s{S_END}\ns_cbranch_scc1 {Lloop}")
    a("s_waitcnt vmcnt(0) lgkmcnt(0)\ns_barrier")

R_ = R

QF, KF, KMF, VF, VMF = 112, 144, 176, 208, 240
SX, SM, PX, PM = 32, 48, 64, 72
OT, OB = 112, 176
S_MASK = 64
SCALE_LOG2E = 0.08838834764831845 * 1.4426950408889634

def attn_phase(a, wait_head=None):
    ws = f"s[{S_WS}:{S_WS+3}]"
    R, D = 12, 10
    S_SC = S_K + 8; S_SEG = S_K + 9; S_O1, S_O2 = S_K + 10, S_K + 11
    load_ptr(a, S_PQ, 'Wo')
    a(f"""
s_mov_b32 s{S_SC}, {f32bits(SCALE_LOG2E):#x}
s_lshl_b32 s{S_SEG}, s{S_RB}, 2
s_add_u32 s{S_SEG}, s{S_SEG}, s{S_W}
v_and_b32 v12, 31, v0
v_lshrrev_b32 v13, 5, v0
v_lshlrev_b32 v14, 2, v13
v_sub_u32 v14, v12, v14
""")
    for r in range(16):
        a(f"v_cmp_ge_i32 s[{S_MASK+2*r}:{S_MASK+2*r+1}], v14, {8*(r>>2) + (r&3)}")
    a(f"""
v_and_b32 v10, 7, v0
v_lshlrev_b32 v10, 5, v10
v_lshl_add_u32 v10, v13, 4, v10
v_lshlrev_b32 v11, 4, v12
v_lshl_add_u32 v11, v13, 3, v11
s_waitcnt lgkmcnt(0)
""")
    srd(a, S_A, S_PQ, W_BYTES)
    OOB = 0x7f000000
    def bases():
        a(f"""
s_mul_i32 s{S_CUR}, s{S_H}, 147456
s_add_u32 s{S_NXT}, s{S_CUR}, 147456
s_add_u32 s{S_T}, s{S_H}, 1
s_cmp_lt_u32 s{S_T}, s{S_HE}
s_cselect_b32 s{S_NXT}, s{S_NXT}, {OOB}
""")
    bases()
    st = Stream(a, R, D)
    def issue(p):
        pp = p % 12; te, q = divmod(pp, 3)
        for i in range(3):
            st.dma(pp, i, S_A, V_VO + 2, S_NXT if p >= 12 else S_CUR, te*32*1152 + (6*q + 2*i)*64, ("d", p))
    for p in range(D): issue(p)
    Lloop = a.label_name("Lattn")
    a.label(Lloop)
    if wait_head: wait_head(a)
    a(f"""
s_lshl_b32 s{S_O1}, s{S_H}, 19
s_add_u32 s{S_O2}, s{S_O1}, {WS_K}
""")
    for s_ in range(8):
        if s_ == 4: a(f"s_add_u32 s{S_O1}, s{S_O1}, 4096\ns_add_u32 s{S_O2}, s{S_O2}, 4096")
        a(f"buffer_load_dwordx4 v[{QF+4*s_}:{QF+4*s_+3}], v{V_ST}, {ws}, s{S_O1} offen offset:{(s_&3)*1024} sc1")
        a(f"buffer_load_dwordx4 v[{KF+4*s_}:{KF+4*s_+3}], v{V_ST}, {ws}, s{S_O2} offen offset:{(s_&3)*1024} sc1")
    a(f"""
s_lshl_b32 s{S_O1}, s{S_SEG}, 5
s_add_u32 s{S_O1}, s{S_O1}, s{S_H}
s_lshl_b32 s{S_O1}, s{S_O1}, 11
s_add_u32 s{S_O2}, s{S_O1}, {WS_VM}
s_add_u32 s{S_O1}, s{S_O1}, {WS_KM}
""")
    for s_ in range(8):
        a(f"buffer_load_dwordx4 v[{KMF+4*s_}:{KMF+4*s_+3}], v10, {ws}, s{S_O1} offen offset:{s_*256} sc1")
    for te in range(4):
        a(f"buffer_load_dwordx2 v[{VMF+4*te}:{VMF+4*te+1}], v11, {ws}, s{S_O2} offen offset:{te*512} sc1")
        a(f"v_mov_b64 v[{VMF+4*te+2}:{VMF+4*te+3}], 0")
    a(f"s_lshl_b32 s{S_O1}, s{S_H}, 19\ns_add_u32 s{S_O1}, s{S_O1}, {WS_VT}")
    for s_ in range(8):
        if s_ == 4: a(f"s_add_u32 s{S_O1}, s{S_O1}, 4096")
        a(f"buffer_load_dwordx4 v[{VF+4*s_}:{VF+4*s_+3}], v{V_ST}, {ws}, s{S_O1} offen offset:{(s_&3)*1024} sc1")
    a("s_waitcnt vmcnt(20)")
    for s_ in range(8):
        a(f"v_mfma_f32_32x32x16_bf16 v[{SX}:{SX+15}], v[{KF+4*s_}:{KF+4*s_+3}], v[{QF+4*s_}:{QF+4*s_+3}], {f'v[{SX}:{SX+15}]' if s_ else 0}")
    a("s_waitcnt vmcnt(12)")
    for s_ in range(8):
        a(f"v_mfma_f32_32x32x16_bf16 v[{SM}:{SM+15}], v[{KMF+4*s_}:{KMF+4*s_+3}], v[{QF+4*s_}:{QF+4*s_+3}], {f'v[{SM}:{SM+15}]' if s_ else 0}")
    a("v_mov_b32 v12, 0xff800000")
    for r in range(16):
        a(f"v_cndmask_b32 v{SX+r}, v12, v{SX+r}, s[{S_MASK+2*r}:{S_MASK+2*r+1}]")
    vals = [SX + r for r in range(16)] + [SM + r for r in range(4)]
    a(f"v_max3_f32 v12, v{vals[0]}, v{vals[1]}, v{vals[2]}")
    for i in range(3, 19, 2): a(f"v_max3_f32 v12, v12, v{vals[i]}, v{vals[i+1]}")
    a(f"""
v_max_f32 v12, v12, v{vals[19]}
v_mov_b32 v13, v12
v_permlane32_swap_b32 v12, v13
v_max_f32 v12, v12, v13
v_mul_f32 v12, s{S_SC}, v12
""")
    for v in vals: a(f"v_fma_f32 v{v}, v{v}, s{S_SC}, -v12")
    for v in vals: a(f"v_exp_f32 v{v}, v{v}")
    a(f"v_add_f32 v12, v{vals[0]}, v{vals[1]}\nv_add_f32 v13, v{vals[2]}, v{vals[3]}")
    for i in range(4, 20, 2): a(f"v_add_f32 v12, v12, v{vals[i]}\nv_add_f32 v13, v13, v{vals[i+1]}")
    a(f"""
v_add_f32 v12, v12, v13
v_mov_b32 v13, v12
v_permlane32_swap_b32 v12, v13
v_add_f32 v12, v12, v13
v_rcp_f32 v12, v12
""")
    for v in vals: a(f"v_mul_f32 v{v}, v{v}, v12")
    for i in range(8): a(f"v_cvt_pk_bf16_f32 v{PX+i}, v{SX+2*i}, v{SX+2*i+1}")
    a(f"v_cvt_pk_bf16_f32 v{PM}, v{SM}, v{SM+1}\nv_cvt_pk_bf16_f32 v{PM+1}, v{SM+2}, v{SM+3}\nv_mov_b64 v[{PM+2}:{PM+3}], 0")
    a("s_waitcnt vmcnt(0)")
    for te in range(4):
        o = f"v[{OT+16*te}:{OT+16*te+15}]"
        a(f"v_mfma_f32_32x32x16_bf16 {o}, v[{VMF+4*te}:{VMF+4*te+3}], v[{PM}:{PM+3}], 0")
        a(f"v_mfma_f32_32x32x16_bf16 {o}, v[{VF+8*te}:{VF+8*te+3}], v[{PX}:{PX+3}], {o}")
        a(f"v_mfma_f32_32x32x16_bf16 {o}, v[{VF+8*te+4}:{VF+8*te+7}], v[{PX+4}:{PX+7}], {o}")
    a("s_barrier")
    st.V.q = []; st.L.q = []
    for f in range(NFB - 1): st.rd(0, f, f, ("f", f))
    for te in range(4):
        for i in range(8): a(f"v_cvt_pk_bf16_f32 v{OB+8*te+i}, v{OT+16*te+2*i}, v{OT+16*te+2*i+1}")
    for p in range(12):
        te, q = divmod(p, 3)
        if p:
            st.V.wait(("d", p + 1))
            a("s_barrier")
        issue(p + D)
        for f in range(12):
            phi = 12*p + f; g = phi - 36*te
            nx = phi + NFB - 1
            if nx < 144: st.rd(nx // 12, nx % 12, nx % NFB, ("f", nx))
            st.L.wait(("f", phi))
            n, u2 = g >> 1, g & 1
            acc = R_(OUT(n), 16)
            a(f"v_mfma_f32_32x32x16_bf16 {acc}, v[{FB+4*(phi%NFB)}:{FB+4*(phi%NFB)+3}], v[{OB+8*te+4*u2}:{OB+8*te+4*u2+3}], {acc}")
    a(f"s_add_u32 s{S_H}, s{S_H}, 1")
    bases()
    a(f"s_cmp_lt_u32 s{S_H}, s{S_HE}\ns_cbranch_scc1 {Lloop}")

def store_partial(a, flags=""):
    ws = f"s[{S_WS}:{S_WS+3}]"
    a(f"""
s_mul_i32 s{S_T}, s{S_RB}, 14
s_add_u32 s{S_T}, s{S_T}, s{S_J}
s_lshl_b32 s{S_T}, s{S_T}, 2
s_add_u32 s{S_T}, s{S_T}, s{S_W}
s_mul_i32 s{S_T}, s{S_T}, 73728
s_add_u32 s{S_T}, s{S_T}, {WS_OUTP}
v_lshlrev_b32 v12, 4, v0
s_nop 7
""")
    for n in range(18):
        for q in range(4):
            a(f"buffer_store_dwordx4 {R_(OUT(n) + 4*q, 4)}, v12, {ws}, s{S_T} offen offset:{q*1024}{flags}")
        a(f"s_add_u32 s{S_T}, s{S_T}, 4096")


def signal_rb(a, val):
    L = a.label_name("Lsig")
    a(f"""
s_cmp_lg_u32 s{S_W}, 0
s_cbranch_scc1 {L}
s_lshl_b32 s{S_T}, s{S_RB}, 2
v_mov_b32 v12, s{S_T}
v_mov_b32 v13, {val}
s_mov_b64 exec, 1
global_atomic_add v12, v13, s[{S_DBG}:{S_DBG+1}] offset:{DBG_KVRDY*4} sc1
s_mov_b64 exec, -1
""")
    a.label(L)

def make_wait_head(Lfail):
    def wait_head(a):
        S_SEG = S_K + 9
        L1 = a.label_name("Lwh1"); L2 = a.label_name("Lwh2"); L3 = a.label_name("Lwh3")
        a(f"s_lshl_b32 s{S_T}, s{S_RB}, 2\nv_mov_b32 v12, s{S_T}\nv_mov_b32 v13, s{S_H}\ns_mov_b32 s{S_SPIN}, 0")
        a.label(L1)
        a(f"""
global_load_dword v14, v12, s[{S_DBG}:{S_DBG+1}] offset:{DBG_KVRDY*4} sc1
global_load_ubyte v15, v13, s[{S_DBG}:{S_DBG+1}] offset:{DBG_PROG*4} sc1
s_add_u32 s{S_SPIN}, s{S_SPIN}, 1
s_cmp_gt_u32 s{S_SPIN}, 0x100000
s_cbranch_scc1 {Lfail}
s_waitcnt vmcnt(0)
v_readfirstlane_b32 s{S_T}, v14
v_readfirstlane_b32 s{S_T2}, v15
s_cmp_lg_u32 s{S_T}, {14 + (14 << 16)}
s_cbranch_scc1 {L2}
s_cmp_gt_u32 s{S_T2}, s{S_SEG}
s_cbranch_scc1 {L3}
""")
        a.label(L2)
        a(f"s_sleep 16\ns_branch {L1}")
        a.label(L3)
    return wait_head
```

```python
import sys
from asmlib import *
from layout import *
import worker as W, rec, reduce as RD
from rec import S_WS
from entry import *
HDR = open("parallel_sum__memory_aug_recurrent_mem_tr__geglu_ffn__prompt.s.ref").read().split("; Override launch")[0]

def worker_ids(a):
    a(f"""
s_and_b32 s{W.S_RB}, s{S_TKT}, 15
s_lshr_b32 s{W.S_J}, s{S_TKT}, 4
s_lshl_b32 s77, s{S_GRP}, 1
s_add_u32 s{W.S_J}, s{W.S_J}, s77
""")
def chk(a):
    for b in a.check_branches(): print("HAZARD", b)
    return a.text()
def k_main():
    a = Asm(); a.uid = 1000
    entry(a, "Lexit")
    a(f"s_cmp_eq_u32 s{S_GRP}, 7\ns_cbranch_scc1 Lrec")
    worker_ids(a)
    a(f"s_mov_b32 s{W.S_DBG}, s{S_DBGP}\ns_mov_b32 s{W.S_DBG+1}, s{S_DBGP+1}")
    W.setup(a); W.layernorm(a); W.qkv_phase(a, signal=W.signal_rb)
    W.work_split(a); W.ffn_phase(a); W.attn_phase(a, W.make_wait_head("Lexit")); W.store_partial(a)
    a("s_waitcnt vmcnt(0)\ns_endpgm")
    a.label("Lrec")
    a(f"""
s_mov_b32 s{rec.S_H}, s{S_TKT}
s_mov_b32 s{rec.S_DBG}, s{S_DBGP}
s_mov_b32 s{rec.S_DBG+1}, s{S_DBGP+1}
s_load_dwordx2 s[{rec.S_PTR}:{rec.S_PTR+1}], s[0:1], {KA['mem0']}
s_load_dwordx2 s[{rec.S_PTR+2}:{rec.S_PTR+3}], s[0:1], {KA['Wq']}
s_load_dwordx2 s[{rec.S_PTR+4}:{rec.S_PTR+5}], s[0:1], {KA['Wk']}
s_load_dwordx2 s[{rec.S_PTR+6}:{rec.S_PTR+7}], s[0:1], {KA['Wv']}
s_load_dwordx2 s[{rec.S_PTR+8}:{rec.S_PTR+9}], s[0:1], {KA['Wo']}
s_waitcnt lgkmcnt(0)
""")
    kvw = rec.make_kv_wait("Lexit")
    rec.setup_consts(a); rec.prologue(a)
    rec.handshake(a, "Lr_fast", "Lr_slow", "Lexit")
    a.label("Lr_fast"); rec.step_loop(a, True, "Lr_done", "Lexit", kv_wait=kvw)
    a.label("Lr_slow"); rec.step_loop(a, False, "Lr_done", "Lexit", kv_wait=kvw)
    a.label("Lr_done"); rec.finish(a)
    a("Lexit:\ns_endpgm"); return chk(a)
rt, rv = RD.reduce_kernel()
s = HDR
s += "; @launch kernel=main_kernel grid=(256,1,1) block=(256,1,1) lds=163840\n"
s += "; @launch kernel=red_kernel grid=(288,1,1) block=(256,1,1) lds=0\n"
s += '.amdgcn_target "amdgcn-amd-amdhsa--gfx950"\n.text\n'
for n, t in (("main_kernel", k_main()), ("red_kernel", rt)):
    s += kernel_header(n) + t
s += '.section .rodata,"a"\n'
for n in ("main_kernel",): s += kernel_desc(n, 512, 102, 256)
s += kernel_desc("red_kernel", rv, 32)
open("parallel_sum__memory_aug_recurrent_mem_tr__geglu_ffn__prompt.s", "w").write(s)
print(len(s), "bytes")
```

```python
MiB = 1 << 20
KA = dict(x=0, mem0=8, Wq=16, Wk=24, Wv=32, Wo=40, seg=48, Bx=56, Wg=64, Wu=72, Wd=80, out=88, dbg=96, ws=104)
WS_Q = 0
WS_K = 16 * MiB
WS_VT = 32 * MiB
WS_KM = 48 * MiB
WS_VM = 52 * MiB
WS_PART = 56 * MiB
WS_MEMT = 57 * MiB
MEMT_STRIDE = 16384
WS_OUTP = 64 * MiB
W_BYTES = 576 * 4096 * 2
DBG_TICKET = 0
DBG_X0 = 8
DBG_READY = 9
DBG_XMASK = 10
DBG_PROG = 16
DBG_KVRDY = 32
DBG_QHEAD = 12
DBG_DONE = 48
RB_MID, RB_FINE = 12, 14
PART_BYTES = 4 * 73728
def n_att_groups(rb): return 32 if rb >= RB_FINE else (16 if rb >= RB_MID else 0)
def n_parts(rb): return 14 + n_att_groups(rb)
def part_base(rb): return WS_OUTP + sum(n_parts(r) for r in range(rb)) * PART_BYTES
def done_target(rb): return 14 + 3 * n_att_groups(rb)
assert part_base(16) <= 256 * MiB
WS_FLAGS = 58 * MiB
WS_CNT = 58 * MiB + 65536
def queue_groups():
    g = []
    for rb in range(16):
        ng = n_att_groups(rb)
        if ng:
            G = 32 // ng
            g.append((4*rb + 1, WS_CNT + (32 + rb - RB_MID) * 128, 0, [(rb << 24) | ((k*G) << 16) | (G << 8) | t | ((14 + k) << 2) for k in range(ng) for t in range(3)]))
    for rb in range(16):
        gate = min(64, 4*rb + 4 + {0: 5, 16: 2, 32: 1}[n_att_groups(rb)])
        if rb >= RB_FINE: it = [(1 << 31) | (rb << 24) | (nt << 16) | (q << 8) | 1 for nt in range(18) for q in range(4)]
        else: it = [(1 << 31) | (rb << 24) | (nt << 16) | (q << 8) | 2 for nt in range(18) for q in (0, 2)]
        g.append((gate, WS_CNT + (16 + rb) * 128, 0, it))
    g.sort(key=lambda x: x[0])
    return g
def queue_items(): return [x for g in queue_groups() for x in g[3]]
```

```python
from asmlib import *
from layout import *
import struct

L_WV = 0
L_MEMT = 147456
L_XT = 156672
L_SP = 158720
L_END = 163840
assert L_SP + 4 * 1280 == L_END

V_IDX, V_ARD, V_WV, V_XTW, V_XTR, V_SPR, V_SP0R, V_OW, V_OR, V_PST, V_PLD, V_MST, V_VX, V_JUNK, V_T = range(1, 16)
VX1 = 16
VX0 = 76
KX = 20
ACC = 28
AB = 52

def WQ(c, t): return 256 + (c * 2 + t) * 8
def WK(c, t):
    i = c * 2 + t
    return 256 + 144 + i * 8 if i < 14 else 80 + (i - 14) * 8
def WO(n, ks): return 112 + (n * 2 + ks) * 8

S_H, S_W = 3, 4
S_WS = 8
S_WT = 12
S_PTR = 16
S_DBG = 26
S_PST, S_PLD, S_PST1, S_PST2 = 28, 29, 30, 31
S_L8 = 32
S_HF8 = 34
S_XK = 36
S_MCUR, S_MNXT, S_M3 = 37, 38, 39
S_KX, S_VX, S_KM, S_VM = 40, 41, 42, 43
S_TAG, S_STEP, S_TMP, S_TMP2 = 44, 45, 46, 47
S_W1280, S_SP0K, S_MLK, S_FL = 48, 49, 50, 51
S_PUB = 54
S_SC = 56
S_XCC = 57
S_MG = 58
S_PF, S_PF2 = 59, 60
S_T0 = 62
S_SPIN = 66
S_POIS = 67

SCALE_LOG2E = 0.08838834764831845 * 1.4426950408889634
def f32bits(x): return struct.unpack("<I", struct.pack("<f", x))[0]

def gamma_base(g):
    w, rho = divmod(g, 9)
    if rho < 8: return 144*w + 32*(rho >> 1) + 8*(rho & 1), 16
    return 144*w + 128, 8

class Ctr:
    def __init__(self, a, name, cap): self.a, self.name, self.cap, self.q = a, name, cap, []
    def issue(self, tag, text):
        self.a(text); self.q.append(tag)
    def wait(self, tag):
        if tag not in self.q: return
        last = max(i for i, t in enumerate(self.q) if t == tag)
        n = len(self.q) - 1 - last
        assert n <= self.cap, (tag, n)
        self.a(f"s_waitcnt {self.name}({n})"); self.q = self.q[last+1:]
    def wait_all(self):
        self.a(f"s_waitcnt {self.name}(0)"); self.q = []

def setup_consts(a):
    a(f"""
v_lshrrev_b32 v{V_T}, 6, v0
v_and_b32 v0, 63, v0
v_readfirstlane_b32 s{S_W}, v{V_T}
v_and_b32 v40, 15, v0
v_lshrrev_b32 v41, 4, v0
v_bfe_u32 v42, v0, 2, 2
v_and_b32 v43, 3, v0
v_and_b32 v44, 7, v0
v_bfe_u32 v45, v0, 3, 1
""")
    a(f"""
v_mov_b32 v46, 0x4444
v_mov_b32 v47, 0xeeee
v_and_b32 v48, 2, v0
v_cmp_eq_u32 vcc, 0, v48
v_cndmask_b32 v{V_IDX}, v47, v46, vcc
""")
    a(f"""
v_lshrrev_b32 v46, 1, v41
v_lshlrev_b32 v46, 4, v46
v_and_b32 v47, 1, v41
v_lshl_add_u32 v46, v47, 2, v46
v_add_u32 v46, v46, v42
v_lshlrev_b32 v46, 5, v46
v_lshl_add_u32 v46, v43, 3, v46
v_add_u32 v{V_ARD}, {L_MEMT}, v46
s_mul_i32 s{S_TMP}, s{S_W}, 36864
v_lshlrev_b32 v46, 4, v0
v_add_u32 v{V_WV}, s{S_TMP}, v46
""")
    a(f"""
s_lshl_b32 s{S_TMP}, s{S_W}, 9
s_add_u32 s{S_TMP}, s{S_TMP}, {L_XT}
v_lshlrev_b32 v46, 4, v40
v_lshl_add_u32 v46, v41, 2, v46
v_add_u32 v{V_XTW}, s{S_TMP}, v46
s_mul_i32 s{S_XK}, s{S_W}, 768
s_add_u32 s{S_XK}, s{S_XK}, {L_SP - L_XT}
""")
    a(f"""
v_lshrrev_b32 v46, 1, v41
v_lshlrev_b32 v46, 4, v46
v_and_b32 v47, 1, v41
v_lshl_add_u32 v46, v47, 2, v46
v_add_u32 v46, v46, v42
v_lshlrev_b32 v46, 4, v46
v_and_b32 v47, 1, v43
v_lshl_add_u32 v46, v47, 3, v46
v_add_u32 v{V_XTR}, s{S_TMP}, v46
""")
    a(f"""
s_mul_i32 s{S_TMP}, s{S_W}, 1280
v_lshl_add_u32 v46, v41, 3, v44
v_lshlrev_b32 v46, 4, v46
v_lshl_add_u32 v46, v45, 9, v46
v_add_u32 v{V_SPR}, {L_SP}, v46
s_mov_b32 s{S_W1280}, s{S_TMP}
s_add_u32 s{S_SP0K}, s{S_TMP}, {L_SP + 1024}
v_and_b32 v47, 1, v41
v_lshrrev_b32 v46, 1, v41
v_lshl_add_u32 v46, v46, 3, v44
v_lshlrev_b32 v46, 4, v46
v_lshl_add_u32 v47, v47, 1, v45
v_lshl_add_u32 v46, v47, 2, v46
v_add_u32 v{V_SP0R}, {L_SP + 1024}, v46
""")
    a(f"""
s_lshl_b32 s{S_TMP}, s{S_W}, 2
v_lshrrev_b32 v46, 1, v41
v_add_u32 v46, s{S_TMP}, v46
v_lshlrev_b32 v47, 1, v44
v_xor_b32 v46, v46, v47
v_lshlrev_b32 v46, 4, v46
v_lshl_add_u32 v46, v44, 8, v46
v_and_b32 v48, 1, v41
v_lshl_add_u32 v46, v48, 3, v46
v_add_u32 v{V_OW}, {L_XT}, v46
""")
    a(f"""
v_and_b32 v47, 1, v0
v_lshl_add_u32 v47, v42, 1, v47
v_bfe_u32 v48, v0, 1, 1
v_lshl_add_u32 v46, v41, 1, v48
v_lshlrev_b32 v48, 1, v47
v_xor_b32 v46, v46, v48
v_lshlrev_b32 v46, 4, v46
v_lshl_add_u32 v46, v47, 8, v46
v_add_u32 v{V_OR}, {L_XT}, v46
""")
    a(f"""
s_lshl_b32 s{S_TMP}, s{S_W}, 3
v_lshrrev_b32 v46, 3, v0
v_add_u32 v46, s{S_TMP}, v46
v_mul_u32_u24 v46, 9216, v46
v_lshl_add_u32 v{V_PST}, v44, 4, v46
""")
    Lw2 = a.label_name("Lc2"); Lce = a.label_name("Lce")
    a(f"""
s_mul_i32 s{S_TMP}, s{S_H}, 9216
s_lshl_b32 s{S_TMP2}, s{S_W}, 12
s_add_u32 s{S_TMP}, s{S_TMP}, s{S_TMP2}
s_lshr_b32 s{S_PF}, s{S_H}, 3
s_mul_i32 s{S_PF}, s{S_PF}, 72
s_and_b32 s{S_PF2}, s{S_H}, 7
s_cmp_ge_u32 s{S_W}, 2
s_cbranch_scc1 {Lw2}
v_lshl_add_u32 v46, v41, 1, v45
v_lshlrev_b32 v46, 7, v46
v_lshl_add_u32 v46, v44, 4, v46
v_add_u32 v{V_PLD}, s{S_TMP}, v46
s_lshl_b32 s{S_PF2}, s{S_PF2}, 3
v_add_u32 v46, s{S_PF2}, v44
s_lshl_b32 s{S_TMP2}, s{S_W}, 5
s_add_u32 s{S_PF}, s{S_PF}, s{S_TMP2}
v_and_b32 v48, 15, v46
v_lshl_add_u32 v47, v41, 4, v48
v_add_u32 v47, s{S_PF}, v47
v_lshlrev_b32 v47, 5, v47
v_lshrrev_b32 v48, 4, v46
v_lshl_add_u32 v{V_MST}, v48, 3, v47
s_mov_b32 s{S_PUB}, 0x00ff00ff
s_branch {Lce}
""")
    a.label(Lw2)
    a(f"""
v_lshrrev_b32 v46, 1, v40
v_lshl_add_u32 v46, v46, 2, v41
v_lshlrev_b32 v46, 5, v46
v_and_b32 v47, 1, v0
v_lshl_add_u32 v46, v47, 4, v46
v_add_u32 v{V_PLD}, s{S_TMP}, v46
s_lshl_b32 s{S_PF2}, s{S_PF2}, 2
v_lshl_add_u32 v47, v47, 1, v41
v_add_u32 v47, s{S_PF2}, v47
v_and_b32 v48, 7, v47
s_add_u32 s{S_PF}, s{S_PF}, 64
v_add_u32 v48, s{S_PF}, v48
v_lshlrev_b32 v48, 5, v48
v_lshrrev_b32 v47, 3, v47
v_lshl_add_u32 v{V_MST}, v47, 3, v48
s_mov_b32 s{S_PUB}, 0x00030003
""")
    a.label(Lce)
    a(f"""
s_mul_i32 s{S_TMP}, s{S_W}, {192 * 16 - 36864}
s_add_u32 s{S_MLK}, s{S_TMP}, {L_MEMT}
""")
    a(f"""
s_lshl_b32 s{S_TMP}, s{S_W}, 11
v_lshrrev_b32 v48, 1, v41
v_lshlrev_b32 v48, 10, v48
v_and_b32 v47, 1, v41
v_lshl_add_u32 v48, v47, 4, v48
v_add_u32 v48, s{S_TMP}, v48
v_lshl_add_u32 v{V_VX}, v40, 5, v48
""")
    a(f"""
s_mov_b32 s{S_L8}, 0x00ff00ff
s_mov_b32 s{S_L8+1}, 0x00ff00ff
s_mov_b32 s{S_HF8}, 0xff00ff00
s_mov_b32 s{S_HF8+1}, 0xff00ff00
s_mov_b32 s{S_PUB+1}, 0
s_mov_b32 s{S_SC}, {f32bits(SCALE_LOG2E):#x}
s_mov_b32 s{S_POIS}, 0xfffffffe
s_lshl_b32 s{S_PST}, s{S_H}, 7
s_add_u32 s{S_PST}, s{S_PST}, {WS_PART}
s_add_u32 s{S_PST1}, s{S_PST}, 4096
s_lshl_b32 s{S_PST2}, s{S_H}, 5
s_add_u32 s{S_PST2}, s{S_PST2}, {WS_PART + 8192}
s_mov_b32 s{S_PLD}, {WS_PART}
s_mov_b32 s{S_MCUR}, {WS_MEMT}
s_mov_b32 s{S_MNXT}, {WS_MEMT + MEMT_STRIDE}
s_mov_b32 s{S_M3}, {WS_MEMT + 2 * MEMT_STRIDE}
s_lshl_b32 s{S_TMP}, s{S_H}, 19
s_add_u32 s{S_KX}, s{S_TMP}, {WS_K}
s_add_u32 s{S_VX}, s{S_TMP}, {WS_VT}
s_lshl_b32 s{S_TMP}, s{S_H}, 11
s_add_u32 s{S_KM}, s{S_TMP}, {WS_KM}
s_add_u32 s{S_VM}, s{S_TMP}, {WS_VM - L_XT}
s_mov_b32 s{S_STEP}, 0
s_mov_b32 s{S_FL}, {WS_FLAGS}
s_mov_b32 s{S_TAG}, 1
""")

def single_addr(a, dst, tmp):
    a(f"""
s_lshl_b32 s{S_TMP}, s{S_W}, 3
v_lshrrev_b32 v{dst}, 4, v0
v_bfe_u32 v{tmp}, v0, 2, 1
v_lshl_add_u32 v{dst}, v{dst}, 1, v{tmp}
v_add_u32 v{dst}, s{S_TMP}, v{dst}
v_mul_u32_u24 v{dst}, 9216, v{dst}
v_and_b32 v{tmp}, 3, v0
v_lshl_add_u32 v{dst}, v{tmp}, 3, v{dst}
""")

def set_wsrd(a, ptr):
    a(f"""
s_mov_b32 s{S_WT}, s{ptr}
s_mov_b32 s{S_WT+1}, s{ptr+1}
s_mov_b32 s{S_WT+2}, {W_BYTES}
s_mov_b32 s{S_WT+3}, 0x20000
""")

def prologue(a):
    ws = f"s[{S_WS}:{S_WS+3}]"; wt = f"s[{S_WT}:{S_WT+3}]"
    a("v_mov_b32 v28, 0\nv_mov_b32 v29, 0\nv_mov_b32 v30, 0\nv_mov_b32 v31, 0\nv_mov_b32 v32, -1\nv_mov_b32 v33, -1")
    a(f"buffer_store_dwordx4 v[28:31], v{V_PST}, {ws}, s{S_PST} offen sc1")
    a(f"buffer_store_dwordx4 v[28:31], v{V_PST}, {ws}, s{S_PST1} offen sc1")
    single_addr(a, 34, 35)
    a(f"s_mov_b64 exec, s[{S_L8}:{S_L8+1}]")
    a(f"buffer_store_dwordx2 v[28:29], v34, {ws}, s{S_PST2} offen sc1")
    a(f"s_mov_b64 exec, -1\ns_cmp_eq_u32 s{S_W}, 3")
    L = a.label_name("Lnopois")
    L3 = a.label_name("Lfl")
    a(f"s_cbranch_scc1 {L3}\ns_mov_b64 exec, s[{S_PUB}:{S_PUB+1}]")
    a(f"buffer_store_dwordx2 v[32:33], v{V_MST}, {ws}, s{S_MNXT} offen sc1")
    a(f"buffer_store_dwordx2 v[32:33], v{V_MST}, {ws}, s{S_M3} offen sc1")
    a(f"s_mov_b64 exec, -1\ns_branch {L}")
    a.label(L3)
    a(f"""
v_lshlrev_b32 v34, 7, v0
s_mov_b32 exec_hi, 0
buffer_store_byte v28, v34, {ws}, s{S_FL} offen sc1
s_and_b32 s{S_TMP}, s{S_H}, 15
s_add_u32 s{S_TMP}, s{S_TMP}, {WS_FLAGS + 32}
buffer_store_byte v28, v34, {ws}, s{S_TMP} offen sc1
s_lshl_b32 s{S_TMP}, s{S_H}, 7
s_add_u32 s{S_TMP}, s{S_TMP}, {WS_CNT}
s_mov_b32 exec_lo, 1
buffer_store_dword v28, v28, {ws}, s{S_TMP} offen sc1
s_and_b32 s{S_TMP}, s{S_H}, 7
s_lshl_b32 s{S_TMP}, s{S_TMP}, 7
s_add_u32 s{S_TMP}, s{S_TMP}, {WS_CNT + 32*128}
buffer_store_dword v28, v28, {ws}, s{S_TMP} offen sc1
s_mov_b64 exec, -1
""")
    a.label(L)
    a(f"""
s_mul_i32 s{S_TMP}, s{S_W}, {2 * 1152}
v_lshlrev_b32 v46, 1, v0
v_add_u32 v46, s{S_TMP}, v46
""")
    for tt in range(2):
        for j in range(9):
            a(f"global_load_ushort v{52 + tt*9 + j}, v46, s[{S_PTR}:{S_PTR+1}] offset:{tt*1152 + j*128}")
    a(f"s_lshl_b32 s{S_TMP}, s{S_W}, 3\ns_add_u32 s{S_TMP}, s{S_TMP}, {L_MEMT}\ns_mov_b32 s{S_TMP2}, 7282")
    for j in range(9):
        d = 28 + j
        a(f"""
v_add_u32 v46, {64*j}, v0
v_mul_u32_u24 v47, s{S_TMP2}, v46
v_lshrrev_b32 v47, 20, v47
v_mul_u32_u24 v48, 144, v47
v_sub_u32 v46, v46, v48
v_mul_u32_u24 v47, 72, v47
v_lshrrev_b32 v48, 5, v46
v_lshlrev_b32 v48, 4, v48
v_and_b32 v49, 15, v46
v_add_u32 v48, v48, v49
v_bfe_u32 v49, v46, 4, 1
v_and_b32 v50, 7, v46
v_add_u32 v50, 64, v50
v_bfe_u32 v51, v46, 3, 1
v_cmp_gt_u32 vcc, 128, v46
v_cndmask_b32 v48, v50, v48, vcc
v_cndmask_b32 v49, v51, v49, vcc
v_add_u32 v48, v48, v47
v_lshlrev_b32 v48, 5, v48
v_lshl_add_u32 v48, v49, 2, v48
v_add_u32 v{d}, s{S_TMP}, v48
""")
    a("s_waitcnt vmcnt(0)")
    for tt in range(2):
        for j in range(9):
            a(f"ds_write_b16 v{28+j}, v{52 + tt*9 + j} offset:{tt*2}")
    a("s_barrier")
    L = a.label_name("Lnoarr")
    a(f"""
s_cmp_lg_u32 s{S_W}, 0
s_cbranch_scc1 {L}
s_mul_i32 s{S_TMP}, s{S_XCC}, 6
s_mov_b64 s[{S_T0}:{S_T0+1}], 1
s_lshl_b64 s[{S_T0}:{S_T0+1}], s[{S_T0}:{S_T0+1}], s{S_TMP}
s_or_b32 s{S_T0+1}, s{S_T0+1}, 0x01000000
v_mov_b32 v38, s{S_T0}
v_mov_b32 v39, s{S_T0+1}
v_mov_b32 v37, 0
s_mov_b64 exec, 1
global_atomic_add_x2 v37, v[38:39], s[{S_DBG}:{S_DBG+1}] offset:{DBG_XMASK*4} sc1
s_mov_b64 exec, -1
""")
    a.label(L)
    a(f"""
s_mul_i32 s{S_TMP2}, s{S_W}, 36864
s_mul_i32 s{S_PF}, s{S_H}, 147456
s_mul_i32 s{S_PF2}, s{S_W}, 288
s_add_u32 s{S_PF}, s{S_PF}, s{S_PF2}
""")
    set_wsrd(a, S_PTR + 8)
    a(f"s_mov_b32 s{S_PF2}, 3641")
    for m in range(36):
        a(f"""
v_add_u32 v46, {64*m}, v0
v_mul_u32_u24 v47, s{S_PF2}, v46
v_lshrrev_b32 v47, 16, v47
v_mul_u32_u24 v48, 18, v47
v_sub_u32 v48, v46, v48
v_mul_u32_u24 v47, 1152, v47
v_lshl_add_u32 v47, v48, 4, v47
s_add_u32 s{S_TMP}, s{S_TMP2}, {m*1024}
s_mov_b32 m0, s{S_TMP}
buffer_load_dwordx4 v47, {wt}, s{S_PF} offen lds
""")
    a(f"""
v_lshrrev_b32 v46, 1, v41
v_lshlrev_b32 v46, 4, v46
v_lshrrev_b32 v47, 1, v42
v_lshl_add_u32 v46, v47, 3, v46
v_and_b32 v47, 1, v41
v_lshl_add_u32 v46, v47, 2, v46
v_and_b32 v47, 1, v42
v_add_u32 v46, v46, v47
v_mul_u32_u24 v46, 288, v46
v_lshl_add_u32 v46, v43, 3, v46
v_add_u32 v49, s{S_TMP2}, v46
""")
    a(f"""
v_and_b32 v46, 1, v41
v_lshlrev_b32 v46, 4, v46
v_lshrrev_b32 v47, 1, v42
v_lshl_add_u32 v46, v47, 3, v46
v_lshrrev_b32 v47, 1, v41
v_lshl_add_u32 v46, v47, 2, v46
v_and_b32 v47, 1, v42
v_add_u32 v46, v46, v47
v_lshlrev_b32 v46, 6, v46
v_lshl_add_u32 v46, v43, 3, v46
v_add_u32 v50, s{S_TMP2}, v46
""")
    a(f"""
s_lshl_b32 s{S_PF}, s{S_H}, 8
s_lshl_b32 s{S_PF2}, s{S_W}, 6
s_add_u32 s{S_PF}, s{S_PF}, s{S_PF2}
v_bfe_u32 v46, v0, 2, 3
v_lshrrev_b32 v47, 5, v0
v_lshl_add_u32 v48, v47, 3, v46
v_lshl_add_u32 v46, v47, 4, v46
v_lshlrev_b32 v46, 13, v46
v_lshl_add_u32 v46, v43, 4, v46
v_add_u32 v51, s{S_PF}, v46
v_lshlrev_b32 v48, 13, v48
v_lshl_add_u32 v48, v43, 4, v48
v_add_u32 v48, s{S_PF}, v48
""")
    def dma_chunk(c):
        for m in range(4):
            base, stride = gamma_base(4*c + m)
            a(f"""
s_add_u32 s{S_TMP}, s{S_TMP2}, {c*4096 + m*1024}
s_mov_b32 m0, s{S_TMP}
s_mov_b32 s{S_PF}, {base * 8192}
buffer_load_dwordx4 v{51 if stride == 16 else 48}, {wt}, s{S_PF} offen lds
""")
    def wo_half(ks):
        for n in range(9):
            for q in range(4):
                off = (64*ks + 32*(q >> 1) + 2*(q & 1)) * 288 + 32*n
                a(f"ds_read_b64_tr_b16 {R(WO(n, ks) + 2*q, 2)}, v49 offset:{off}")
            if n % 3 == 2: a("s_waitcnt lgkmcnt(0)")
    def rd_chunk(c, dst):
        for t in range(2):
            for q in range(4):
                off = c*4096 + (32*(q >> 1) + 2*(q & 1)) * 64 + 32*t
                a(f"ds_read_b64_tr_b16 {R(dst(c, t) + 2*q, 2)}, v50 offset:{off}")
        a("s_waitcnt lgkmcnt(0)")
    a("s_waitcnt vmcnt(18)")
    wo_half(0)
    set_wsrd(a, S_PTR + 2)
    for c in range(4): dma_chunk(c)
    a("s_waitcnt vmcnt(16)")
    wo_half(1)
    for c in range(4, 9): dma_chunk(c)
    for c in range(9):
        a("s_waitcnt vmcnt(32)")
        rd_chunk(c, WQ)
        if c == 0: set_wsrd(a, S_PTR + 4)
        dma_chunk(c)
    for c in range(9):
        a("s_waitcnt vmcnt(32)")
        rd_chunk(c, WK)
        if c == 0: set_wsrd(a, S_PTR + 6)
        dma_chunk(c)
    for c in range(9):
        a(f"s_waitcnt vmcnt({32 - 4*c})")
        rd_chunk(c, lambda c_, t: 52 + 8*t)
        for t in range(2):
            for hf in range(2):
                a(f"ds_write_b128 v{V_WV}, v[{52+8*t+4*hf}:{52+8*t+4*hf+3}] offset:{c*4096 + t*2048 + hf*1024}")
        a("s_waitcnt lgkmcnt(0)")

def handshake(a, Lfast, Lslow, Lfail):
    Lp = a.label_name("Lhs")
    a(f"v_mov_b32 v30, 0\ns_mov_b32 s{S_SPIN}, 0")
    a.label(Lp)
    a(f"""
global_load_dwordx2 v[28:29], v30, s[{S_DBG}:{S_DBG+1}] offset:{DBG_XMASK*4} sc1
s_add_u32 s{S_SPIN}, s{S_SPIN}, 1
s_cmp_gt_u32 s{S_SPIN}, 0x400000
s_cbranch_scc1 {Lfail}
s_waitcnt vmcnt(0)
v_readfirstlane_b32 s{S_T0}, v28
v_readfirstlane_b32 s{S_T0+1}, v29
s_lshr_b32 s{S_TMP}, s{S_T0+1}, 24
s_cmp_lt_u32 s{S_TMP}, 32
s_cbranch_scc1 {Lp}
s_mul_i32 s{S_TMP}, s{S_XCC}, 6
s_lshr_b64 s[{S_T0}:{S_T0+1}], s[{S_T0}:{S_T0+1}], s{S_TMP}
s_and_b32 s{S_T0}, s{S_T0}, 63
s_cmp_eq_u32 s{S_T0}, 32
s_cbranch_scc1 {Lfast}
s_branch {Lslow}
""")

S_ST = 84
RT_STEP = None
def stamp(a, on, i):
    if RT_STEP is not None:
        L = a.label_name("Lrt")
        a(f"s_cmp_lg_u32 s{S_STEP}, {RT_STEP + (1 if i < 2 else 0)}\ns_cbranch_scc1 {L}\ns_memrealtime s[98:99]\ns_waitcnt lgkmcnt(0)\ns_mov_b32 s{S_ST+i}, s98")
        a.label(L)
        return
    if not on: return
    a(f"""
s_memtime s[98:99]
s_waitcnt lgkmcnt(0)
s_sub_u32 s97, s98, s96
s_add_u32 s{S_ST+i}, s{S_ST+i}, s97
s_mov_b32 s96, s98
""")

PFLAT = False
KVF = ""
DLY_G = 0
DLY_R = 4
def step_loop(a, fast, Ldone, Lfail, stamps=False, kv_wait=None, tlf=None):
    ws = f"s[{S_WS}:{S_WS+3}]"
    st = "" if fast else " sc1"
    L = Ctr(a, "lgkmcnt", 15)
    def stp(i):
        if stamps: L.q = []
        stamp(a, stamps, i)
    Ltop = a.label_name("Lstep"); Lnog = a.label_name("Lnog")
    q0, q1, k0, k1, v0_, v1_ = (ACC + 4*i for i in range(6))
    ABUF = (52, 56)
    WB = (60, 68)
    def wbuf(f): return WB[f % 2]
    def kxload(t):
        a(f"v_bfe_u32 v{t}, v0, 3, 1\nv_lshl_add_u32 v{t}, v{t}, 8, v{V_VX}")
        a(f"buffer_load_dwordx4 v[{KX}:{KX+3}], v{t}, {ws}, s{S_KX} offen{KVF}")
        a(f"buffer_load_dwordx4 v[{KX+4}:{KX+7}], v{t}, {ws}, s{S_KX} offen offset:256{KVF}")
    def vxload():
        a(f"buffer_load_dwordx4 v[{VX0}:{VX0+3}], v{V_VX}, {ws}, s{S_VX} offen{KVF}")
        a(f"buffer_load_dwordx4 v[{VX1}:{VX1+3}], v{V_VX}, {ws}, s{S_VX} offen offset:512{KVF}")
    def wrd(f):
        b = wbuf(f)
        for hf in range(2):
            L.issue(("W", f), f"ds_read_b128 v[{b+4*hf}:{b+4*hf+3}], v{V_WV} offset:{(f//2)*4096 + (f%2)*2048 + hf*1024}")
    def zero(lo, hi):
        for r in range(lo, hi, 2): a(f"v_mov_b64 v[{r}:{r+1}], 0")
    def spin():
        a(f"s_add_u32 s{S_SPIN}, s{S_SPIN}, 1\ns_cmp_gt_u32 s{S_SPIN}, 0x100000\ns_cbranch_scc1 {Lfail}")
    if kv_wait: kv_wait(a, 0)
    if tlf: tlf(a)
    if PFLAT: a("s_mov_b32 s84, 0\ns_mov_b32 s85, 0")
    kxload(V_T); vxload()
    zero(ACC, ACC + 24)
    L.q = []
    wrd(0); wrd(1)
    a(f"v_mov_b32 v{V_JUNK}, 14\ns_waitcnt vmcnt(0)")
    if stamps:
        for i in range(12): a(f"s_mov_b32 s{S_ST+i}, 0")
        a("s_mov_b32 s100, 0\ns_mov_b32 s101, 0\ns_memtime s[96:97]\ns_waitcnt lgkmcnt(0)")
    a(f"s_branch {Lnog}")
    a.label(Ltop)
    stp(0)
    Lg = a.label_name("Lgather"); Lw3 = a.label_name("Lw3")
    GR = (52, 56, 72); V_MLD = V_JUNK
    def gload():
        for j in range(3):
            a(f"buffer_load_dwordx4 v[{GR[j]}:{GR[j]+3}], v{V_MLD}, {ws}, s{S_MG} offen offset:{1024*j} sc1")
    a(f"s_cmp_eq_u32 s{S_W}, 3\ns_cbranch_scc1 {Lw3}")
    a(f"s_sub_u32 s{S_MG}, s{S_MCUR}, {L_MEMT}\ns_mov_b32 s{S_SPIN}, 0\nv_add_u32 v{V_MLD}, s{S_MLK}, v{V_WV}")
    L.q = []
    wrd(0)
    zero(ACC, ACC + 24)
    for _ in range(DLY_G): a("s_nop 15")
    a.label(Lg)
    gload()
    spin()
    a(f"""
s_waitcnt vmcnt(0)
v_max3_u32 v{V_T}, v{GR[0]}, v{GR[0]+2}, v{GR[1]}
v_max3_u32 v{V_T}, v{V_T}, v{GR[1]+2}, v{GR[2]}
v_max_u32 v{V_T}, v{V_T}, v{GR[2]+2}
v_cmp_eq_u32 vcc, -1, v{V_T}
s_and_b64 exec, exec, vcc
s_cbranch_scc1 {Lg}
s_mov_b64 exec, -1
""")
    if stamps: a(f"s_add_u32 s100, s100, s{S_SPIN}")
    stp(1)
    for j in range(3):
        a(f"ds_write_b128 v{V_MLD}, v[{GR[j]}:{GR[j]+3}] offset:{1024*j}")
    wrd(1)
    a(f"s_branch {Lnog}")
    a.label(Lw3)
    L.q = []
    wrd(0); wrd(1)
    zero(ACC, ACC + 24)
    a("s_waitcnt vmcnt(3)")
    if kv_wait:
        Lok = a.label_name("Lkvok")
        a(f"""
v_readfirstlane_b32 s{S_TMP}, v{V_JUNK}
s_and_b32 s{S_TMP}, s{S_TMP}, 0xffff
s_cmp_ge_u32 s{S_TMP}, 14
s_cbranch_scc1 {Lok}
""")
        kv_wait(a, 1)
        a.label(Lok)
    a.label(Lnog)
    a(f"""
s_cmp_lt_u32 s{S_STEP}, 63
s_cselect_b32 s{S_PF2}, 8192, 0
s_add_u32 s{S_PF}, s{S_KX}, s{S_PF2}
s_add_u32 s{S_PF2}, s{S_VX}, s{S_PF2}
s_add_u32 s{S_TMP}, s{S_STEP}, 2
s_min_u32 s{S_TMP}, s{S_TMP}, 63
s_and_b32 s{S_TMP}, s{S_TMP}, 0x3c
""")
    L.wait_all()
    a("s_barrier")
    stp(2)
    def ard(ks):
        b = ABUF[ks & 1]
        L.issue(("A", ks), f"ds_read_b64_tr_b16 v[{b}:{b+1}], v{V_ARD} offset:{1024*ks}")
        L.issue(("A", ks), f"ds_read_b64_tr_b16 v[{b+2}:{b+3}], v{V_ARD} offset:{1024*ks + 256}")
    ard(0)
    Lnp = a.label_name("Lnopf")
    a(f"""
s_cmp_lg_u32 s{S_W}, 3
s_cbranch_scc1 {Lnp}
v_lshlrev_b32 v56, 7, v0
v_mov_b32 v57, s{S_TMP}
s_sub_u32 s{S_TMP}, s{S_STEP}, 1
s_max_i32 s{S_TMP}, s{S_TMP}, 0
v_mov_b32 v59, s{S_TMP}
{"s_waitcnt lgkmcnt(0) vmcnt(0)" + chr(10) + "s_memtime s[98:99]" if PFLAT else ""}
buffer_load_dword v{V_JUNK}, v56, {ws}, s{S_PF} offen{KVF}
buffer_load_dword v{V_JUNK}, v56, {ws}, s{S_PF2} offen{KVF}
{("s_waitcnt vmcnt(0)" + chr(10) + "s_memtime s[96:97]" + chr(10) + "s_waitcnt lgkmcnt(0)" + chr(10) + "s_sub_u32 s96, s96, s98" + chr(10) + "s_add_u32 s84, s84, s96" + chr(10) + "s_max_u32 s85, s85, s96") if PFLAT else ""}
global_load_dword v{V_JUNK}, v57, s[{S_DBG}:{S_DBG+1}] offset:{DBG_KVRDY*4} sc1
s_cmp_lg_u32 s{S_H}, 0
s_cbranch_scc1 {Lnp}
s_mov_b32 exec_hi, 0
buffer_store_byte v59, v56, {ws}, s{S_FL} offen sc1
s_mov_b64 exec, -1
""")
    a.label(Lnp)
    ard(1)
    for ks in range(9):
        A = f"v[{ABUF[ks&1]}:{ABUF[ks&1]+3}]"
        L.wait(("A", ks))
        def sm(acc, B): a(f"v_smfmac_f32_16x16x64_bf16 v[{acc}:{acc+3}], {A}, {B}, v{V_IDX}")
        def smv(acc, f):
            L.wait(("W", f)); sm(acc, f"v[{wbuf(f)}:{wbuf(f)+7}]")
            if f + 2 < 18: wrd(f + 2)
        if ks < 8:
            sm(q0, R(WQ(ks,0),8)); smv(v0_, 2*ks); sm(q1, R(WQ(ks,1),8)); sm(k0, R(WK(ks,0),8)); smv(v1_, 2*ks + 1); sm(k1, R(WK(ks,1),8))
            if ks + 2 < 9: ard(ks + 2)
        else:
            sm(q0, R(WQ(ks,0),8)); sm(q1, R(WQ(ks,1),8)); sm(k0, R(WK(ks,0),8)); sm(k1, R(WK(ks,1),8))
            smv(v0_, 16); smv(v1_, 17)
    stp(3)
    QF, KF, T1, T2, T0 = 52, 56, 60, 64, 68
    def post(x, dst):
        a(f"v_pk_add_f32 v[{x}:{x+1}], v[{x}:{x+1}], v[{x+2}:{x+3}]\nv_cvt_pk_bf16_f32 v{dst}, v{x}, v{x+1}")
    post(q0, q0); post(q1, q1)
    L.issue("xq", f"ds_write2_b32 v{V_XTW}, v{q0}, v{q1} offset0:0 offset1:64")
    a(f"v_add_u32 v{V_T}, s{S_XK}, v{V_XTW}\nv_add_u32 v{T1}, s{S_XK}, v{V_XTR}")
    L.issue("qf", f"ds_read_b64_tr_b16 v[{QF}:{QF+1}], v{V_XTR}")
    L.issue("qf", f"ds_read_b64_tr_b16 v[{QF+2}:{QF+3}], v{V_XTR} offset:128")
    post(k0, k0); post(k1, k1)
    L.issue("xk", f"ds_write2_b32 v{V_T}, v{k0}, v{k1} offset0:0 offset1:64")
    L.issue("kf", f"ds_read_b64_tr_b16 v[{KF}:{KF+1}], v{T1}")
    L.issue("kf", f"ds_read_b64_tr_b16 v[{KF+2}:{KF+3}], v{T1} offset:128")
    a(f"v_add_u32 v72, s{S_W1280}, v{V_SPR}\nv_and_b32 v73, 0xff, v{V_SPR}\nv_add_u32 v73, s{S_SP0K}, v73")
    VP0, VP1 = v0_, v1_
    KMA = q0 + 1
    post(v0_, VP0); post(v1_, VP1)
    L.wait("qf")
    a(f"v_mfma_f32_16x16x32_bf16 v[{T1}:{T1+3}], v[{KX}:{KX+3}], v[{QF}:{QF+3}], 0")
    a(f"v_mfma_f32_16x16x32_bf16 v[{T2}:{T2+3}], v[{KX+4}:{KX+7}], v[{QF}:{QF+3}], 0")
    a(f"v_lshrrev_b32 v{KMA}, 10, v{V_VX}\nv_and_b32 v{KMA+1}, 0xf0, v{V_VX}")
    L.wait("kf")
    a(f"v_mfma_f32_16x16x32_bf16 v[{T0}:{T0+3}], v[{KF}:{KF+3}], v[{QF}:{QF+3}], 0")
    a(f"v_lshl_or_b32 v{KMA}, v{KMA}, 8, v{KMA+1}")
    a(f"buffer_store_dword v{VP0}, v{V_XTW}, {ws}, s{S_VM} offen sc1")
    a(f"buffer_store_dword v{VP1}, v{V_XTW}, {ws}, s{S_VM} offen offset:256 sc1")
    a(f"buffer_store_dwordx4 v[{KF}:{KF+3}], v{KMA}, {ws}, s{S_KM} offen sc1")
    a(f"s_cmp_eq_u32 s{S_STEP}, 63\ns_cbranch_scc1 {Ldone}")
    for r in range(4): a(f"v_cndmask_b32 v{T1+r}, v{T1+r}, v{T2+r}, s[{S_HF8}:{S_HF8+1}]")
    L.issue("sp", f"ds_write_b128 v72, v[{T1}:{T1+3}]")
    L.issue("sp", f"ds_write_b128 v73, v[{T0}:{T0+3}]")
    ONE = 64; SA = 72; SEL = 64
    for r in range(4): a(f"v_mov_b32 v{ONE+r}, 0x3f803f80")
    a(f"v_mov_b32 v{VP0+1}, 0\nv_mov_b32 v{VP1+1}, 0")
    zero(46, 48); zero(50, 52)
    L.wait_all()
    stp(4)
    a("s_barrier")
    stp(5)
    X = 28; M = 52
    for w in range(4): L.issue(("x", w), f"ds_read_b128 v[{X+4*w}:{X+4*w+3}], v{V_SPR} offset:{1280*w}")
    for w in range(4): L.issue("m", f"ds_read_b32 v{M+w}, v{V_SP0R} offset:{1280*w}")
    a(f"s_add_u32 s{S_KX}, s{S_KX}, 8192\ns_add_u32 s{S_VX}, s{S_VX}, 8192\ns_add_u32 s{S_KM}, s{S_KM}, 65536\ns_add_u32 s{S_VM}, s{S_VM}, 65536")
    kxload(V_T)
    def pka(d, s_): a(f"v_pk_add_f32 v[{d}:{d+1}], v[{d}:{d+1}], v[{s_}:{s_+1}]")
    L.wait(("x", 1))
    pka(X, X+4); pka(X+2, X+6)
    L.wait(("x", 3))
    pka(X+8, X+12); pka(X+10, X+14)
    L.wait("m")
    pka(M, M+2); pka(X, X+8); pka(X+2, X+10)
    a(f"v_add_f32 v{M}, v{M}, v{M+1}")
    t = 60
    a(f"""
v_max3_f32 v{t}, v{X}, v{X+1}, v{X+2}
v_max3_f32 v{t}, v{t}, v{X+3}, v{M}
v_mov_b64 v[32:33], 0
v_mov_b64 v[34:35], 0
v_max_f32_dpp v{t}, v{t}, v{t} row_ror:8 row_mask:0xf bank_mask:0xf
v_mov_b32 v{t+1}, v{t}
v_mov_b64 v[36:37], 0
v_mov_b64 v[38:39], 0
v_permlane16_swap_b32 v{t}, v{t+1}
v_max_f32 v{t}, v{t}, v{t+1}
v_mov_b32 v{t+1}, v{t}
s_nop 1
v_permlane32_swap_b32 v{t}, v{t+1}
v_max_f32 v{t}, v{t}, v{t+1}
v_mul_f32 v{t}, s{S_SC}, v{t}
""")
    vals = [M, X, X+1, X+2, X+3]
    for v in vals: a(f"v_fma_f32 v{v}, v{v}, s{S_SC}, -v{t}")
    for v in vals: a(f"v_exp_f32 v{v}, v{v}")
    PX, PM, O0, O1, LS = 60, 52, 68, 56, 40
    a(f"""
v_mov_b32_dpp v{M+1}, v{M} row_ror:8 row_mask:0xf bank_mask:0xf
v_cvt_pk_bf16_f32 v{PX}, v{X}, v{X+1}
v_cvt_pk_bf16_f32 v{PX+1}, v{X+2}, v{X+3}
v_cvt_pk_bf16_f32 v{PM}, v{M}, v{M+1}
v_mov_b32 v{PM+1}, 0
v_mov_b64 v[{PM+2}:{PM+3}], 0
v_mov_b32_dpp v{PX+2}, v{PX} row_ror:8 row_mask:0xf bank_mask:0xf
v_mov_b32_dpp v{PX+3}, v{PX+1} row_ror:8 row_mask:0xf bank_mask:0xf
v_mfma_f32_16x16x32_bf16 v[{LS}:{LS+3}], v[{ONE}:{ONE+3}], v[{PM}:{PM+3}], 0
v_mfma_f32_16x16x32_bf16 v[{LS}:{LS+3}], v[{ONE}:{ONE+3}], v[{PX}:{PX+3}], v[{LS}:{LS+3}]
v_mfma_f32_16x16x32_bf16 v[{O0}:{O0+3}], v[{VP0}:{VP0+3}], v[{PM}:{PM+3}], 0
v_mfma_f32_16x16x32_bf16 v[{O0}:{O0+3}], v[{VX0}:{VX0+3}], v[{PX}:{PX+3}], v[{O0}:{O0+3}]
v_mfma_f32_16x16x32_bf16 v[{O1}:{O1+3}], v[{VP1}:{VP1+3}], v[{PM}:{PM+3}], 0
v_mfma_f32_16x16x32_bf16 v[{O1}:{O1+3}], v[{VX1}:{VX1+3}], v[{PX}:{PX+3}], v[{O1}:{O1+3}]
v_mov_b64 v[28:29], 0
v_mov_b64 v[30:31], 0
v_rcp_f32 v{LS}, v{LS}
v_xor_b32 v{V_T}, 32, v{V_OW}
""")
    def pkm(d): a(f"v_pk_mul_f32 v[{d}:{d+1}], v[{d}:{d+1}], v[{LS}:{LS+1}] op_sel_hi:[1,0]")
    pkm(O0); pkm(O0+2)
    a(f"v_cvt_pk_bf16_f32 v{O0}, v{O0}, v{O0+1}\nv_cvt_pk_bf16_f32 v{O0+1}, v{O0+2}, v{O0+3}")
    pkm(O1); pkm(O1+2)
    a(f"""
v_cvt_pk_bf16_f32 v{O1}, v{O1}, v{O1+1}
v_cvt_pk_bf16_f32 v{O1+1}, v{O1+2}, v{O1+3}
s_mov_b64 exec, s[{S_L8}:{S_L8+1}]
ds_write_b64 v{V_OW}, v[{O0}:{O0+1}]
ds_write_b64 v{V_T}, v[{O1}:{O1+1}]
s_mov_b64 exec, -1
v_xor_b32 v{V_T}, 128, v{V_OR}
""")
    vxload()
    zero(40, 46); zero(48, 50); zero(52, 56)
    single_addr(a, SA, SA + 1)
    L.wait_all()
    stp(6)
    a("s_barrier")
    stp(7)
    OA = 64
    L.issue("o0", f"ds_read_b128 v[{OA}:{OA+3}], v{V_OR}")
    L.issue("o1", f"ds_read_b128 v[{OA+4}:{OA+7}], v{V_T}")
    zero(56, 64)
    D = lambda n: 28 + 4*n
    def hsum(n):
        x = D(n)
        return [f"v_add_f32 v{x}, v{x}, v{x+2}", f"v_add_f32 v{x+1}, v{x+1}, v{x+3}"]
    def quad_ops(q, pk=False):
        o = 72 if q == 0 else 28
        ops = []
        for i in range(4):
            x = D(4*q + i)
            ops += [f"v_pk_add_f32 v[{x}:{x+1}], v[{x}:{x+1}], v[{x+2}:{x+3}]"] if pk else hsum(4*q + i)
            ops += [f"v_cvt_pk_bf16_f32 v{o+i}, v{x}, v{x+1}"]
        ops += [f"v_bfi_b32 v{o}, 1, s{S_TAG}, v{o}",
                f"buffer_store_dwordx4 v[{o}:{o+3}], v{V_PST}, {ws}, s{S_PST if q == 0 else S_PST1} offen{st}"]
        return ops
    def single_ops():
        x = D(8)
        return hsum(8) + [
            f"v_cvt_pk_bf16_f32 v{x}, v{x}, v{x+1}",
            f"v_mov_b32_dpp v{x+1}, v{x} row_ror:8 row_mask:0xf bank_mask:0xf",
            f"v_bfi_b32 v{x}, 1, s{S_TAG}, v{x}",
            f"s_mov_b64 exec, s[{S_L8}:{S_L8+1}]\nbuffer_store_dwordx2 v[{x}:{x+1}], v{SA}, {ws}, s{S_PST2} offen{st}\ns_mov_b64 exec, -1"]
    order = [8, 0, 1, 2, 3, 4, 5, 6, 7]
    def smo(n, ks): return f"v_smfmac_f32_16x16x64_bf16 v[{D(n)}:{D(n)+3}], v[{OA+4*ks}:{OA+4*ks+3}], {R(WO(n,ks),8)}, v{V_IDX}"
    L.wait("o0")
    for n in order[:3]: a(smo(n, 0))
    L.wait("o1")
    seq = [smo(n, 1) for n in order[:3]]
    for n in order[3:]: seq += [smo(n, 0), smo(n, 1)]
    pend = []; q1ops = quad_ops(1)
    done_at = {2: single_ops(), 8: quad_ops(0), 12: q1ops[:6]}
    for i, ins in enumerate(seq):
        a(ins)
        if i in done_at: pend += done_at[i]
        for _ in range(2):
            if pend: a(pend.pop(0))
    for p in pend: a(p)
    for p in quad_ops(1, True)[4:]: a(p)
    stp(8)
    Lnr = a.label_name("Lnored"); Lr = a.label_name("Lred"); Lr2 = a.label_name("Lred2"); Lpub = a.label_name("Lpub"); Lw2 = a.label_name("Lw2")
    a(f"s_cmp_eq_u32 s{S_W}, 3\ns_cbranch_scc1 {Lnr}")
    P = 28; Dr = 60
    def sel():
        a(f"""
v_and_b32 v{V_T}, 1, v0
v_lshlrev_b32 v{V_T}, 4, v{V_T}
v_mov_b32 v70, 0x3f80
v_lshlrev_b32 v70, v{V_T}, v70
v_bfe_u32 v{V_T}, v0, 1, 3
""")
        for d in range(4): a(f"v_cmp_eq_u32 vcc, {d}, v{V_T}\nv_cndmask_b32 v{SEL+d}, 0, v70, vcc")
    sel()
    a(f"s_mov_b32 s{S_SPIN}, 0\ns_sub_u32 s{S_TMP}, s{S_TAG}, 1")
    a(f"s_cmp_eq_u32 s{S_W}, 2\ns_cbranch_scc1 {Lw2}")
    def pload(n):
        for t_ in range(n):
            a(f"buffer_load_dwordx4 v[{P+4*t_}:{P+4*t_+3}], v{V_PLD}, {ws}, s{S_PLD} offen offset:{1024*t_} sc1")
    a("v_mov_b32 v68, -1\nv_mov_b32 v69, -1")
    for _ in range(DLY_R): a("s_nop 15")
    a.label(Lr)
    pload(4)
    spin()
    a(f"""
s_waitcnt vmcnt(0)
v_bitop3_b32 v{Dr}, v{P}, v{P+4}, s{S_TMP} bitop3:0x42
v_bitop3_b32 v{Dr+1}, v{P+8}, v{P+12}, s{S_TMP} bitop3:0x42
v_bitop3_b32 v{Dr}, v{Dr}, v{Dr+1}, 1 bitop3:0x80
v_cmp_eq_u32 vcc, 0, v{Dr}
s_and_b64 exec, exec, vcc
s_cbranch_scc1 {Lr}
s_mov_b64 exec, -1
""")
    if stamps: a(f"s_add_u32 s101, s101, s{S_SPIN}")
    stp(9)
    a(f"v_mfma_f32_16x16x32_bf16 v[{Dr}:{Dr+3}], v[{SEL}:{SEL+3}], v[{P}:{P+3}], 0")
    a(f"v_mfma_f32_16x16x32_bf16 v[44:47], v[{SEL}:{SEL+3}], v[{P+4}:{P+7}], 0")
    a(f"v_mfma_f32_16x16x32_bf16 v[{Dr}:{Dr+3}], v[{SEL}:{SEL+3}], v[{P+8}:{P+11}], v[{Dr}:{Dr+3}]")
    a(f"v_mfma_f32_16x16x32_bf16 v[{Dr}:{Dr+3}], v[{SEL}:{SEL+3}], v[{P+12}:{P+15}], v[{Dr}:{Dr+3}]")
    pka(Dr, 44); pka(Dr+2, 46)
    for r in range(4): a(f"v_add_f32_dpp v{Dr+r}, v{Dr+r}, v{Dr+r} row_ror:8 row_mask:0xf bank_mask:0xf")
    a(f"s_branch {Lpub}")
    a.label(Lw2)
    a("v_mov_b32 v68, -1\nv_mov_b32 v69, -1")
    a.label(Lr2)
    pload(1)
    spin()
    a(f"""
s_waitcnt vmcnt(0)
v_bitop3_b32 v{Dr}, v{P}, v{P+2}, s{S_TMP} bitop3:0x42
v_and_b32 v{Dr}, 1, v{Dr}
v_cmp_eq_u32 vcc, 0, v{Dr}
s_and_b64 exec, exec, vcc
s_cbranch_scc1 {Lr2}
s_mov_b64 exec, -1
""")
    if stamps: a(f"s_add_u32 s101, s101, s{S_SPIN}")
    stp(9)
    a(f"v_mfma_f32_16x16x32_bf16 v[{Dr}:{Dr+3}], v[{SEL}:{SEL+3}], v[{P}:{P+3}], 0")
    for sh in (2, 4, 8):
        for r in range(4): a(f"v_add_f32_dpp v{Dr+r}, v{Dr+r}, v{Dr+r} row_ror:{sh} row_mask:0xf bank_mask:0xf")
    a.label(Lpub)
    a(f"""
v_cvt_pk_bf16_f32 v{Dr}, v{Dr}, v{Dr+1}
v_cvt_pk_bf16_f32 v{Dr+1}, v{Dr+2}, v{Dr+3}
v_min_u32 v{Dr}, s{S_POIS}, v{Dr}
s_mov_b64 exec, s[{S_PUB}:{S_PUB+1}]
buffer_store_dwordx2 v[{Dr}:{Dr+1}], v{V_MST}, {ws}, s{S_MNXT} offen{st}
buffer_store_dwordx2 v[68:69], v{V_MST}, {ws}, s{S_MCUR} offen{st}
s_mov_b64 exec, -1
""")
    a.label(Lnr)
    stp(10)
    a(f"""
s_mov_b32 s{S_TMP}, s{S_MCUR}
s_mov_b32 s{S_MCUR}, s{S_MNXT}
s_mov_b32 s{S_MNXT}, s{S_M3}
s_mov_b32 s{S_M3}, s{S_TMP}
s_xor_b32 s{S_TAG}, s{S_TAG}, 1
s_add_u32 s{S_STEP}, s{S_STEP}, 1
s_branch {Ltop}
""")

def finish(a):
    L = a.label_name("Lfin")
    ws = f"s[{S_WS}:{S_WS+3}]"
    a(f"""
s_waitcnt vmcnt(0)
s_barrier
s_cmp_lg_u32 s{S_W}, 3
s_cbranch_scc1 {L}
v_mov_b32 v52, 0
v_mov_b32 v53, 1
s_mov_b32 s{S_TMP}, {WS_CNT + 36*128}
s_mov_b64 exec, 1
buffer_atomic_add v53, v52, {ws}, s{S_TMP} offen sc0 sc1
v_lshlrev_b32 v52, 7, v0
s_waitcnt vmcnt(0)
v_readfirstlane_b32 s{S_TMP}, v53
s_mov_b64 exec, -1
v_lshlrev_b32 v52, 7, v0
v_mov_b32 v{V_T}, 64
s_cmp_lg_u32 s{S_TMP}, 31
s_cbranch_scc1 {L}
s_mov_b32 exec_hi, 0
buffer_store_byte v{V_T}, v52, {ws}, s{S_FL} offen sc1
s_mov_b64 exec, -1
s_waitcnt vmcnt(0)
""")
    a.label(L)


def make_kv_wait(Lfail):
    def kv_wait(a, ahead):
        Lp = a.label_name("Lkvp"); Ls = a.label_name("Lkvs")
        a(f"""
s_add_u32 s{S_TMP}, s{S_STEP}, {ahead}
s_and_b32 s{S_TMP2}, s{S_TMP}, 3
s_cmp_lg_u32 s{S_TMP2}, 0
s_cbranch_scc1 {Ls}
s_cmp_gt_u32 s{S_TMP}, 63
s_cbranch_scc1 {Ls}
v_mov_b32 v52, s{S_TMP}
s_mov_b32 s{S_SPIN}, 0
""")
        a.label(Lp)
        a(f"""
global_load_dword v53, v52, s[{S_DBG}:{S_DBG+1}] offset:{DBG_KVRDY*4} sc1
s_add_u32 s{S_SPIN}, s{S_SPIN}, 1
s_cmp_gt_u32 s{S_SPIN}, 0x200000
s_cbranch_scc1 {Lfail}
s_waitcnt vmcnt(0)
v_readfirstlane_b32 s{S_TMP2}, v53
s_and_b32 s{S_TMP2}, s{S_TMP2}, 0xffff
s_cmp_lt_u32 s{S_TMP2}, 14
s_cbranch_scc0 {Ls}
s_sleep 8
s_branch {Lp}
""")
        a.label(Ls)
    return kv_wait
```

```python
from asmlib import *
from layout import *
from rec import Ctr, f32bits, S_WS

S_RB, S_W, S_J = 3, 4, 5
S_A = 12
S_B = 16
S_C = 20
S_PQ, S_PK, S_PV = 24, 26, 28
S_DBG = 30
S_CUR, S_NXT = 32, 33
S_IT, S_ITN, S_END = 34, 35, 36
S_T, S_T2, S_T3 = 37, 38, 39
S_WM0 = 40
S_OB = 41
S_CURC, S_NXTC = 42, 43
S_SPIN = 44
S_H, S_HN, S_HE = 45, 46, 47
S_K = 48
V_FR = 1
V_VO = 4
V_ST = 7
V_T = 9
V_FP = 10
FB = 16
ACC0 = 32
XF = 112
NFB = 4

def OUT(n):
    return 256 + 16*n if n < 16 else 80 + 16*(n - 16)

def load_ptr(a, dst, name):
    a(f"s_load_dwordx2 s[{dst}:{dst+1}], s[0:1], {KA[name]}")

def srd(a, d, ptr, nbytes):
    a(f"s_mov_b32 s{d}, s{ptr}\ns_mov_b32 s{d+1}, s{ptr+1}\ns_mov_b32 s{d+2}, {nbytes}\ns_mov_b32 s{d+3}, 0x20000")

def setup(a):
    a(f"""
v_lshrrev_b32 v{V_T}, 6, v0
v_and_b32 v0, 63, v0
v_readfirstlane_b32 s{S_W}, v{V_T}
v_lshrrev_b32 v10, 4, v0
v_bfe_u32 v11, v0, 2, 2
v_and_b32 v12, 3, v0
v_lshrrev_b32 v13, 2, v0
s_lshl_b32 s{S_WM0}, s{S_W}, 10
""")
    a(f"""
v_lshrrev_b32 v14, 1, v10
v_lshlrev_b32 v14, 9, v14
v_lshl_add_u32 v14, v11, 6, v14
v_and_b32 v15, 1, v10
v_lshl_add_u32 v14, v15, 5, v14
v_lshl_add_u32 v{V_FR}, v12, 3, v14
v_add_u32 v{V_FR+1}, 0x10000, v{V_FR}
v_add_u32 v{V_FR+2}, 0x20000, v{V_FR}
""")
    a(f"""
s_lshr_b32 s{S_T}, s{S_W}, 1
s_and_b32 s{S_T2}, s{S_W}, 1
s_lshl_b32 s{S_T3}, s{S_W}, 16
v_and_b32 v14, 7, v13
v_lshlrev_b32 v14, 13, v14
v_lshl_add_u32 v14, v12, 4, v14
v_lshrrev_b32 v15, 5, v0
v_lshl_add_u32 v14, v15, 6, v14
v_add_u32 v{V_VO}, s{S_T3}, v14
""")
    a(f"""
s_mul_i32 s{S_T3}, s{S_W}, {16*9216}
v_mul_u32_u24 v14, 9216, v13
v_lshl_add_u32 v14, v12, 4, v14
v_add_u32 v{V_VO+1}, s{S_T3}, v14
""")
    a(f"""
s_mul_i32 s{S_T3}, s{S_T2}, {16*1152}
s_lshl_b32 s{S_IT}, s{S_T}, 6
s_add_u32 s{S_T3}, s{S_T3}, s{S_IT}
v_bfe_u32 v14, v13, 2, 1
v_lshlrev_b32 v14, 3, v14
v_lshrrev_b32 v15, 3, v13
v_lshl_add_u32 v14, v15, 2, v14
v_and_b32 v15, 3, v13
v_add_u32 v14, v14, v15
v_mul_u32_u24 v14, 1152, v14
v_lshl_add_u32 v14, v12, 4, v14
v_add_u32 v{V_VO+2}, s{S_T3}, v14
""")
    a(f"""
s_lshl_b32 s{S_T}, s{S_RB}, 2
s_add_u32 s{S_T}, s{S_T}, s{S_W}
s_lshl_b32 s{S_T}, s{S_T}, 13
v_and_b32 v14, 31, v0
v_lshrrev_b32 v15, 5, v0
v_lshlrev_b32 v{V_ST}, 5, v14
v_lshl_add_u32 v{V_ST}, v15, 4, v{V_ST}
v_add_u32 v{V_ST}, s{S_T}, v{V_ST}
v_lshl_add_u32 v{V_FP}, v15, 9, v{V_FR}
v_add_u32 v{V_FP+1}, 0x10000, v{V_FP}
""")

def layernorm(a):
    load_ptr(a, S_PQ, 'x')
    a(f"""
s_lshl_b32 s{S_T}, s{S_RB}, 2
s_add_u32 s{S_T}, s{S_T}, s{S_W}
s_mul_i32 s{S_T}, s{S_T}, {32*1152}
v_and_b32 v14, 31, v0
v_mul_u32_u24 v14, 1152, v14
v_lshrrev_b32 v15, 5, v0
v_lshl_add_u32 v14, v15, 4, v14
s_waitcnt lgkmcnt(0)
""")
    srd(a, S_A, S_PQ, 2048*1152)
    for t in range(36):
        a(f"buffer_load_dwordx4 v[{XF+4*t}:{XF+4*t+3}], v14, s[{S_A}:{S_A+3}], s{S_T} offen offset:{32*t}")
    a("v_mov_b32 v16, 0x3f803f80")
    for i in range(4): a(f"v_mov_b32 v{20+i}, 0")
    for t in range(36):
        a(f"s_waitcnt vmcnt({35-t})")
        for i in range(4): a(f"v_dot2c_f32_bf16 v{20+i}, v{XF+4*t+i}, v16")
    a(f"""
s_nop 2
v_add_f32 v20, v20, v21
v_add_f32 v22, v22, v23
v_add_f32 v20, v20, v22
v_mov_b32 v21, v20
v_permlane32_swap_b32 v20, v21
v_add_f32 v20, v20, v21
v_mul_f32 v20, {f32bits(1.0/576):#x}, v20
v_cvt_pk_bf16_f32 v21, v20, v20
v_lshlrev_b32 v22, 16, v21
v_mov_b32 v23, v22
v_sub_f32 v24, v20, v22
v_mov_b64 v[26:27], 0
v_mov_b64 v[28:29], 0
""")
    for d in range(144):
        x = XF + d; t0 = 32 + 2*(d % 4); acc = 26 + 2*(d % 2)
        a(f"""
v_lshlrev_b32 v{t0}, 16, v{x}
v_and_b32 v{t0+1}, 0xffff0000, v{x}
v_pk_add_f32 v[{t0}:{t0+1}], v[{t0}:{t0+1}], v[22:23] neg_lo:[0,1] neg_hi:[0,1]
v_pk_fma_f32 v[{acc}:{acc+1}], v[{t0}:{t0+1}], v[{t0}:{t0+1}], v[{acc}:{acc+1}]
v_cvt_pk_bf16_f32 v{x}, v{t0}, v{t0+1}
""")
    a(f"""
v_pk_add_f32 v[26:27], v[26:27], v[28:29]
v_add_f32 v26, v26, v27
v_mov_b32 v27, v26
v_permlane32_swap_b32 v26, v27
v_add_f32 v26, v26, v27
v_mul_f32 v26, {f32bits(1.0/576):#x}, v26
v_fma_f32 v26, -v24, v24, v26
v_max_f32 v26, 0, v26
v_cvt_pk_bf16_f32 v26, v26, v26
v_lshlrev_b32 v26, 16, v26
v_add_f32 v26, {f32bits(1e-5):#x}, v26
v_cvt_pk_bf16_f32 v26, v26, v26
v_lshlrev_b32 v26, 16, v26
v_sqrt_f32 v26, v26
v_cvt_pk_bf16_f32 v26, v26, v26
v_lshlrev_b32 v26, 16, v26
v_rcp_f32 v26, v26
v_mov_b32 v27, v26
""")
    for d in range(144):
        x = XF + d; t0 = 32 + 2*(d % 4)
        a(f"""
v_lshlrev_b32 v{t0}, 16, v{x}
v_and_b32 v{t0+1}, 0xffff0000, v{x}
v_pk_mul_f32 v[{t0}:{t0+1}], v[{t0}:{t0+1}], v[26:27]
v_cvt_pk_bf16_f32 v{x}, v{t0}, v{t0+1}
""")

STAMPS = False
def wstamp(a, i, st=None):
    if not STAMPS: return
    a(f"""
s_memtime s[98:99]
s_waitcnt lgkmcnt(0)
s_sub_u32 s97, s98, s96
s_add_u32 s{84+i}, s{84+i}, s97
s_mov_b32 s96, s98
""")
def wstamp_init(a):
    if not STAMPS: return
    for i in range(12): a(f"s_mov_b32 s{84+i}, 0")
    a("s_memtime s[96:97]\ns_waitcnt lgkmcnt(0)")
def wstamp_dump(a, slot_sgpr):
    if not STAMPS: return
    a(f"s_lshl_b32 s97, s{slot_sgpr}, 2\ns_add_u32 s97, s97, s{S_W}\ns_lshl_b32 s97, s97, 6\ns_add_u32 s97, s97, {61*MiB}\nv_mov_b32 v32, 0\ns_mov_b64 exec, 1")
    for i in range(12): a(f"v_mov_b32 v{36+i}, s{84+i}")
    for i in range(3): a(f"buffer_store_dwordx4 v[{36+4*i}:{39+4*i}], v32, s[{S_WS}:{S_WS+3}], s97 offen offset:{16*i}")
    a("s_mov_b64 exec, -1\ns_waitcnt vmcnt(0)")

class Stream:
    def __init__(self, a, R, D):
        self.a, self.R, self.D = a, R, D
        self.V = Ctr(a, "vmcnt", 63); self.L = Ctr(a, "lgkmcnt", 15)
    def dma(self, slot, i, srd_, vo, sbase, const, tag):
        a = self.a
        a(f"s_add_u32 m0, s{S_WM0}, {slot*12288 + i*4096}")
        if const: a(f"s_add_u32 s{S_T}, s{sbase}, {const}"); so = S_T
        else: so = sbase
        self.V.issue(tag, f"buffer_load_dwordx4 v{vo}, s[{srd_}:{srd_+3}], s{so} offen lds")
    def rd(self, slot, f, buf, tag, paired=False):
        off = slot*12288 + f*1024
        if paired: off = slot*12288 + (f >> 1)*2048 + (f & 1)*512
        b = (V_FP if paired else V_FR) + (off >> 16); off &= 0xffff
        assert off + 256 < 65536
        d = FB + 4*buf
        self.L.issue(tag, f"ds_read_b64_tr_b16 v[{d}:{d+1}], v{b} offset:{off}")
        self.L.issue(tag, f"ds_read_b64_tr_b16 v[{d+2}:{d+3}], v{b} offset:{off+256}")

def qkv_phase(a, Lexit_fail=None, signal=None):
    ws = f"s[{S_WS}:{S_WS+3}]"
    R, D = 6, 4
    load_ptr(a, S_PQ, 'Wq'); load_ptr(a, S_PK, 'Wk'); load_ptr(a, S_PV, 'Wv')
    a("s_waitcnt lgkmcnt(0)")
    def item_src(c, dsrd, doff):
        a(f"""
s_min_u32 s{S_T2}, s{c}, 191
s_cmp_lt_u32 s{S_T2}, 64
s_cselect_b32 s{dsrd}, s{S_PK}, s{S_PV}
s_cselect_b32 s{dsrd+1}, s{S_PK+1}, s{S_PV+1}
s_cmp_lt_u32 s{S_T2}, 128
s_cselect_b32 s{dsrd}, s{dsrd}, s{S_PQ}
s_cselect_b32 s{dsrd+1}, s{dsrd+1}, s{S_PQ+1}
s_mov_b32 s{dsrd+2}, {W_BYTES}
s_mov_b32 s{dsrd+3}, 0x20000
s_and_b32 s{doff}, s{S_T2}, 63
s_lshl_b32 s{doff}, s{doff}, 7
""")
    S_NKV, S_NQ, S_R1, S_R2, S_I, S_N = S_K, S_K+1, S_K+2, S_K+3, S_K+4, S_K+5
    a(f"""
s_cmp_lt_u32 s{S_J}, 2
s_cselect_b32 s{S_NKV}, 10, 9
s_cmp_lt_u32 s{S_J}, 10
s_cselect_b32 s{S_N}, 14, 13
s_sub_u32 s{S_NQ}, s{S_N}, s{S_NKV}
s_sub_u32 s{S_R1}, s{S_RB}, s{S_NKV}
s_cmp_lt_u32 s{S_RB}, s{S_NKV}
s_cselect_b32 s{S_R1}, s{S_RB}, s{S_R1}
s_mov_b32 s{S_R2}, s{S_RB}
""")
    for _ in range(4):
        a(f"s_sub_u32 s{S_T}, s{S_R2}, s{S_NQ}\ns_cmp_lt_u32 s{S_R2}, s{S_NQ}\ns_cselect_b32 s{S_R2}, s{S_R2}, s{S_T}")
    def calc_c(add, dst):
        a(f"""
s_add_u32 s{S_T}, s{S_I}, {add}
s_add_u32 s{S_T2}, s{S_T}, s{S_R1}
s_sub_u32 s{S_T3}, s{S_T2}, s{S_NKV}
s_cmp_lt_u32 s{S_T2}, s{S_NKV}
s_cselect_b32 s{dst}, s{S_T2}, s{S_T3}
s_add_u32 s{S_T2}, s{S_T}, s{S_R2}
s_sub_u32 s{S_T3}, s{S_T2}, s{S_NQ}
s_cmp_lt_u32 s{S_T2}, s{S_N}
s_cselect_b32 s{S_T2}, s{S_T2}, s{S_T3}
s_cmp_lt_u32 s{S_T}, s{S_NKV}
s_cselect_b32 s{dst}, s{dst}, s{S_T2}
s_mul_i32 s{dst}, s{dst}, 14
s_add_u32 s{dst}, s{dst}, s{S_J}
s_cmp_lt_u32 s{S_T}, s{S_N}
s_cselect_b32 s{dst}, s{dst}, 192
""")
    a(f"s_mov_b32 s{S_I}, 0")
    calc_c(0, S_IT); calc_c(1, S_ITN)
    item_src(S_IT, S_A, S_CUR); item_src(S_ITN, S_B, S_NXT)
    st = Stream(a, R, D)
    def issue(p):
        pp = p % 6
        sr_, sb = (S_A, S_CUR) if p < 6 else (S_B, S_NXT)
        for i in range(3):
            st.dma(pp % R, i, sr_, V_VO, sb, (6*pp + 2*i)*16*8192, ("d", p))
    for p in range(D): issue(p)
    a("s_waitcnt vmcnt(0)\ns_barrier")
    wstamp(a, 1)
    st.V.q = []
    for f in range(NFB - 1): st.rd(0, f, f, ("f", f), True)
    pre_L = list(st.L.q)
    Lloop = a.label_name("Lqkv"); Lv = a.label_name("Lqkv_v"); Lnext = a.label_name("Lqkv_n"); Ldone = a.label_name("Lqkv_d")
    def body(isv, Vq):
        st.V.q = list(Vq); st.L.q = list(pre_L)
        for p in range(6):
            wstamp(a, 2)
            st.V.wait(("d", p + 1))
            wstamp(a, 3)
            a("s_barrier")
            wstamp(a, 4)
            if p == 3 and signal:
                Lns = a.label_name("Lnosig")
                a(f"s_cmp_lg_u32 s{S_I}, s{S_NKV}\ns_cbranch_scc1 {Lns}")
                signal(a, 1)
                a.label(Lns)
            issue(p + D)
            for f in range(12):
                phi = 12*p + f; t = phi >> 1; nt = phi & 1
                nx = phi + NFB - 1
                st.rd((nx // 12) % R, nx % 12, nx % NFB, ("f", nx % 72 if nx >= 72 else nx), True)
                st.L.wait(("f", phi))
                W = f"v[{FB+4*(phi%NFB)}:{FB+4*(phi%NFB)+3}]"; X = f"v[{XF+4*t}:{XF+4*t+3}]"
                acc = f"v[{ACC0+16*nt}:{ACC0+16*nt+15}]"
                A_, B_ = (X, W) if isv else (W, X)
                a(f"v_mfma_f32_32x32x16_bf16 {acc}, {A_}, {B_}, {acc if t else 0}")
        wstamp(a, 2)
        a(f"""
s_and_b32 s{S_T2}, s{S_IT}, 63
s_lshr_b32 s{S_OB}, s{S_T2}, 1
s_lshl_b32 s{S_OB}, s{S_OB}, 19
s_and_b32 s{S_T2}, s{S_T2}, 1
s_lshl_b32 s{S_T2}, s{S_T2}, 12
s_add_u32 s{S_OB}, s{S_OB}, s{S_T2}
""")
        if isv: a(f"s_add_u32 s{S_OB}, s{S_OB}, {WS_VT}")
        else: a(f"s_cmp_lt_u32 s{S_IT}, 64\ns_cselect_b32 s{S_T2}, {WS_K}, {WS_Q}\ns_add_u32 s{S_OB}, s{S_OB}, s{S_T2}")
        for nt in range(2):
            for u in range(2):
                b = ACC0 + 16*nt + 8*u; d = 64 + 4*(2*nt + u)
                for i in range(4): a(f"v_cvt_pk_bf16_f32 v{d+i}, v{b+2*i}, v{b+2*i+1}")
                st.V.issue("st", f"buffer_store_dwordx4 v[{d}:{d+3}], v{V_ST}, {ws}, s{S_OB} offen offset:{(2*nt+u)*1024} sc1")
        wstamp(a, 5)
        return [(t_[0], t_[1] - 6) if isinstance(t_, tuple) and t_[0] == "d" else t_ for t_ in st.V.q]
    real = st.a
    scratch = Asm(); st.a = st.V.a = st.L.a = scratch
    g = globals()
    a_save = a
    def with_asm(x):
        nonlocal a
        a = x; st.a = st.V.a = st.L.a = x
    with_asm(scratch); q1 = body(False, []); q2 = body(False, q1); assert q1 == q2, (q1, q2)
    with_asm(a_save)
    a.label(Lloop)
    a(f"s_cmp_lt_u32 s{S_IT}, 64\ns_cbranch_scc1 {Lloop}_k\ns_cmp_lt_u32 s{S_IT}, 128\ns_cbranch_scc1 {Lv}")
    a.label(Lloop + "_k")
    body(False, q1)
    a(f"s_branch {Lnext}")
    a.label(Lv)
    body(True, q1)
    a.label(Lnext)
    a(f"""
s_mov_b32 s{S_IT}, s{S_ITN}
s_add_u32 s{S_I}, s{S_I}, 1
s_mov_b32 s{S_A}, s{S_B}
s_mov_b32 s{S_A+1}, s{S_B+1}
s_mov_b32 s{S_CUR}, s{S_NXT}
""")
    calc_c(1, S_ITN)
    item_src(S_ITN, S_B, S_NXT)
    a(f"s_cmp_lt_u32 s{S_IT}, 192\ns_cbranch_scc1 {Lloop}")
    a("s_waitcnt vmcnt(0) lgkmcnt(0)\ns_barrier")
    if signal: signal(a, 0x10000)

GA, UA, GL, HF = 32, 48, 64, 72
V_C0 = 8
GELU_C0 = -2.0 * 0.7978845608028654 * 1.4426950408889634
GELU_C1 = GELU_C0 * 0.044715
WG_BYTES = 576 * 4608 * 2

def work_split(a):
    L = a.label_name("Lws"); L2 = a.label_name("Lws2")
    a(f"""
s_cmp_ge_u32 s{S_RB}, {RB_MID}
s_cbranch_scc1 {L2}
s_mul_i32 s{S_IT}, s{S_J}, 9
s_add_u32 s{S_END}, s{S_IT}, 9
s_mul_i32 s{S_H}, s{S_J}, 3
s_add_u32 s{S_HE}, s{S_H}, 3
s_cmp_lt_u32 s{S_J}, 4
s_cbranch_scc1 {L}
s_sub_u32 s{S_T}, s{S_J}, 4
s_mul_i32 s{S_IT}, s{S_T}, 11
s_add_u32 s{S_IT}, s{S_IT}, 36
s_add_u32 s{S_END}, s{S_IT}, 11
s_lshl_b32 s{S_H}, s{S_T}, 1
s_add_u32 s{S_H}, s{S_H}, 12
s_add_u32 s{S_HE}, s{S_H}, 2
s_cmp_lt_u32 s{S_J}, 12
s_cbranch_scc1 {L}
s_sub_u32 s{S_T}, s{S_J}, 12
s_mul_i32 s{S_IT}, s{S_T}, 10
s_add_u32 s{S_IT}, s{S_IT}, 124
s_add_u32 s{S_END}, s{S_IT}, 10
s_branch {L}
""")
    a.label(L2)
    a(f"""
s_mul_i32 s{S_IT}, s{S_J}, 10
s_min_u32 s{S_T}, s{S_J}, 4
s_add_u32 s{S_IT}, s{S_IT}, s{S_T}
s_cmp_lt_u32 s{S_J}, 4
s_cselect_b32 s{S_T}, 11, 10
s_add_u32 s{S_END}, s{S_IT}, s{S_T}
""")
    a.label(L)

def gelu_ops(e0, e1):
    ops = []
    S_C1 = S_K + 8
    for e in range(e0, e1, 2):
        x0, x1 = GA + e, GA + e + 1; t0, t1 = 12 + (e & 2), 13 + (e & 2)
        ops += [f"v_mul_f32 v{t0}, v{x0}, v{x0}", f"v_mul_f32 v{t1}, v{x1}, v{x1}",
                f"v_fma_f32 v{t0}, v{t0}, s{S_C1}, v{V_C0}", f"v_fma_f32 v{t1}, v{t1}, s{S_C1}, v{V_C0}",
                f"v_mul_f32 v{t0}, v{t0}, v{x0}", f"v_mul_f32 v{t1}, v{t1}, v{x1}",
                f"v_exp_f32 v{t0}, v{t0}", f"v_exp_f32 v{t1}, v{t1}",
                f"v_add_f32 v{t0}, 1.0, v{t0}", f"v_add_f32 v{t1}, 1.0, v{t1}",
                f"v_rcp_f32 v{t0}, v{t0}", f"v_rcp_f32 v{t1}, v{t1}",
                f"v_mul_f32 v{t0}, v{t0}, v{x0}", f"v_mul_f32 v{t1}, v{t1}, v{x1}",
                f"v_cvt_pk_bf16_f32 v{GL + e//2}, v{t0}, v{t1}"]
    return ops

def h_ops():
    ops = []
    for e in range(0, 16, 2):
        t0, t1 = 12 + (e & 2), 13 + (e & 2)
        ops += [f"v_lshlrev_b32 v{t0}, 16, v{GL + e//2}", f"v_and_b32 v{t1}, 0xffff0000, v{GL + e//2}",
                f"v_mul_f32 v{t0}, v{t0}, v{UA+e}", f"v_mul_f32 v{t1}, v{t1}, v{UA+e+1}",
                f"v_cvt_pk_bf16_f32 v{HF + e//2}, v{t0}, v{t1}"]
    return ops

def zero_out_acc(a):
    for n in range(16):
        for r in range(16): a(f"v_accvgpr_write_b32 a{16*n + r}, 0")
    for r in range(80, 112, 2): a(f"v_mov_b64 v[{r}:{r+1}], 0")

def ffn_phase(a):
    R, D = 9, 7
    S_C1 = S_K + 8; S_FIRST = S_K + 9
    load_ptr(a, S_PQ, 'Wg'); load_ptr(a, S_PK, 'Wu'); load_ptr(a, S_PV, 'Wd')
    a(f"s_mov_b32 s{S_C1}, {f32bits(GELU_C1):#x}\nv_mov_b32 v{V_C0}, {f32bits(GELU_C0):#x}\ns_mov_b32 s{S_FIRST}, s{S_IT}\ns_waitcnt lgkmcnt(0)")
    srd(a, S_A, S_PQ, WG_BYTES); srd(a, S_B, S_PK, WG_BYTES); srd(a, S_C, S_PV, WG_BYTES)
    OOB = 0x7f000000
    def bases():
        a(f"""
s_lshl_b32 s{S_CUR}, s{S_IT}, 6
s_cmp_lt_u32 s{S_IT}, s{S_END}
s_cselect_b32 s{S_CUR}, s{S_CUR}, {OOB}
s_add_u32 s{S_T}, s{S_IT}, 1
s_lshl_b32 s{S_NXT}, s{S_T}, 6
s_cmp_lt_u32 s{S_T}, s{S_END}
s_cselect_b32 s{S_NXT}, s{S_NXT}, {OOB}
s_mul_i32 s{S_NXTC}, s{S_IT}, {32*1152}
s_sub_u32 s{S_CURC}, s{S_NXTC}, {32*1152}
s_cmp_lt_u32 s{S_IT}, s{S_END}
s_cselect_b32 s{S_NXTC}, s{S_NXTC}, {OOB}
s_cmp_gt_u32 s{S_IT}, s{S_FIRST}
s_cselect_b32 s{S_CURC}, s{S_CURC}, {OOB}
""")
    bases()
    st = Stream(a, R, D)
    def issue(p):
        pp = p % 9; nxt = p >= 9; grp, q = divmod(pp, 3)
        for i in range(3):
            if grp < 2:
                st.dma(pp, i, S_A if grp == 0 else S_B, V_VO + 1, S_NXT if nxt else S_CUR, (12*q + 4*i)*16*9216, ("d", p))
            else:
                st.dma(pp, i, S_C, V_VO + 2, S_NXTC if nxt else S_CURC, (6*q + 2*i)*64, ("d", p))
    for p in range(D): issue(p)
    zero_out_acc(a)
    a("s_waitcnt vmcnt(0)\ns_barrier")
    st.V.q = []
    for f in range(NFB - 1): st.rd(0, f, f, ("f", f))
    pre_L = list(st.L.q)
    def group(grp, full, valu):
        valu = list(valu)
        per = -(-len(valu) // 34) if full else 0
        for q in range(3):
            p = 3*grp + q
            st.V.wait(("d", p + 1))
            a("s_barrier")
            issue(p + D)
            for f in range(12):
                phi = 12*p + f; g = phi - 36*grp
                nx = phi + NFB - 1
                if not full and g < 36 - (NFB - 1): continue
                if not full and g == 36 - (NFB - 1):
                    st.L.wait_all()
                    for v in valu: a(v)
                    valu = []
                st.rd((nx // 12) % R, nx % 12, nx % NFB, ("f", nx % 108))
                if not full: continue
                st.L.wait(("f", phi))
                Wf = f"v[{FB+4*(phi%NFB)}:{FB+4*(phi%NFB)+3}]"
                if grp < 2:
                    acc = f"v[{(GA, UA)[grp]}:{(GA, UA)[grp]+15}]"
                    a(f"v_mfma_f32_32x32x16_bf16 {acc}, {Wf}, v[{XF+4*g}:{XF+4*g+3}], {acc if g else 0}")
                else:
                    n, u2 = g >> 1, g & 1
                    acc = R_(OUT(n), 16)
                    a(f"v_mfma_f32_32x32x16_bf16 {acc}, {Wf}, v[{HF+4*u2}:{HF+4*u2+3}], {acc}")
                if g >= 1:
                    for _ in range(per):
                        if valu: a(valu.pop(0))
        for v in valu: a(v)
    def rename(q): return [(t[0], t[1] - 9) for t in q]
    a_save = a
    def with_asm(x):
        nonlocal a
        a = x; st.a = st.V.a = st.L.a = x
    payload = [h_ops(), gelu_ops(0, 8), gelu_ops(8, 16)]
    with_asm(Asm())
    st.V.q = []; qs = None
    for it in range(2):
        qs = []
        for grp in range(3):
            qs.append(list(st.V.q)); st.L.q = [("f", 36*grp + k) for k in range(NFB - 1) for _ in range(2)]
            group(grp, True, payload[grp])
        st.V.q = rename(st.V.q)
    with_asm(a_save)
    Lloop = a.label_name("Lffn")
    a.label(Lloop)
    for grp in range(3):
        Ll = a.label_name("Lffn_l"); Le = a.label_name("Lffn_e")
        if grp < 2: a(f"s_cmp_lt_u32 s{S_IT}, s{S_END}\ns_cbranch_scc0 {Ll}")
        else: a(f"s_cmp_gt_u32 s{S_IT}, s{S_FIRST}\ns_cbranch_scc0 {Ll}")
        for full in (True, False):
            if not full: a.label(Ll)
            st.V.q = list(qs[grp]); st.L.q = [("f", 36*grp + k) for k in range(NFB - 1) for _ in range(2)]
            group(grp, full, payload[grp] if (full or grp != 1) else [])
            if full: a(f"s_branch {Le}")
        a.label(Le)
    a(f"s_add_u32 s{S_IT}, s{S_IT}, 1")
    bases()
    a(f"s_cmp_le_u32 s{S_IT}, s{S_END}\ns_cbranch_scc1 {Lloop}")
    a("s_waitcnt vmcnt(0) lgkmcnt(0)\ns_barrier")

R_ = R

QF, KF, KMF, VF, VMF = 112, 144, 176, 208, 240
SX, SM, PX, PM = 32, 48, 64, 72
OT, OB = 112, 32
S_MASK = 64
SCALE_LOG2E = 0.08838834764831845 * 1.4426950408889634

S_PB = S_K + 12
S_ITEM = S_K + 13
S_TBL = S_K + 14
S_REP = 7
S_G = 6
S_GR = 24

def rb_consts(a):
    S_SEG = S_K + 9
    a(f"""
s_mul_i32 s{S_PB}, s{S_RB}, {14*PART_BYTES}
s_sub_u32 s{S_T}, s{S_RB}, {RB_MID}
s_max_i32 s{S_T}, s{S_T}, 0
s_mul_i32 s{S_T}, s{S_T}, {16*PART_BYTES}
s_add_u32 s{S_PB}, s{S_PB}, s{S_T}
s_sub_u32 s{S_T}, s{S_RB}, {RB_FINE}
s_max_i32 s{S_T}, s{S_T}, 0
s_mul_i32 s{S_T}, s{S_T}, {16*PART_BYTES}
s_add_u32 s{S_PB}, s{S_PB}, s{S_T}
s_add_u32 s{S_PB}, s{S_PB}, {WS_OUTP}
s_lshl_b32 s{S_SEG}, s{S_RB}, 2
s_add_u32 s{S_SEG}, s{S_SEG}, s{S_W}
s_lshl_b32 s{S_T}, s{S_SEG}, 13
v_and_b32 v12, 31, v0
v_lshrrev_b32 v13, 5, v0
v_lshlrev_b32 v{V_ST}, 5, v12
v_lshl_add_u32 v{V_ST}, v13, 4, v{V_ST}
v_add_u32 v{V_ST}, s{S_T}, v{V_ST}
""")

def store_tiles(a, part_sgpr, nt0_sgpr, ntiles, regf):
    ws = f"s[{S_WS}:{S_WS+3}]"
    a(f"""
s_lshl_b32 s{S_T}, s{part_sgpr}, 2
s_add_u32 s{S_T}, s{S_T}, s{S_W}
s_mul_i32 s{S_T}, s{S_T}, 73728
s_add_u32 s{S_T}, s{S_T}, s{S_PB}
""")
    if nt0_sgpr is not None: a(f"s_lshl_b32 s{S_T2}, s{nt0_sgpr}, 12\ns_add_u32 s{S_T}, s{S_T}, s{S_T2}")
    a("v_lshlrev_b32 v12, 4, v0\ns_nop 7")
    for n in range(ntiles):
        for q in range(4):
            a(f"buffer_store_dwordx4 {R_(regf(n) + 4*q, 4)}, v12, {ws}, s{S_T} offen offset:{q*1024} sc1")
        a(f"s_add_u32 s{S_T}, s{S_T}, 4096")
    a("s_waitcnt vmcnt(0)\ns_barrier")
    L = a.label_name("Ldn")
    a(f"""
s_cmp_lg_u32 s{S_W}, 0
s_cbranch_scc1 {L}
s_lshl_b32 s{S_T}, s{S_RB}, 7
s_add_u32 s{S_T}, s{S_T}, {WS_CNT}
v_mov_b32 v12, 0
v_mov_b32 v13, 1
s_mov_b64 exec, 1
buffer_atomic_add v13, v12, {ws}, s{S_T} offen sc0 sc1
s_cmp_ge_u32 s{S_RB}, {RB_MID}
s_cselect_b32 s{S_T3}, {done_target(RB_MID) - 1}, {done_target(0) - 1}
s_cmp_ge_u32 s{S_RB}, {RB_FINE}
s_cselect_b32 s{S_T3}, {done_target(15) - 1}, s{S_T3}
s_waitcnt vmcnt(0)
v_readfirstlane_b32 s{S_T}, v13
s_mov_b64 exec, -1
s_cmp_lg_u32 s{S_T}, s{S_T3}
s_cbranch_scc1 {L}
s_add_u32 s{S_T}, s{S_RB}, {WS_FLAGS + 32}
v_lshlrev_b32 v12, 7, v0
v_mov_b32 v13, 1
s_mov_b32 exec_hi, 0
buffer_store_byte v13, v12, {ws}, s{S_T} offen sc1
s_mov_b64 exec, -1
""")
    a.label(L)

def attn_setup(a, Lfail):
    S_SC = S_K + 8
    load_ptr(a, S_PQ, 'Wo'); load_ptr(a, S_PK, 'x'); load_ptr(a, S_PV, 'out')
    a(f"""
s_mov_b32 s{S_SC}, {f32bits(SCALE_LOG2E):#x}
v_and_b32 v12, 31, v0
v_lshrrev_b32 v13, 5, v0
v_lshlrev_b32 v14, 2, v13
v_sub_u32 v14, v12, v14
""")
    for r in range(16):
        a(f"v_cmp_ge_i32 s[{S_MASK+2*r}:{S_MASK+2*r+1}], v14, {8*(r>>2) + (r&3)}")
    a(f"""
v_and_b32 v10, 7, v0
v_lshlrev_b32 v10, 5, v10
v_lshl_add_u32 v10, v13, 4, v10
v_lshlrev_b32 v11, 4, v12
v_lshl_add_u32 v11, v13, 3, v11
v_mul_u32_u24 v8, 1152, v12
v_lshl_add_u32 v8, v13, 3, v8
s_getpc_b64 s[{S_TBL}:{S_TBL+1}]
s_add_u32 s{S_TBL}, s{S_TBL}, queue_table@rel32@lo+4
s_addc_u32 s{S_TBL+1}, s{S_TBL+1}, queue_table@rel32@hi+12
s_waitcnt lgkmcnt(0)
""")
    srd(a, S_A, S_PQ, W_BYTES); srd(a, S_B, S_PK, 2048*1152); srd(a, S_C, S_PV, 2048*1152)
    Lh = a.label_name("Lhs"); Lo = a.label_name("Lhso")
    a(f"""
s_lshl_b32 s{S_REP}, s{S_J}, 4
s_add_u32 s{S_REP}, s{S_REP}, s{S_RB}
s_and_b32 s{S_REP}, s{S_REP}, 31
s_lshl_b32 s{S_REP}, s{S_REP}, 7
s_add_u32 s{S_REP}, s{S_REP}, {WS_FLAGS}
v_mov_b32 v12, 0
s_mov_b32 s{S_SPIN}, 0
""")
    a.label(Lh)
    a(f"""
global_load_dword v14, v12, s[{S_DBG}:{S_DBG+1}] offset:{DBG_XMASK*4 + 4} sc1
s_add_u32 s{S_SPIN}, s{S_SPIN}, 1
s_cmp_gt_u32 s{S_SPIN}, 0x40000
s_cbranch_scc1 {Lfail}
s_waitcnt vmcnt(0)
v_readfirstlane_b32 s{S_T}, v14
s_lshr_b32 s{S_T}, s{S_T}, 24
s_cmp_ge_u32 s{S_T}, 32
s_cbranch_scc1 {Lo}
s_sleep 64
s_branch {Lh}
""")
    a.label(Lo)

ITEM_TL = False
def item_stamp(a, k):
    if not ITEM_TL: return
    L = a.label_name("Lits")
    a(f"""
s_cmp_lg_u32 s{S_W}, 3
s_cbranch_scc1 {L}
s_memrealtime s[98:99]
s_lshl_b32 s100, s101, 2
s_add_u32 s100, s100, {63*MiB + 4*k}
s_waitcnt lgkmcnt(0)
v_mov_b32 v14, s98
v_mov_b32 v15, 0
s_mov_b64 exec, 1
buffer_store_dword v14, v15, s[{S_WS}:{S_WS+3}], s100 offen
s_mov_b64 exec, -1
""")
    a.label(L)

def next_item(a, Lexit):
    L = a.label_name("Lq"); Lpk = a.label_name("Lqpk"); Ltk = a.label_name("Lqtk"); Lgot = a.label_name("Lqgot"); Lng = a.label_name("Lqng")
    ng = len(queue_groups())
    GT = 72 + 24
    a(f"""
s_barrier
v_mov_b32 v12, 0
s_cmp_lg_u32 s{S_W}, 0
s_cbranch_scc1 {L}
s_mov_b64 exec, 1
""")
    a.label(Lng)
    a(f"""
s_mov_b32 s{S_T}, -1
s_cmp_ge_u32 s{S_G}, {ng}
s_cbranch_scc1 {Lgot}
s_lshl_b32 s{S_T}, s{S_G}, 4
s_load_dwordx4 s[{S_GR}:{S_GR+3}], s[{S_TBL}:{S_TBL+1}], s{S_T}
s_mov_b32 s{S_SPIN}, 0
""")
    a.label(Lpk)
    a(f"""
buffer_load_ubyte v15, v12, s[{S_WS}:{S_WS+3}], s{S_REP} offen sc1
s_add_u32 s{S_SPIN}, s{S_SPIN}, 1
s_cmp_gt_u32 s{S_SPIN}, 0x20000
s_cbranch_scc1 {Ltk}
s_waitcnt vmcnt(0) lgkmcnt(0)
v_readfirstlane_b32 s{S_T2}, v15
s_cmp_ge_u32 s{S_T2}, s{S_GR}
s_cbranch_scc1 {Ltk}
s_sleep 16
s_branch {Lpk}
""")
    a.label(Ltk)
    a(f"""
s_waitcnt vmcnt(0) lgkmcnt(0)
v_mov_b32 v14, 1
buffer_atomic_add v14, v12, s[{S_WS}:{S_WS+3}], s{S_GR+1} offen sc0 sc1
s_waitcnt vmcnt(0)
v_readfirstlane_b32 s{S_T}, v14
s_cmp_lt_u32 s{S_T}, s{S_GR+3}
s_cselect_b32 s{S_T2}, 0, 1
s_add_u32 s{S_G}, s{S_G}, s{S_T2}
s_cmp_lg_u32 s{S_T2}, 0
s_cbranch_scc1 {Lng}
s_add_u32 s{S_T}, s{S_T}, s{S_GR+2}
""")
    a.label(Lgot)
    a(f"""
v_mov_b32 v14, s{S_T}
ds_write_b32 v12, v14
s_mov_b64 exec, -1
""")
    a.label(L)
    a(f"""
s_waitcnt lgkmcnt(0)
s_barrier
ds_read_b32 v14, v12
s_waitcnt lgkmcnt(0)
v_readfirstlane_b32 s{S_T}, v14
s_barrier
s_cmp_eq_u32 s{S_T}, -1
s_cbranch_scc1 {Lexit}
s_lshl_b32 s{S_T}, s{S_T}, 2
s_add_u32 s{S_T2}, s{S_T}, {16*ng}
s_load_dword s{S_ITEM}, s[{S_TBL}:{S_TBL+1}], s{S_T2}
s_waitcnt lgkmcnt(0)
s_bfe_u32 s{S_RB}, s{S_ITEM}, 0x40018
s_mov_b32 s101, s{S_T}
""")
    item_stamp(a, 0)

def attn_item(a, wait_head, tl=None, full=False):
    ws = f"s[{S_WS}:{S_WS+3}]"
    R = 12
    S_SC = S_K + 8; S_SEG = S_K + 9; S_O1, S_O2 = S_K + 10, S_K + 11
    S_TH, S_PART = S_IT, S_ITN
    ACC = OUT if full else (lambda n: 256 + 16*n)
    if full: a(f"s_mov_b32 s{S_TH}, 0")
    else: a(f"""
s_bfe_u32 s{S_H}, s{S_ITEM}, 0x80010
s_bfe_u32 s{S_HE}, s{S_ITEM}, 0x80008
s_add_u32 s{S_HE}, s{S_HE}, s{S_H}
s_and_b32 s{S_TH}, s{S_ITEM}, 3
s_bfe_u32 s{S_PART}, s{S_ITEM}, 0x60002
""")
    OOB = 0x7f000000
    def bases():
        a(f"""
s_mul_i32 s{S_CUR}, s{S_H}, 147456
s_mul_i32 s{S_T}, s{S_TH}, 384
s_add_u32 s{S_CUR}, s{S_CUR}, s{S_T}
s_add_u32 s{S_NXT}, s{S_CUR}, 147456
s_add_u32 s{S_T}, s{S_H}, 1
s_cmp_lt_u32 s{S_T}, s{S_HE}
s_cselect_b32 s{S_NXT}, s{S_NXT}, {OOB}
""")
    bases()
    st = Stream(a, R, 4)
    S_SLOT = S_CURC
    def issue(te, nxt):
        for i in range(3):
            a(f"s_add_u32 s{S_T2}, s{S_WM0}, {te*12288 + i*4096}")
            a(f"s_xor_b32 s{S_T3}, s{S_SLOT}, {49152 if nxt else 0}\ns_add_u32 m0, s{S_T2}, s{S_T3}")
            a(f"s_add_u32 s{S_T}, s{S_NXT if nxt else S_CUR}, {te*32*1152 + 2*i*64}")
            a(f"buffer_load_dwordx4 v{V_VO+2}, s[{S_A}:{S_A+3}], s{S_T} offen lds")
    D = 10
    def issue_f(p):
        pp = p % 12; te, q = divmod(pp, 3)
        for i in range(3):
            st.dma(pp, i, S_A, V_VO + 2, S_NXT if p >= 12 else S_CUR, te*32*1152 + (6*q + 2*i)*64, ("d", p))
    if full:
        for p in range(D): issue_f(p)
    else:
        a(f"s_mov_b32 s{S_SLOT}, 0")
        for te in range(4): issue(te, False)
        for n in range(6):
            for r in range(16): a(f"v_accvgpr_write_b32 a{16*n + r}, 0")
    def load_qkv(hreg):
        a(f"s_lshl_b32 s{S_O1}, s{hreg}, 19\ns_add_u32 s{S_O2}, s{S_O1}, {WS_K}")
        for s_ in range(8):
            if s_ == 4: a(f"s_add_u32 s{S_O1}, s{S_O1}, 4096\ns_add_u32 s{S_O2}, s{S_O2}, 4096")
            a(f"buffer_load_dwordx4 v[{QF+4*s_}:{QF+4*s_+3}], v{V_ST}, {ws}, s{S_O1} offen offset:{(s_&3)*1024} sc1")
            a(f"buffer_load_dwordx4 v[{KF+4*s_}:{KF+4*s_+3}], v{V_ST}, {ws}, s{S_O2} offen offset:{(s_&3)*1024} sc1")
        a(f"s_lshl_b32 s{S_O1}, s{hreg}, 19\ns_add_u32 s{S_O1}, s{S_O1}, {WS_VT}")
        for s_ in range(8):
            if s_ == 4: a(f"s_add_u32 s{S_O1}, s{S_O1}, 4096")
            a(f"buffer_load_dwordx4 v[{VF+4*s_}:{VF+4*s_+3}], v{V_ST}, {ws}, s{S_O1} offen offset:{(s_&3)*1024} sc1")
    def load_m(hreg):
        a(f"""
s_lshl_b32 s{S_O1}, s{S_SEG}, 5
s_add_u32 s{S_O1}, s{S_O1}, s{hreg}
s_lshl_b32 s{S_O1}, s{S_O1}, 11
s_add_u32 s{S_O2}, s{S_O1}, {WS_VM}
s_add_u32 s{S_O1}, s{S_O1}, {WS_KM}
""")
        for s_ in range(8):
            a(f"buffer_load_dwordx4 v[{KMF+4*s_}:{KMF+4*s_+3}], v10, {ws}, s{S_O1} offen offset:{s_*256} sc1")
        for te in range(4):
            a(f"buffer_load_dwordx2 v[{VMF+4*te}:{VMF+4*te+1}], v11, {ws}, s{S_O2} offen offset:{te*512} sc1")
    for te in range(4): a(f"v_mov_b64 v[{VMF+4*te+2}:{VMF+4*te+3}], 0")
    wait_head(a, 0)
    load_qkv(S_H)
    wait_head(a, 1)
    if tl: tl(a)
    if not full: item_stamp(a, 1)
    load_m(S_H)
    Lloop = a.label_name("Lattn")
    a.label(Lloop)
    Lfirst = a.label_name("Lattn1")
    if full:
        pass
    a("s_waitcnt vmcnt(20)")
    for s_ in range(8):
        a(f"v_mfma_f32_32x32x16_bf16 v[{SX}:{SX+15}], v[{KF+4*s_}:{KF+4*s_+3}], v[{QF+4*s_}:{QF+4*s_+3}], {f'v[{SX}:{SX+15}]' if s_ else 0}")
    for s_ in range(8):
        a(f"s_waitcnt vmcnt({11 - s_})")
        a(f"v_mfma_f32_32x32x16_bf16 v[{SM}:{SM+15}], v[{KMF+4*s_}:{KMF+4*s_+3}], v[{QF+4*s_}:{QF+4*s_+3}], {f'v[{SM}:{SM+15}]' if s_ else 0}")
    a("v_mov_b32 v12, 0xff800000")
    for r in range(16):
        a(f"v_cndmask_b32 v{SX+r}, v12, v{SX+r}, s[{S_MASK+2*r}:{S_MASK+2*r+1}]")
    xs = [SX + r for r in range(16)]; ms = [SM + r for r in range(4)]; vals = xs + ms
    a(f"v_max3_f32 v12, v{xs[0]}, v{xs[1]}, v{xs[2]}")
    for i in range(3, 15, 2): a(f"v_max3_f32 v12, v12, v{xs[i]}, v{xs[i+1]}")
    a(f"v_max_f32 v12, v12, v{xs[15]}")
    a(f"""
v_max3_f32 v12, v12, v{ms[0]}, v{ms[1]}
v_max3_f32 v12, v12, v{ms[2]}, v{ms[3]}
v_mov_b32 v13, v12
v_permlane32_swap_b32 v12, v13
v_max_f32 v12, v12, v13
v_mul_f32 v12, s{S_SC}, v12
""")
    for v in vals: a(f"v_fma_f32 v{v}, v{v}, s{S_SC}, -v12")
    for v in vals: a(f"v_exp_f32 v{v}, v{v}")
    a(f"v_add_f32 v12, v{vals[0]}, v{vals[1]}\nv_add_f32 v13, v{vals[2]}, v{vals[3]}")
    for i in range(4, 20, 2): a(f"v_add_f32 v12, v12, v{vals[i]}\nv_add_f32 v13, v13, v{vals[i+1]}")
    a(f"""
v_add_f32 v12, v12, v13
v_mov_b32 v13, v12
v_permlane32_swap_b32 v12, v13
v_add_f32 v12, v12, v13
v_rcp_f32 v12, v12
""")
    for v in range(0, 20, 2): a(f"v_pk_mul_f32 v[{vals[v]}:{vals[v]+1}], v[{vals[v]}:{vals[v]+1}], v[12:13] op_sel_hi:[1,0]")
    for i in range(8): a(f"v_cvt_pk_bf16_f32 v{PX+i}, v{SX+2*i}, v{SX+2*i+1}")
    a(f"v_cvt_pk_bf16_f32 v{PM}, v{SM}, v{SM+1}\nv_cvt_pk_bf16_f32 v{PM+1}, v{SM+2}, v{SM+3}\nv_mov_b64 v[{PM+2}:{PM+3}], 0")
    a("s_waitcnt vmcnt(0)")
    for te in range(4):
        o = f"v[{OT+16*te}:{OT+16*te+15}]"
        a(f"v_mfma_f32_32x32x16_bf16 {o}, v[{VMF+4*te}:{VMF+4*te+3}], v[{PM}:{PM+3}], 0")
        a(f"v_mfma_f32_32x32x16_bf16 {o}, v[{VF+8*te}:{VF+8*te+3}], v[{PX}:{PX+3}], {o}")
        a(f"v_mfma_f32_32x32x16_bf16 {o}, v[{VF+8*te+4}:{VF+8*te+7}], v[{PX+4}:{PX+7}], {o}")
    if not full: a(f"v_add_u32 v14, s{S_SLOT}, v{V_FR}")
    a("s_barrier")
    if not full:
        for te in range(4): issue(te, True)
    for te in range(4):
        for i in range(8): a(f"v_cvt_pk_bf16_f32 v{OB+8*te+i}, v{OT+16*te+2*i}, v{OT+16*te+2*i+1}")
    a(f"s_add_u32 s{S_HN}, s{S_H}, 1\ns_sub_u32 s{S_T}, s{S_HE}, 1\ns_min_u32 s{S_HN}, s{S_HN}, s{S_T}")
    Lnl = a.label_name("Lnl")
    a(f"s_cmp_eq_u32 s{S_HN}, s{S_H}\ns_cbranch_scc1 {Lnl}")
    load_qkv(S_HN); load_m(S_HN)
    a.label(Lnl)
    if full:
        st.V.q = []; st.L.q = []
        for f in range(NFB - 1): st.rd(0, f, f, ("f", f))
        for p in range(12):
            te, q = divmod(p, 3)
            if p:
                st.V.wait(("d", p + 1))
                a("s_barrier")
            issue_f(p + D)
            for f in range(12):
                phi = 12*p + f; g = phi - 36*te
                nx = phi + NFB - 1
                if nx < 144: st.rd(nx // 12, nx % 12, nx % NFB, ("f", nx))
                st.L.wait(("f", phi))
                n, u2 = g >> 1, g & 1
                acc = R_(OUT(n), 16)
                a(f"v_mfma_f32_32x32x16_bf16 {acc}, v[{FB+4*(phi%NFB)}:{FB+4*(phi%NFB)+3}], v[{OB+8*te+4*u2}:{OB+8*te+4*u2+3}], {acc}")
    else:
        L = Ctr(a, "lgkmcnt", 15)
        def rd(phi):
            d = FB + 4*(phi % NFB); off = phi*1024
            L.issue(phi, f"ds_read_b64_tr_b16 v[{d}:{d+1}], v14 offset:{off}")
            L.issue(phi, f"ds_read_b64_tr_b16 v[{d+2}:{d+3}], v14 offset:{off+256}")
        for phi in range(NFB - 1): rd(phi)
        for phi in range(48):
            te, f = divmod(phi, 12); n, u2 = f >> 1, f & 1
            if phi + NFB - 1 < 48: rd(phi + NFB - 1)
            L.wait(phi)
            acc = R_(ACC(n), 16)
            a(f"v_mfma_f32_32x32x16_bf16 {acc}, v[{FB+4*(phi%NFB)}:{FB+4*(phi%NFB)+3}], v[{OB+8*te+4*u2}:{OB+8*te+4*u2+3}], {acc}")
    a(f"s_add_u32 s{S_H}, s{S_H}, 1\ns_xor_b32 s{S_SLOT}, s{S_SLOT}, 49152")
    bases()
    a(f"s_cmp_lt_u32 s{S_H}, s{S_HE}\ns_cbranch_scc1 {Lloop}")
    if full: return
    a(f"s_mul_i32 s{S_TH}, s{S_TH}, 6")
    item_stamp(a, 2)
    store_tiles(a, S_PART, S_TH, 6, ACC)

def reduce_item(a, Lfail):
    ws = f"s[{S_WS}:{S_WS+3}]"
    S_SEG = S_K + 9
    S_NT, S_Q, S_NQ, S_XO = S_IT, S_ITN, S_H, S_HE
    L1 = a.label_name("Lrw"); L2 = a.label_name("Lrw2"); Lq = a.label_name("Lrq"); Lbig = a.label_name("Lrbig"); Lfin = a.label_name("Lrfin")
    a(f"""
s_bfe_u32 s{S_NT}, s{S_ITEM}, 0x80010
s_bfe_u32 s{S_Q}, s{S_ITEM}, 0x80008
s_and_b32 s{S_NQ}, s{S_ITEM}, 0xff
v_mov_b32 v12, s{S_RB}
v_lshlrev_b32 v15, 4, v0
s_mov_b32 s{S_SPIN}, 0
""")
    a(f"s_cmp_lg_u32 s{S_W}, 0\ns_cbranch_scc1 {L2}")
    a.label(L1)
    a(f"""
buffer_load_ubyte v14, v12, {ws}, s{S_REP} offen offset:32 sc1
s_add_u32 s{S_SPIN}, s{S_SPIN}, 1
s_cmp_gt_u32 s{S_SPIN}, 0x100000
s_cbranch_scc1 {Lfail}
s_waitcnt vmcnt(0)
v_readfirstlane_b32 s{S_T}, v14
s_cmp_lg_u32 s{S_T}, 0
s_cbranch_scc1 {L2}
s_sleep 6
s_branch {L1}
""")
    a.label(L2)
    a("s_barrier")
    item_stamp(a, 1)
    if ITEM_TL: a("v_lshlrev_b32 v15, 4, v0")
    a.label(Lq)
    a(f"""
s_mul_i32 s{S_T}, s{S_W}, 73728
s_add_u32 s{S_T}, s{S_T}, s{S_PB}
s_lshl_b32 s{S_T2}, s{S_NT}, 12
s_add_u32 s{S_T}, s{S_T}, s{S_T2}
s_lshl_b32 s{S_T2}, s{S_Q}, 10
s_add_u32 s{S_T}, s{S_T}, s{S_T2}
s_mul_i32 s{S_XO}, s{S_SEG}, {32*1152}
s_lshl_b32 s{S_T2}, s{S_NT}, 6
s_add_u32 s{S_XO}, s{S_XO}, s{S_T2}
s_lshl_b32 s{S_T2}, s{S_Q}, 4
s_add_u32 s{S_XO}, s{S_XO}, s{S_T2}
buffer_load_dwordx2 v[12:13], v8, s[{S_B}:{S_B+3}], s{S_XO} offen
s_cmp_ge_u32 s{S_RB}, {RB_FINE}
s_cbranch_scc1 {Lbig}
s_cmp_ge_u32 s{S_RB}, {RB_MID}
s_cbranch_scc1 {Lbig}_m
""")
    P0 = 32
    for np_, lab in ((n_parts(0), None), (n_parts(RB_MID), Lbig + '_m'), (n_parts(15), Lbig)):
        if lab: a.label(lab)
        for p in range(np_):
            a(f"buffer_load_dwordx4 v[{P0+4*p}:{P0+4*p+3}], v15, {ws}, s{S_T} offen sc1\ns_add_u32 s{S_T}, s{S_T}, {PART_BYTES}")
        for p in range(2, np_):
            a(f"s_waitcnt vmcnt({np_-1-p})")
            d = P0 + 4*(p & 1)
            a(f"v_pk_add_f32 v[{d}:{d+1}], v[{d}:{d+1}], v[{P0+4*p}:{P0+4*p+1}]\nv_pk_add_f32 v[{d+2}:{d+3}], v[{d+2}:{d+3}], v[{P0+4*p+2}:{P0+4*p+3}]")
        if lab != Lbig: a(f"s_branch {Lfin}")
    a.label(Lfin)
    a(f"""
v_pk_add_f32 v[{P0}:{P0+1}], v[{P0}:{P0+1}], v[{P0+4}:{P0+5}]
v_pk_add_f32 v[{P0+2}:{P0+3}], v[{P0+2}:{P0+3}], v[{P0+6}:{P0+7}]
v_lshlrev_b32 v16, 16, v12
v_and_b32 v17, 0xffff0000, v12
v_lshlrev_b32 v18, 16, v13
v_and_b32 v19, 0xffff0000, v13
v_pk_add_f32 v[{P0}:{P0+1}], v[{P0}:{P0+1}], v[16:17]
v_pk_add_f32 v[{P0+2}:{P0+3}], v[{P0+2}:{P0+3}], v[18:19]
v_cvt_pk_bf16_f32 v16, v{P0}, v{P0+1}
v_cvt_pk_bf16_f32 v17, v{P0+2}, v{P0+3}
buffer_store_dwordx2 v[16:17], v8, s[{S_C}:{S_C+3}], s{S_XO} offen
s_add_u32 s{S_Q}, s{S_Q}, 1
s_sub_u32 s{S_NQ}, s{S_NQ}, 1
s_cmp_lg_u32 s{S_NQ}, 0
s_cbranch_scc1 {Lq}
""")

def queue_loop(a, Lexit, tl=None):
    Ltop = a.label_name("Lqtop"); Lred = a.label_name("Lqred")
    a(f"s_mov_b32 s{S_G}, 0")
    a.label(Ltop)
    next_item(a, Lexit)
    rb_consts(a)
    a(f"s_bitcmp1_b32 s{S_ITEM}, 31\ns_cbranch_scc1 {Lred}")
    attn_item(a, make_wait_head(Lexit), tl)
    item_stamp(a, 3)
    a(f"s_branch {Ltop}")
    a.label(Lred)
    reduce_item(a, Lexit)
    a("s_waitcnt vmcnt(0)") if ITEM_TL else None
    item_stamp(a, 3)
    a(f"s_branch {Ltop}")

def queue_table():
    g = queue_groups(); s = ""; first = 0
    for gate, off, sh, it in g:
        s += f".long {gate}, {off}, {first}, {len(it)}\n"; first += len(it)
    s += "".join(f".long {x:#x}\n" for x in queue_items())
    return ".p2align 4\n.type queue_table,@object\nqueue_table:\n" + s + f".size queue_table, {16*len(g) + 4*first}\n"

def signal_rb(a, val, base=DBG_KVRDY):
    L = a.label_name("Lsig")
    a(f"""
s_cmp_lg_u32 s{S_W}, 0
s_cbranch_scc1 {L}
s_lshl_b32 s{S_T}, s{S_RB}, 2
v_mov_b32 v12, s{S_T}
v_mov_b32 v13, {val}
s_mov_b64 exec, 1
global_atomic_add v12, v13, s[{S_DBG}:{S_DBG+1}] offset:{base*4} sc1
s_mov_b64 exec, -1
""")
    a.label(L)

def make_wait_head(Lfail):
    def wait_head(a, which):
        S_SEG = S_K + 9
        L1 = a.label_name("Lwh1"); L2 = a.label_name("Lwh2"); L3 = a.label_name("Lwh3")
        a(f"s_cmp_lg_u32 s{S_W}, 0\ns_cbranch_scc1 {L3}\ns_add_u32 s{S_NXTC}, s{S_SEG}, 3")
        if which == 0: a(f"s_lshl_b32 s{S_T}, s{S_RB}, 2\nv_mov_b32 v12, s{S_T}")
        else: a(f"v_mov_b32 v12, 0")
        a(f"s_mov_b32 s{S_SPIN}, 0")
        a.label(L1)
        if which: a(f"buffer_load_ubyte v14, v12, s[{S_WS}:{S_WS+3}], s{S_REP} offen sc1")
        else: a(f"global_load_dword v14, v12, s[{S_DBG}:{S_DBG+1}] offset:{DBG_KVRDY*4} sc1")
        a(f"""
s_add_u32 s{S_SPIN}, s{S_SPIN}, 1
s_cmp_gt_u32 s{S_SPIN}, 0x40000
s_cbranch_scc1 {Lfail}
s_waitcnt vmcnt(0)
v_readfirstlane_b32 s{S_T}, v14
""")
        if which == 0:
            a(f"s_cmp_eq_u32 s{S_T}, {14 + (14 << 16)}\ns_cbranch_scc1 {L3}\ns_sleep 32\ns_branch {L1}")
        else:
            a(f"""
s_cmp_gt_u32 s{S_T}, s{S_NXTC}
s_cbranch_scc1 {L3}
s_add_u32 s{S_T}, s{S_T}, 2
s_cmp_ge_u32 s{S_T}, s{S_NXTC}
s_cbranch_scc1 {L2}
s_sleep 48
""")
            a.label(L2)
            a(f"s_sleep 4\ns_branch {L1}")
        a.label(L3)
        a("s_barrier")
    return wait_head


def own_attention(a, Lexit):
    L = a.label_name("Lnoown")
    attn_setup(a, Lexit)
    rb_consts(a)
    a(f"s_cmp_ge_u32 s{S_RB}, {RB_MID}\ns_cbranch_scc1 {L}")
    attn_item(a, make_wait_head(Lexit), full=True)
    a.label(L)
    store_tiles(a, S_J, None, 18, OUT)
```

```python
import sys
from asmlib import *
from layout import *
import worker as W, rec, reduce as RD
from rec import S_WS
from entry import *
HDR = open("parallel_sum__memory_aug_recurrent_mem_tr__geglu_ffn__prompt.s.ref").read().split("; Override launch")[0]

def worker_ids(a):
    a(f"""
s_and_b32 s{W.S_RB}, s{S_TKT}, 15
s_lshr_b32 s{W.S_J}, s{S_TKT}, 4
s_lshl_b32 s77, s{S_GRP}, 1
s_add_u32 s{W.S_J}, s{W.S_J}, s77
""")
def chk(a):
    for b in a.check_branches(): print("HAZARD", b)
    return a.text()
TL = len(sys.argv) > 1 and sys.argv[1] == "tl"
def tl(a, i, wreg):
    if not TL: return
    L = a.label_name("Ltl")
    a(f"""
s_cmp_lg_u32 s{wreg}, 0
s_cbranch_scc1 {L}
s_memrealtime s[98:99]
s_lshl_b32 s100, s{S_GRP2}, 5
s_add_u32 s100, s100, s{S_TKT2}
s_lshl_b32 s100, s100, 6
s_add_u32 s100, s100, {62*MiB + 4*i}
s_waitcnt lgkmcnt(0)
v_mov_b32 v{TLV}, s98
v_mov_b32 v{TLV+1}, 0
s_mov_b64 exec, 1
buffer_store_dword v{TLV}, v{TLV+1}, s[{S_WS}:{S_WS+3}], s100 offen
s_mov_b64 exec, -1
""")
    a.label(L)
S_GRP2, S_TKT2 = 96, 97
TLV = 14
W.ITEM_TL = TL
def k_main():
    a = Asm(); a.uid = 1000
    entry(a, "Lexit")
    a(f"s_mov_b32 s{S_GRP2}, s{S_GRP}\ns_mov_b32 s{S_TKT2}, s{S_TKT}")
    a(f"s_cmp_eq_u32 s{S_GRP}, 7\ns_cbranch_scc1 Lrec")
    worker_ids(a)
    a(f"s_mov_b32 s{W.S_DBG}, s{S_DBGP}\ns_mov_b32 s{W.S_DBG+1}, s{S_DBGP+1}")
    global TLV
    TLV = 14
    W.setup(a); tl(a, 0, W.S_W); W.projections(a, lambda a_, i: tl(a_, i, W.S_W)); tl(a, 2, W.S_W)
    W.work_split(a); W.ffn_phase(a); tl(a, 3, W.S_W)
    W.own_attention(a, "Lexit"); tl(a, 4, W.S_W)
    W.queue_loop(a, "Lwdone", tl=lambda a_: tl(a_, 5, W.S_W))
    a.label("Lwdone"); tl(a, 6, W.S_W)
    a("s_waitcnt vmcnt(0)\ns_endpgm")
    a.label("Lrec")
    a(f"""
s_mov_b32 s{rec.S_H}, s{S_TKT}
s_mov_b32 s{rec.S_DBG}, s{S_DBGP}
s_mov_b32 s{rec.S_DBG+1}, s{S_DBGP+1}
s_load_dwordx2 s[{rec.S_PTR}:{rec.S_PTR+1}], s[0:1], {KA['mem0']}
s_load_dwordx2 s[{rec.S_PTR+2}:{rec.S_PTR+3}], s[0:1], {KA['Wq']}
s_load_dwordx2 s[{rec.S_PTR+4}:{rec.S_PTR+5}], s[0:1], {KA['Wk']}
s_load_dwordx2 s[{rec.S_PTR+6}:{rec.S_PTR+7}], s[0:1], {KA['Wv']}
s_load_dwordx2 s[{rec.S_PTR+8}:{rec.S_PTR+9}], s[0:1], {KA['Wo']}
s_waitcnt lgkmcnt(0)
""")
    kvw = rec.make_kv_wait("Lexit")
    TLV = 74
    rec.setup_consts(a); tl(a, 0, rec.S_W); rec.prologue(a); tl(a, 1, rec.S_W)
    rec.handshake(a, "Lr_fast", "Lr_slow", "Lexit")
    a.label("Lr_fast"); tl(a, 2, rec.S_W); rec.step_loop(a, True, "Lr_done", "Lexit", kv_wait=kvw, tlf=lambda a_: tl(a_, 3, rec.S_W))
    a.label("Lr_slow"); rec.step_loop(a, False, "Lr_done", "Lexit", kv_wait=kvw)
    a.label("Lr_done"); rec.finish(a); tl(a, 4, rec.S_W); a("s_waitcnt vmcnt(0)")
    a("Lexit:\ns_endpgm"); return chk(a)
s = HDR
KN = "parallel_sum__memory_aug_recurrent_mem_tr__geglu_ffn__prompt_kernel"
s += "; @launch grid=(256,1,1) block=(256,1,1) lds=163840\n"
s += '.amdgcn_target "amdgcn-amd-amdhsa--gfx950"\n.text\n'
for n, t in ((KN, k_main()),):
    s += kernel_header(n) + t
s += '.section .rodata,"a"\n'
s += kernel_desc(KN, 512, 102, 256)
s += W.queue_table()
open("main_tl.s" if TL else "parallel_sum__memory_aug_recurrent_mem_tr__geglu_ffn__prompt.s", "w").write(s)
print(len(s), "bytes")
```

```python
MiB = 1 << 20
KA = dict(x=0, mem0=8, Wq=16, Wk=24, Wv=32, Wo=40, seg=48, Bx=56, Wg=64, Wu=72, Wd=80, out=88, dbg=96, ws=104)
WS_Q = 0
WS_K = 16 * MiB
WS_VT = 32 * MiB
WS_KM = 48 * MiB
WS_VM = 52 * MiB
WS_PART = 56 * MiB
WS_MEMT = 57 * MiB
MEMT_STRIDE = 16384
WS_OUTP = 64 * MiB
W_BYTES = 576 * 4096 * 2
DBG_TICKET = 0
DBG_X0 = 8
DBG_READY = 9
DBG_XMASK = 10
DBG_PROG = 16
DBG_KVRDY = 32
DBG_QHEAD = 12
DBG_DONE = 48
RB_MID, RB_FINE = 12, 14
PART_BYTES = 4 * 73728
def n_att_groups(rb): return 32 if rb >= RB_FINE else (16 if rb >= RB_MID else 0)
def n_parts(rb): return 14 + n_att_groups(rb)
def part_base(rb): return WS_OUTP + sum(n_parts(r) for r in range(rb)) * PART_BYTES
def done_target(rb): return 14 + 3 * n_att_groups(rb)
assert part_base(16) <= 256 * MiB
WS_FLAGS = 58 * MiB
WS_HDONE = 58 * MiB + 32768
WS_CNT = 58 * MiB + 65536
def queue_groups():
    g = []
    for rb in range(16):
        ng = n_att_groups(rb)
        if ng:
            G = 32 // ng
            g.append((4*rb - 1, WS_CNT + (32 + rb - RB_MID) * 128, 0, [(rb << 24) | ((k*G) << 16) | (G << 8) | t | ((14 + k) << 2) for k in range(ng) for t in range(3)]))
    for rb in range(16):
        gate = min(64, 4*rb + 4 + {0: 5, 16: 2, 32: 0}[n_att_groups(rb)])
        if rb >= RB_FINE or rb < RB_MID - 1: it = [(1 << 31) | (rb << 24) | (nt << 16) | (q2 << 8) | 1 for nt in range(18) for q2 in range(2)]
        else: it = [(1 << 31) | (rb << 24) | (nt << 16) | 2 for nt in range(18)]
        g.append((gate, WS_CNT + (16 + rb) * 128, 0, it))
    g.sort(key=lambda x: x[0])
    return g
def queue_items(): return [x for g in queue_groups() for x in g[3]]
```

```python
from asmlib import *
from layout import *
import struct

L_WV = 0
L_MEMT = 147456
L_XT = 156672
L_SP = 158720
L_END = 163840
assert L_SP + 4 * 1280 == L_END

V_IDX, V_ARD, V_WV, V_XTW, V_XTR, V_SPR, V_SP0R, V_OW, V_OR, V_PST, V_PLD, V_MST, V_VX, V_JUNK, V_T = range(1, 16)
VX1 = 16
VX0 = 76
KX = 20
ACC = 28
AB = 52

def WQ(c, t): return 256 + (c * 2 + t) * 8
def WK(c, t):
    i = c * 2 + t
    return 256 + 144 + i * 8 if i < 14 else 80 + (i - 14) * 8
def WO(n, ks): return 112 + (n * 2 + ks) * 8

S_H, S_W = 3, 4
S_WS = 8
S_WT = 12
S_PTR = 16
S_DBG = 26
S_PST, S_PLD, S_PST1, S_PST2 = 28, 29, 30, 31
S_L8 = 32
S_HF8 = 34
S_XK = 36
S_MCUR, S_MNXT, S_M3 = 37, 38, 39
S_KX, S_VX, S_KM, S_VM = 40, 41, 42, 43
S_TAG, S_STEP, S_TMP, S_TMP2 = 44, 45, 46, 47
S_W1280, S_SP0K, S_MLK, S_FL, S_HD = 48, 49, 50, 51, 52
S_PUB = 54
S_SC = 56
S_XCC = 57
S_MG = 58
S_PF, S_PF2 = 59, 60
S_T0 = 62
S_SPIN = 66
S_POIS = 67

SCALE_LOG2E = 0.08838834764831845 * 1.4426950408889634
def f32bits(x): return struct.unpack("<I", struct.pack("<f", x))[0]

def gamma_base(g):
    w, rho = divmod(g, 9)
    if rho < 8: return 144*w + 32*(rho >> 1) + 8*(rho & 1), 16
    return 144*w + 128, 8

class Ctr:
    def __init__(self, a, name, cap): self.a, self.name, self.cap, self.q = a, name, cap, []
    def issue(self, tag, text):
        self.a(text); self.q.append(tag)
    def wait(self, tag):
        if tag not in self.q: return
        last = max(i for i, t in enumerate(self.q) if t == tag)
        n = len(self.q) - 1 - last
        assert n <= self.cap, (tag, n)
        self.a(f"s_waitcnt {self.name}({n})"); self.q = self.q[last+1:]
    def wait_all(self):
        self.a(f"s_waitcnt {self.name}(0)"); self.q = []

def setup_consts(a):
    a(f"""
v_lshrrev_b32 v{V_T}, 6, v0
v_and_b32 v0, 63, v0
v_readfirstlane_b32 s{S_W}, v{V_T}
v_and_b32 v40, 15, v0
v_lshrrev_b32 v41, 4, v0
v_bfe_u32 v42, v0, 2, 2
v_and_b32 v43, 3, v0
v_and_b32 v44, 7, v0
v_bfe_u32 v45, v0, 3, 1
""")
    a(f"""
v_mov_b32 v46, 0x4444
v_mov_b32 v47, 0xeeee
v_and_b32 v48, 2, v0
v_cmp_eq_u32 vcc, 0, v48
v_cndmask_b32 v{V_IDX}, v47, v46, vcc
""")
    a(f"""
v_lshrrev_b32 v46, 1, v41
v_lshlrev_b32 v46, 4, v46
v_and_b32 v47, 1, v41
v_lshl_add_u32 v46, v47, 2, v46
v_add_u32 v46, v46, v42
v_lshlrev_b32 v46, 5, v46
v_lshl_add_u32 v46, v43, 3, v46
v_add_u32 v{V_ARD}, {L_MEMT}, v46
s_mul_i32 s{S_TMP}, s{S_W}, 36864
v_lshlrev_b32 v46, 4, v0
v_add_u32 v{V_WV}, s{S_TMP}, v46
""")
    a(f"""
s_lshl_b32 s{S_TMP}, s{S_W}, 9
s_add_u32 s{S_TMP}, s{S_TMP}, {L_XT}
v_lshlrev_b32 v46, 4, v40
v_lshl_add_u32 v46, v41, 2, v46
v_add_u32 v{V_XTW}, s{S_TMP}, v46
s_mul_i32 s{S_XK}, s{S_W}, 768
s_add_u32 s{S_XK}, s{S_XK}, {L_SP - L_XT}
""")
    a(f"""
v_lshrrev_b32 v46, 1, v41
v_lshlrev_b32 v46, 4, v46
v_and_b32 v47, 1, v41
v_lshl_add_u32 v46, v47, 2, v46
v_add_u32 v46, v46, v42
v_lshlrev_b32 v46, 4, v46
v_and_b32 v47, 1, v43
v_lshl_add_u32 v46, v47, 3, v46
v_add_u32 v{V_XTR}, s{S_TMP}, v46
""")
    a(f"""
s_mul_i32 s{S_TMP}, s{S_W}, 1280
v_lshl_add_u32 v46, v41, 3, v44
v_lshlrev_b32 v46, 4, v46
v_lshl_add_u32 v46, v45, 9, v46
v_add_u32 v{V_SPR}, {L_SP}, v46
s_mov_b32 s{S_W1280}, s{S_TMP}
s_add_u32 s{S_SP0K}, s{S_TMP}, {L_SP + 1024}
v_and_b32 v47, 1, v41
v_lshrrev_b32 v46, 1, v41
v_lshl_add_u32 v46, v46, 3, v44
v_lshlrev_b32 v46, 4, v46
v_lshl_add_u32 v47, v47, 1, v45
v_lshl_add_u32 v46, v47, 2, v46
v_add_u32 v{V_SP0R}, {L_SP + 1024}, v46
""")
    a(f"""
s_lshl_b32 s{S_TMP}, s{S_W}, 2
v_lshrrev_b32 v46, 1, v41
v_add_u32 v46, s{S_TMP}, v46
v_lshlrev_b32 v47, 1, v44
v_xor_b32 v46, v46, v47
v_lshlrev_b32 v46, 4, v46
v_lshl_add_u32 v46, v44, 8, v46
v_and_b32 v48, 1, v41
v_lshl_add_u32 v46, v48, 3, v46
v_add_u32 v{V_OW}, {L_XT}, v46
""")
    a(f"""
v_and_b32 v47, 1, v0
v_lshl_add_u32 v47, v42, 1, v47
v_bfe_u32 v48, v0, 1, 1
v_lshl_add_u32 v46, v41, 1, v48
v_lshlrev_b32 v48, 1, v47
v_xor_b32 v46, v46, v48
v_lshlrev_b32 v46, 4, v46
v_lshl_add_u32 v46, v47, 8, v46
v_add_u32 v{V_OR}, {L_XT}, v46
""")
    a(f"""
s_lshl_b32 s{S_TMP}, s{S_W}, 3
v_lshrrev_b32 v46, 3, v0
v_add_u32 v46, s{S_TMP}, v46
v_mul_u32_u24 v46, 9216, v46
v_lshl_add_u32 v{V_PST}, v44, 4, v46
""")
    Lw2 = a.label_name("Lc2"); Lce = a.label_name("Lce")
    a(f"""
s_mul_i32 s{S_TMP}, s{S_H}, 9216
s_lshl_b32 s{S_TMP2}, s{S_W}, 12
s_add_u32 s{S_TMP}, s{S_TMP}, s{S_TMP2}
s_lshr_b32 s{S_PF}, s{S_H}, 3
s_mul_i32 s{S_PF}, s{S_PF}, 72
s_and_b32 s{S_PF2}, s{S_H}, 7
s_cmp_ge_u32 s{S_W}, 2
s_cbranch_scc1 {Lw2}
v_lshl_add_u32 v46, v41, 1, v45
v_lshlrev_b32 v46, 7, v46
v_lshl_add_u32 v46, v44, 4, v46
v_add_u32 v{V_PLD}, s{S_TMP}, v46
s_lshl_b32 s{S_PF2}, s{S_PF2}, 3
v_add_u32 v46, s{S_PF2}, v44
s_lshl_b32 s{S_TMP2}, s{S_W}, 5
s_add_u32 s{S_PF}, s{S_PF}, s{S_TMP2}
v_and_b32 v48, 15, v46
v_lshl_add_u32 v47, v41, 4, v48
v_add_u32 v47, s{S_PF}, v47
v_lshlrev_b32 v47, 5, v47
v_lshrrev_b32 v48, 4, v46
v_lshl_add_u32 v{V_MST}, v48, 3, v47
s_mov_b32 s{S_PUB}, 0x00ff00ff
s_branch {Lce}
""")
    a.label(Lw2)
    a(f"""
v_lshrrev_b32 v46, 1, v40
v_lshl_add_u32 v46, v46, 2, v41
v_lshlrev_b32 v46, 5, v46
v_and_b32 v47, 1, v0
v_lshl_add_u32 v46, v47, 4, v46
v_add_u32 v{V_PLD}, s{S_TMP}, v46
s_lshl_b32 s{S_PF2}, s{S_PF2}, 2
v_lshl_add_u32 v47, v47, 1, v41
v_add_u32 v47, s{S_PF2}, v47
v_and_b32 v48, 7, v47
s_add_u32 s{S_PF}, s{S_PF}, 64
v_add_u32 v48, s{S_PF}, v48
v_lshlrev_b32 v48, 5, v48
v_lshrrev_b32 v47, 3, v47
v_lshl_add_u32 v{V_MST}, v47, 3, v48
s_mov_b32 s{S_PUB}, 0x00030003
""")
    a.label(Lce)
    a(f"""
s_mul_i32 s{S_TMP}, s{S_W}, {192 * 16 - 36864}
s_add_u32 s{S_MLK}, s{S_TMP}, {L_MEMT}
""")
    a(f"""
s_lshl_b32 s{S_TMP}, s{S_W}, 11
v_lshrrev_b32 v48, 1, v41
v_lshlrev_b32 v48, 10, v48
v_and_b32 v47, 1, v41
v_lshl_add_u32 v48, v47, 4, v48
v_add_u32 v48, s{S_TMP}, v48
v_lshl_add_u32 v{V_VX}, v40, 5, v48
""")
    a(f"""
s_mov_b32 s{S_L8}, 0x00ff00ff
s_mov_b32 s{S_L8+1}, 0x00ff00ff
s_mov_b32 s{S_HF8}, 0xff00ff00
s_mov_b32 s{S_HF8+1}, 0xff00ff00
s_mov_b32 s{S_PUB+1}, 0
s_mov_b32 s{S_SC}, {f32bits(SCALE_LOG2E):#x}
s_mov_b32 s{S_POIS}, 0xfffffffe
s_lshl_b32 s{S_PST}, s{S_H}, 7
s_add_u32 s{S_PST}, s{S_PST}, {WS_PART}
s_add_u32 s{S_PST1}, s{S_PST}, 4096
s_lshl_b32 s{S_PST2}, s{S_H}, 5
s_add_u32 s{S_PST2}, s{S_PST2}, {WS_PART + 8192}
s_mov_b32 s{S_PLD}, {WS_PART}
s_mov_b32 s{S_MCUR}, {WS_MEMT}
s_mov_b32 s{S_MNXT}, {WS_MEMT + MEMT_STRIDE}
s_mov_b32 s{S_M3}, {WS_MEMT + 2 * MEMT_STRIDE}
s_lshl_b32 s{S_TMP}, s{S_H}, 19
s_add_u32 s{S_KX}, s{S_TMP}, {WS_K}
s_add_u32 s{S_VX}, s{S_TMP}, {WS_VT}
s_lshl_b32 s{S_TMP}, s{S_H}, 11
s_add_u32 s{S_KM}, s{S_TMP}, {WS_KM}
s_add_u32 s{S_VM}, s{S_TMP}, {WS_VM - L_XT}
s_mov_b32 s{S_STEP}, 0
s_mov_b32 s{S_FL}, {WS_FLAGS}
s_lshl_b32 s{S_HD}, s{S_H}, 7
s_add_u32 s{S_HD}, s{S_HD}, {WS_HDONE}
s_mov_b32 s{S_TAG}, 1
""")

def single_addr(a, dst, tmp):
    a(f"""
s_lshl_b32 s{S_TMP}, s{S_W}, 3
v_lshrrev_b32 v{dst}, 4, v0
v_bfe_u32 v{tmp}, v0, 2, 1
v_lshl_add_u32 v{dst}, v{dst}, 1, v{tmp}
v_add_u32 v{dst}, s{S_TMP}, v{dst}
v_mul_u32_u24 v{dst}, 9216, v{dst}
v_and_b32 v{tmp}, 3, v0
v_lshl_add_u32 v{dst}, v{tmp}, 3, v{dst}
""")

def set_wsrd(a, ptr):
    a(f"""
s_mov_b32 s{S_WT}, s{ptr}
s_mov_b32 s{S_WT+1}, s{ptr+1}
s_mov_b32 s{S_WT+2}, {W_BYTES}
s_mov_b32 s{S_WT+3}, 0x20000
""")

def prologue(a):
    ws = f"s[{S_WS}:{S_WS+3}]"; wt = f"s[{S_WT}:{S_WT+3}]"
    a("v_mov_b32 v28, 0\nv_mov_b32 v29, 0\nv_mov_b32 v30, 0\nv_mov_b32 v31, 0\nv_mov_b32 v32, -1\nv_mov_b32 v33, -1")
    a(f"buffer_store_dwordx4 v[28:31], v{V_PST}, {ws}, s{S_PST} offen sc1")
    a(f"buffer_store_dwordx4 v[28:31], v{V_PST}, {ws}, s{S_PST1} offen sc1")
    single_addr(a, 34, 35)
    a(f"s_mov_b64 exec, s[{S_L8}:{S_L8+1}]")
    a(f"buffer_store_dwordx2 v[28:29], v34, {ws}, s{S_PST2} offen sc1")
    a(f"s_mov_b64 exec, -1\ns_cmp_eq_u32 s{S_W}, 3")
    L = a.label_name("Lnopois")
    L3 = a.label_name("Lfl")
    a(f"s_cbranch_scc1 {L3}\ns_mov_b64 exec, s[{S_PUB}:{S_PUB+1}]")
    a(f"buffer_store_dwordx2 v[32:33], v{V_MST}, {ws}, s{S_MNXT} offen sc1")
    a(f"buffer_store_dwordx2 v[32:33], v{V_MST}, {ws}, s{S_M3} offen sc1")
    a(f"s_mov_b64 exec, -1\ns_branch {L}")
    a.label(L3)
    a(f"""
v_lshlrev_b32 v34, 7, v0
s_mov_b32 exec_hi, 0
buffer_store_byte v28, v34, {ws}, s{S_FL} offen sc1
s_add_u32 s{S_TMP}, s{S_H}, {WS_FLAGS + 32}
buffer_store_byte v28, v34, {ws}, s{S_TMP} offen sc1
s_lshl_b32 s{S_TMP}, s{S_H}, 7
s_add_u32 s{S_TMP}, s{S_TMP}, {WS_CNT}
s_mov_b32 exec_lo, 1
buffer_store_dword v28, v28, {ws}, s{S_TMP} offen sc1
s_sub_u32 s{S_TMP}, s{S_TMP}, {WS_CNT - WS_HDONE}
buffer_store_dword v28, v28, {ws}, s{S_TMP} offen sc1
s_and_b32 s{S_TMP}, s{S_H}, 7
s_lshl_b32 s{S_TMP}, s{S_TMP}, 7
s_add_u32 s{S_TMP}, s{S_TMP}, {WS_CNT + 32*128}
buffer_store_dword v28, v28, {ws}, s{S_TMP} offen sc1
s_mov_b64 exec, -1
""")
    a.label(L)
    a(f"""
s_mul_i32 s{S_TMP}, s{S_W}, {2 * 1152}
v_lshlrev_b32 v46, 1, v0
v_add_u32 v46, s{S_TMP}, v46
""")
    for tt in range(2):
        for j in range(9):
            a(f"global_load_ushort v{52 + tt*9 + j}, v46, s[{S_PTR}:{S_PTR+1}] offset:{tt*1152 + j*128}")
    a(f"""
s_mul_i32 s{S_TMP2}, s{S_W}, 36864
s_mul_i32 s{S_PF}, s{S_H}, 147456
s_mul_i32 s{S_PF2}, s{S_W}, 288
s_add_u32 s{S_PF}, s{S_PF}, s{S_PF2}
""")
    set_wsrd(a, S_PTR + 8)
    a(f"s_mov_b32 s{S_PF2}, 3641")
    for m in range(36):
        a(f"""
v_add_u32 v46, {64*m}, v0
v_mul_u32_u24 v47, s{S_PF2}, v46
v_lshrrev_b32 v47, 16, v47
v_mul_u32_u24 v48, 18, v47
v_sub_u32 v48, v46, v48
v_mul_u32_u24 v47, 1152, v47
v_lshl_add_u32 v47, v48, 4, v47
s_add_u32 s{S_TMP}, s{S_TMP2}, {m*1024}
s_mov_b32 m0, s{S_TMP}
buffer_load_dwordx4 v47, {wt}, s{S_PF} offen lds
""")
    a(f"s_lshl_b32 s{S_TMP}, s{S_W}, 3\ns_add_u32 s{S_TMP}, s{S_TMP}, {L_MEMT}\ns_mov_b32 s{S_TMP2}, 7282")
    for j in range(9):
        d = 28 + j
        a(f"""
v_add_u32 v46, {64*j}, v0
v_mul_u32_u24 v47, s{S_TMP2}, v46
v_lshrrev_b32 v47, 20, v47
v_mul_u32_u24 v48, 144, v47
v_sub_u32 v46, v46, v48
v_mul_u32_u24 v47, 72, v47
v_lshrrev_b32 v48, 5, v46
v_lshlrev_b32 v48, 4, v48
v_and_b32 v49, 15, v46
v_add_u32 v48, v48, v49
v_bfe_u32 v49, v46, 4, 1
v_and_b32 v50, 7, v46
v_add_u32 v50, 64, v50
v_bfe_u32 v51, v46, 3, 1
v_cmp_gt_u32 vcc, 128, v46
v_cndmask_b32 v48, v50, v48, vcc
v_cndmask_b32 v49, v51, v49, vcc
v_add_u32 v48, v48, v47
v_lshlrev_b32 v48, 5, v48
v_lshl_add_u32 v48, v49, 2, v48
v_add_u32 v{d}, s{S_TMP}, v48
""")
    a("s_waitcnt vmcnt(36)")
    for tt in range(2):
        for j in range(9):
            a(f"ds_write_b16 v{28+j}, v{52 + tt*9 + j} offset:{tt*2}")
    a("s_barrier")
    L = a.label_name("Lnoarr")
    a(f"""
s_cmp_lg_u32 s{S_W}, 0
s_cbranch_scc1 {L}
s_mul_i32 s{S_TMP}, s{S_XCC}, 6
s_mov_b64 s[{S_T0}:{S_T0+1}], 1
s_lshl_b64 s[{S_T0}:{S_T0+1}], s[{S_T0}:{S_T0+1}], s{S_TMP}
s_or_b32 s{S_T0+1}, s{S_T0+1}, 0x01000000
v_mov_b32 v38, s{S_T0}
v_mov_b32 v39, s{S_T0+1}
v_mov_b32 v37, 0
s_mov_b64 exec, 1
global_atomic_add_x2 v37, v[38:39], s[{S_DBG}:{S_DBG+1}] offset:{DBG_XMASK*4} sc1
s_mov_b64 exec, -1
""")
    a.label(L)
    a(f"s_mul_i32 s{S_TMP2}, s{S_W}, 36864")
    a(f"""
v_lshrrev_b32 v46, 1, v41
v_lshlrev_b32 v46, 4, v46
v_lshrrev_b32 v47, 1, v42
v_lshl_add_u32 v46, v47, 3, v46
v_and_b32 v47, 1, v41
v_lshl_add_u32 v46, v47, 2, v46
v_and_b32 v47, 1, v42
v_add_u32 v46, v46, v47
v_mul_u32_u24 v46, 288, v46
v_lshl_add_u32 v46, v43, 3, v46
v_add_u32 v49, s{S_TMP2}, v46
""")
    a(f"""
v_and_b32 v46, 1, v41
v_lshlrev_b32 v46, 4, v46
v_lshrrev_b32 v47, 1, v42
v_lshl_add_u32 v46, v47, 3, v46
v_lshrrev_b32 v47, 1, v41
v_lshl_add_u32 v46, v47, 2, v46
v_and_b32 v47, 1, v42
v_add_u32 v46, v46, v47
v_lshlrev_b32 v46, 6, v46
v_lshl_add_u32 v46, v43, 3, v46
v_add_u32 v50, s{S_TMP2}, v46
""")
    a(f"""
s_lshl_b32 s{S_PF}, s{S_H}, 8
s_lshl_b32 s{S_PF2}, s{S_W}, 6
s_add_u32 s{S_PF}, s{S_PF}, s{S_PF2}
v_bfe_u32 v46, v0, 2, 3
v_lshrrev_b32 v47, 5, v0
v_lshl_add_u32 v48, v47, 3, v46
v_lshl_add_u32 v46, v47, 4, v46
v_lshlrev_b32 v46, 13, v46
v_lshl_add_u32 v46, v43, 4, v46
v_add_u32 v51, s{S_PF}, v46
v_lshlrev_b32 v48, 13, v48
v_lshl_add_u32 v48, v43, 4, v48
v_add_u32 v48, s{S_PF}, v48
""")
    V = Ctr(a, "vmcnt", 63)
    V.q = ["wo0"] * 18 + ["wo1"] * 18
    S_TS = S_WT + 0
    TS = 76
    a(f"""
s_lshl_b32 s{S_TMP}, s{S_H}, 2
s_add_u32 s{S_TMP}, s{S_TMP}, s{S_W}
s_lshl_b32 s{S_TMP}, s{S_TMP}, 12
v_lshlrev_b32 v47, 6, v0
v_add_u32 v47, s{S_TMP}, v47
s_mov_b32 s{TS+2}, {W_BYTES}
s_mov_b32 s{TS+3}, 0x20000
""")
    AHEAD = 4
    def touch(g):
        if g >= 27 or not TOUCH: return
        m_, c = divmod(g, 9)
        if c == 0 or g == 0: a(f"s_mov_b32 s{TS}, s{S_PTR+2+2*m_}\ns_mov_b32 s{TS+1}, s{S_PTR+3+2*m_}")
        a(f"s_mov_b32 s{S_PF2}, {c*64*8192}")
        V.issue("t", f"buffer_load_dword v{V_JUNK}, v47, s[{TS}:{TS+3}], s{S_PF2} offen")
    def dma_chunk(c, tag):
        for m in range(4):
            base, stride = gamma_base(4*c + m)
            a(f"""
s_add_u32 s{S_TMP}, s{S_TMP2}, {c*4096 + m*1024}
s_mov_b32 m0, s{S_TMP}
s_mov_b32 s{S_PF}, {base * 8192}
""")
            V.issue(tag, f"buffer_load_dwordx4 v{51 if stride == 16 else 48}, {wt}, s{S_PF} offen lds")
    def wo_half(ks):
        for n in range(9):
            for q in range(4):
                off = (64*ks + 32*(q >> 1) + 2*(q & 1)) * 288 + 32*n
                a(f"ds_read_b64_tr_b16 {R(WO(n, ks) + 2*q, 2)}, v49 offset:{off}")
            if n % 3 == 2: a("s_waitcnt lgkmcnt(0)")
    def rd_chunk(c, dst):
        for t in range(2):
            for q in range(4):
                off = c*4096 + (32*(q >> 1) + 2*(q & 1)) * 64 + 32*t
                a(f"ds_read_b64_tr_b16 {R(dst(c, t) + 2*q, 2)}, v50 offset:{off}")
        a("s_waitcnt lgkmcnt(0)")
    for g in range(7): touch(g)
    V.wait("wo0")
    wo_half(0)
    set_wsrd(a, S_PTR + 2)
    for c in range(4): dma_chunk(c, ("q", c))
    touch(7); touch(8)
    V.wait("wo1")
    wo_half(1)
    for c in range(4, 9):
        dma_chunk(c, ("q", c)); touch(9 + c - 4)
    for c in range(9):
        V.wait(("q", c))
        rd_chunk(c, WQ)
        if c == 0: set_wsrd(a, S_PTR + 4)
        dma_chunk(c, ("k", c)); touch(9 + c + 5)
    for c in range(9):
        V.wait(("k", c))
        rd_chunk(c, WK)
        if c == 0: set_wsrd(a, S_PTR + 6)
        dma_chunk(c, ("v", c)); touch(18 + c + 5)
    for c in range(9):
        V.wait(("v", c))
        rd_chunk(c, lambda c_, t: 52 + 8*t)
        for t in range(2):
            for hf in range(2):
                a(f"ds_write_b128 v{V_WV}, v[{52+8*t+4*hf}:{52+8*t+4*hf+3}] offset:{c*4096 + t*2048 + hf*1024}")
        a("s_waitcnt lgkmcnt(0)")

def help_touch(a, nrows):
    TS = 76
    per = nrows // 128
    a(f"""
s_mov_b32 s{TS}, s{S_PTR+6}
s_mov_b32 s{TS+1}, s{S_PTR+7}
s_mov_b32 s{TS+2}, {W_BYTES}
s_mov_b32 s{TS+3}, 0x20000
s_lshl_b32 s{S_TMP}, s{S_H}, 2
s_add_u32 s{S_TMP}, s{S_TMP}, s{S_W}
s_lshl_b32 s{S_TMP}, s{S_TMP}, 13
s_add_u32 s{S_TMP}, s{S_TMP}, {(576 - nrows) * 8192}
v_lshlrev_b32 v47, 7, v0
""")
    for i in range(per):
        a(f"buffer_load_dword v{V_JUNK}, v47, s[{TS}:{TS+3}], s{S_TMP} offen\ns_add_u32 s{S_TMP}, s{S_TMP}, {128*8192}")

HELP_ROWS = 0
def handshake(a, Lfast, Lslow, Lfail):
    if HELP_ROWS: help_touch(a, HELP_ROWS)
    Lp = a.label_name("Lhs")
    a(f"v_mov_b32 v30, 0\ns_mov_b32 s{S_SPIN}, 0")
    a.label(Lp)
    a(f"""
global_load_dwordx2 v[28:29], v30, s[{S_DBG}:{S_DBG+1}] offset:{DBG_XMASK*4} sc1
s_add_u32 s{S_SPIN}, s{S_SPIN}, 1
s_cmp_gt_u32 s{S_SPIN}, 0x400000
s_cbranch_scc1 {Lfail}
s_waitcnt vmcnt(0)
v_readfirstlane_b32 s{S_T0}, v28
v_readfirstlane_b32 s{S_T0+1}, v29
s_lshr_b32 s{S_TMP}, s{S_T0+1}, 24
s_cmp_lt_u32 s{S_TMP}, 32
s_cbranch_scc1 {Lp}
s_mul_i32 s{S_TMP}, s{S_XCC}, 6
s_lshr_b64 s[{S_T0}:{S_T0+1}], s[{S_T0}:{S_T0+1}], s{S_TMP}
s_and_b32 s{S_T0}, s{S_T0}, 63
s_cmp_eq_u32 s{S_T0}, 32
s_cbranch_scc1 {Lfast}
s_branch {Lslow}
""")

S_ST = 84
RT_STEP = None
def stamp(a, on, i):
    if RT_STEP is not None:
        L = a.label_name("Lrt")
        a(f"s_cmp_lg_u32 s{S_STEP}, {RT_STEP + (1 if i < 2 else 0)}\ns_cbranch_scc1 {L}\ns_memrealtime s[98:99]\ns_waitcnt lgkmcnt(0)\ns_mov_b32 s{S_ST+i}, s98")
        a.label(L)
        return
    if not on: return
    a(f"""
s_memtime s[98:99]
s_waitcnt lgkmcnt(0)
s_sub_u32 s97, s98, s96
s_add_u32 s{S_ST+i}, s{S_ST+i}, s97
s_mov_b32 s96, s98
""")

PFLAT = False
FAST_ST = ""
POLL_F = " sc1"
KVLATE = False
TOUCH = False
KVF = ""
DLY_G = 0
DLY_R = 4
def step_loop(a, fast, Ldone, Lfail, stamps=False, kv_wait=None, tlf=None):
    ws = f"s[{S_WS}:{S_WS+3}]"
    st = FAST_ST if fast else " sc1"
    L = Ctr(a, "lgkmcnt", 15)
    def stp(i):
        if stamps: L.q = []
        stamp(a, stamps, i)
    Ltop = a.label_name("Lstep"); Lnog = a.label_name("Lnog")
    q0, q1, k0, k1, v0_, v1_ = (ACC + 4*i for i in range(6))
    ABUF = (52, 56)
    WB = (60, 68)
    def wbuf(f): return WB[f % 2]
    def kxload(t):
        a(f"v_bfe_u32 v{t}, v0, 3, 1\nv_lshl_add_u32 v{t}, v{t}, 8, v{V_VX}")
        a(f"buffer_load_dwordx4 v[{KX}:{KX+3}], v{t}, {ws}, s{S_KX} offen{KVF}")
        a(f"buffer_load_dwordx4 v[{KX+4}:{KX+7}], v{t}, {ws}, s{S_KX} offen offset:256{KVF}")
    def vxload():
        a(f"buffer_load_dwordx4 v[{VX0}:{VX0+3}], v{V_VX}, {ws}, s{S_VX} offen{KVF}")
        a(f"buffer_load_dwordx4 v[{VX1}:{VX1+3}], v{V_VX}, {ws}, s{S_VX} offen offset:512{KVF}")
    def wrd(f):
        b = wbuf(f)
        for hf in range(2):
            L.issue(("W", f), f"ds_read_b128 v[{b+4*hf}:{b+4*hf+3}], v{V_WV} offset:{(f//2)*4096 + (f%2)*2048 + hf*1024}")
    def zero(lo, hi):
        for r in range(lo, hi, 2): a(f"v_mov_b64 v[{r}:{r+1}], 0")
    def spin():
        a(f"s_add_u32 s{S_SPIN}, s{S_SPIN}, 1\ns_cmp_gt_u32 s{S_SPIN}, 0x100000\ns_cbranch_scc1 {Lfail}")
    if kv_wait: kv_wait(a, 0)
    if tlf: tlf(a)
    if PFLAT: a("s_mov_b32 s84, 0\ns_mov_b32 s85, 0")
    kxload(V_T); vxload()
    zero(ACC, ACC + 24)
    L.q = []
    wrd(0); wrd(1)
    a(f"v_mov_b32 v{V_JUNK}, 128\ns_waitcnt vmcnt(0)")
    if stamps:
        for i in range(12): a(f"s_mov_b32 s{S_ST+i}, 0")
        a("s_mov_b32 s100, 0\ns_mov_b32 s101, 0\ns_memtime s[96:97]\ns_waitcnt lgkmcnt(0)")
    a(f"s_branch {Lnog}")
    a.label(Ltop)
    stp(0)
    Lg = a.label_name("Lgather"); Lw3 = a.label_name("Lw3")
    GR = (52, 56, 72); V_MLD = V_JUNK
    def gload():
        for j in range(3):
            a(f"buffer_load_dwordx4 v[{GR[j]}:{GR[j]+3}], v{V_MLD}, {ws}, s{S_MG} offen offset:{1024*j}{POLL_F if fast else ' sc1'}")
    a(f"s_cmp_eq_u32 s{S_W}, 3\ns_cbranch_scc1 {Lw3}")
    a(f"s_sub_u32 s{S_MG}, s{S_MCUR}, {L_MEMT}\ns_mov_b32 s{S_SPIN}, 0\nv_add_u32 v{V_MLD}, s{S_MLK}, v{V_WV}")
    L.q = []
    wrd(0)
    zero(ACC, ACC + 24)
    for _ in range(DLY_G): a("s_nop 15")
    a.label(Lg)
    gload()
    spin()
    a(f"""
s_waitcnt vmcnt(0)
v_max3_u32 v{V_T}, v{GR[0]}, v{GR[0]+2}, v{GR[1]}
v_max3_u32 v{V_T}, v{V_T}, v{GR[1]+2}, v{GR[2]}
v_max_u32 v{V_T}, v{V_T}, v{GR[2]+2}
v_cmp_eq_u32 vcc, -1, v{V_T}
s_and_b64 exec, exec, vcc
s_cbranch_scc1 {Lg}
s_mov_b64 exec, -1
""")
    if stamps: a(f"s_add_u32 s100, s100, s{S_SPIN}")
    stp(1)
    for j in range(3):
        a(f"ds_write_b128 v{V_MLD}, v[{GR[j]}:{GR[j]+3}] offset:{1024*j}")
    wrd(1)
    a(f"s_branch {Lnog}")
    a.label(Lw3)
    L.q = []
    wrd(0); wrd(1)
    zero(ACC, ACC + 24)
    a(f"s_waitcnt vmcnt({0 if KVLATE else 3})")
    if kv_wait:
        Lok = a.label_name("Lkvok")
        a(f"""
v_readfirstlane_b32 s{S_TMP}, v{V_JUNK}
s_and_b32 s{S_TMP}, s{S_TMP}, 0xffff
s_cmp_ge_u32 s{S_TMP}, 128
s_cbranch_scc1 {Lok}
""")
        kv_wait(a, 1)
        a.label(Lok)
    a.label(Lnog)
    a(f"""
s_cmp_lt_u32 s{S_STEP}, 63
s_cselect_b32 s{S_PF2}, 8192, 0
s_add_u32 s{S_PF}, s{S_KX}, s{S_PF2}
s_add_u32 s{S_PF2}, s{S_VX}, s{S_PF2}
s_add_u32 s{S_TMP}, s{S_STEP}, 2
s_min_u32 s{S_TMP}, s{S_TMP}, 63
s_and_b32 s{S_TMP}, s{S_TMP}, 0x3c
""")
    L.wait_all()
    a("s_barrier")
    stp(2)
    def ard(ks):
        b = ABUF[ks & 1]
        L.issue(("A", ks), f"ds_read_b64_tr_b16 v[{b}:{b+1}], v{V_ARD} offset:{1024*ks}")
        L.issue(("A", ks), f"ds_read_b64_tr_b16 v[{b+2}:{b+3}], v{V_ARD} offset:{1024*ks + 256}")
    ard(0)
    Lnp = a.label_name("Lnopf")
    a(f"""
s_cmp_lg_u32 s{S_W}, 3
s_cbranch_scc1 {Lnp}
v_lshlrev_b32 v56, 7, v0
v_mov_b32 v57, s{S_TMP}
s_sub_u32 s{S_TMP}, s{S_STEP}, 1
s_max_i32 s{S_TMP}, s{S_TMP}, 0
v_mov_b32 v59, s{S_TMP}
{"s_waitcnt lgkmcnt(0) vmcnt(0)" + chr(10) + "s_memtime s[98:99]" if PFLAT else ""}
buffer_load_dword v{V_JUNK}, v56, {ws}, s{S_PF} offen{KVF}
buffer_load_dword v{V_JUNK}, v56, {ws}, s{S_PF2} offen{KVF}
{("s_waitcnt vmcnt(0)" + chr(10) + "s_memtime s[96:97]" + chr(10) + "s_waitcnt lgkmcnt(0)" + chr(10) + "s_sub_u32 s96, s96, s98" + chr(10) + "s_add_u32 s84, s84, s96" + chr(10) + "s_max_u32 s85, s85, s96") if PFLAT else ""}
global_load_dword v{V_JUNK}, v57, s[{S_DBG}:{S_DBG+1}] offset:{DBG_KVRDY*4} sc1
v_mov_b32 v58, s{S_STEP}
s_mov_b64 exec, 1
buffer_store_dword v58, v56, {ws}, s{S_HD} offen sc1
s_mov_b64 exec, -1
s_cmp_lg_u32 s{S_H}, 0
s_cbranch_scc1 {Lnp}
s_mov_b32 exec_hi, 0
buffer_store_byte v59, v56, {ws}, s{S_FL} offen sc1
s_mov_b64 exec, -1
""")
    a.label(Lnp)
    ard(1)
    for ks in range(9):
        A = f"v[{ABUF[ks&1]}:{ABUF[ks&1]+3}]"
        L.wait(("A", ks))
        def sm(acc, B): a(f"v_smfmac_f32_16x16x64_bf16 v[{acc}:{acc+3}], {A}, {B}, v{V_IDX}")
        def smv(acc, f):
            L.wait(("W", f)); sm(acc, f"v[{wbuf(f)}:{wbuf(f)+7}]")
            if f + 2 < 18: wrd(f + 2)
        if ks < 8:
            sm(q0, R(WQ(ks,0),8)); smv(v0_, 2*ks); sm(q1, R(WQ(ks,1),8)); sm(k0, R(WK(ks,0),8)); smv(v1_, 2*ks + 1); sm(k1, R(WK(ks,1),8))
            if ks + 2 < 9: ard(ks + 2)
        else:
            sm(q0, R(WQ(ks,0),8)); sm(q1, R(WQ(ks,1),8)); sm(k0, R(WK(ks,0),8)); sm(k1, R(WK(ks,1),8))
            smv(v0_, 16); smv(v1_, 17)
    stp(3)
    QF, KF, T1, T2, T0 = 52, 56, 60, 64, 68
    def post(x, dst):
        a(f"v_pk_add_f32 v[{x}:{x+1}], v[{x}:{x+1}], v[{x+2}:{x+3}]\nv_cvt_pk_bf16_f32 v{dst}, v{x}, v{x+1}")
    post(q0, q0); post(q1, q1)
    L.issue("xq", f"ds_write2_b32 v{V_XTW}, v{q0}, v{q1} offset0:0 offset1:64")
    a(f"v_add_u32 v{V_T}, s{S_XK}, v{V_XTW}\nv_add_u32 v{T1}, s{S_XK}, v{V_XTR}")
    L.issue("qf", f"ds_read_b64_tr_b16 v[{QF}:{QF+1}], v{V_XTR}")
    L.issue("qf", f"ds_read_b64_tr_b16 v[{QF+2}:{QF+3}], v{V_XTR} offset:128")
    post(k0, k0); post(k1, k1)
    L.issue("xk", f"ds_write2_b32 v{V_T}, v{k0}, v{k1} offset0:0 offset1:64")
    L.issue("kf", f"ds_read_b64_tr_b16 v[{KF}:{KF+1}], v{T1}")
    L.issue("kf", f"ds_read_b64_tr_b16 v[{KF+2}:{KF+3}], v{T1} offset:128")
    a(f"v_add_u32 v72, s{S_W1280}, v{V_SPR}\nv_and_b32 v73, 0xff, v{V_SPR}\nv_add_u32 v73, s{S_SP0K}, v73")
    VP0, VP1 = v0_, v1_
    KMA = q0 + 1
    post(v0_, VP0); post(v1_, VP1)
    L.wait("qf")
    a(f"v_mfma_f32_16x16x32_bf16 v[{T1}:{T1+3}], v[{KX}:{KX+3}], v[{QF}:{QF+3}], 0")
    a(f"v_mfma_f32_16x16x32_bf16 v[{T2}:{T2+3}], v[{KX+4}:{KX+7}], v[{QF}:{QF+3}], 0")
    a(f"v_lshrrev_b32 v{KMA}, 10, v{V_VX}\nv_and_b32 v{KMA+1}, 0xf0, v{V_VX}")
    L.wait("kf")
    a(f"v_mfma_f32_16x16x32_bf16 v[{T0}:{T0+3}], v[{KF}:{KF+3}], v[{QF}:{QF+3}], 0")
    a(f"v_lshl_or_b32 v{KMA}, v{KMA}, 8, v{KMA+1}")
    a(f"buffer_store_dword v{VP0}, v{V_XTW}, {ws}, s{S_VM} offen sc1")
    a(f"buffer_store_dword v{VP1}, v{V_XTW}, {ws}, s{S_VM} offen offset:256 sc1")
    a(f"buffer_store_dwordx4 v[{KF}:{KF+3}], v{KMA}, {ws}, s{S_KM} offen sc1")
    a(f"s_cmp_eq_u32 s{S_STEP}, 63\ns_cbranch_scc1 {Ldone}")
    for r in range(4): a(f"v_cndmask_b32 v{T1+r}, v{T1+r}, v{T2+r}, s[{S_HF8}:{S_HF8+1}]")
    L.issue("sp", f"ds_write_b128 v72, v[{T1}:{T1+3}]")
    L.issue("sp", f"ds_write_b128 v73, v[{T0}:{T0+3}]")
    ONE = 64; SA = 72; SEL = 64
    for r in range(4): a(f"v_mov_b32 v{ONE+r}, 0x3f803f80")
    a(f"v_mov_b32 v{VP0+1}, 0\nv_mov_b32 v{VP1+1}, 0")
    zero(46, 48); zero(50, 52)
    L.wait_all()
    stp(4)
    a("s_barrier")
    stp(5)
    X = 28; M = 52
    for w in range(4): L.issue(("x", w), f"ds_read_b128 v[{X+4*w}:{X+4*w+3}], v{V_SPR} offset:{1280*w}")
    for w in range(4): L.issue("m", f"ds_read_b32 v{M+w}, v{V_SP0R} offset:{1280*w}")
    a(f"s_add_u32 s{S_KX}, s{S_KX}, 8192\ns_add_u32 s{S_VX}, s{S_VX}, 8192\ns_add_u32 s{S_KM}, s{S_KM}, 65536\ns_add_u32 s{S_VM}, s{S_VM}, 65536")
    if not KVLATE: kxload(V_T)
    def pka(d, s_): a(f"v_pk_add_f32 v[{d}:{d+1}], v[{d}:{d+1}], v[{s_}:{s_+1}]")
    L.wait(("x", 1))
    pka(X, X+4); pka(X+2, X+6)
    L.wait(("x", 3))
    pka(X+8, X+12); pka(X+10, X+14)
    L.wait("m")
    pka(M, M+2); pka(X, X+8); pka(X+2, X+10)
    a(f"v_add_f32 v{M}, v{M}, v{M+1}")
    t = 60
    a(f"""
v_max3_f32 v{t}, v{X}, v{X+1}, v{X+2}
v_max3_f32 v{t}, v{t}, v{X+3}, v{M}
v_mov_b64 v[32:33], 0
v_mov_b64 v[34:35], 0
v_max_f32_dpp v{t}, v{t}, v{t} row_ror:8 row_mask:0xf bank_mask:0xf
v_mov_b32 v{t+1}, v{t}
v_mov_b64 v[36:37], 0
v_mov_b64 v[38:39], 0
v_permlane16_swap_b32 v{t}, v{t+1}
v_max_f32 v{t}, v{t}, v{t+1}
v_mov_b32 v{t+1}, v{t}
s_nop 1
v_permlane32_swap_b32 v{t}, v{t+1}
v_max_f32 v{t}, v{t}, v{t+1}
v_mul_f32 v{t}, s{S_SC}, v{t}
""")
    vals = [M, X, X+1, X+2, X+3]
    for v in vals: a(f"v_fma_f32 v{v}, v{v}, s{S_SC}, -v{t}")
    for v in vals: a(f"v_exp_f32 v{v}, v{v}")
    PX, PM, O0, O1, LS = 60, 52, 68, 56, 40
    a(f"""
v_mov_b32_dpp v{M+1}, v{M} row_ror:8 row_mask:0xf bank_mask:0xf
v_cvt_pk_bf16_f32 v{PX}, v{X}, v{X+1}
v_cvt_pk_bf16_f32 v{PX+1}, v{X+2}, v{X+3}
v_cvt_pk_bf16_f32 v{PM}, v{M}, v{M+1}
v_mov_b32 v{PM+1}, 0
v_mov_b64 v[{PM+2}:{PM+3}], 0
v_mov_b32_dpp v{PX+2}, v{PX} row_ror:8 row_mask:0xf bank_mask:0xf
v_mov_b32_dpp v{PX+3}, v{PX+1} row_ror:8 row_mask:0xf bank_mask:0xf
v_mfma_f32_16x16x32_bf16 v[{LS}:{LS+3}], v[{ONE}:{ONE+3}], v[{PM}:{PM+3}], 0
v_mfma_f32_16x16x32_bf16 v[{LS}:{LS+3}], v[{ONE}:{ONE+3}], v[{PX}:{PX+3}], v[{LS}:{LS+3}]
v_mfma_f32_16x16x32_bf16 v[{O0}:{O0+3}], v[{VP0}:{VP0+3}], v[{PM}:{PM+3}], 0
v_mfma_f32_16x16x32_bf16 v[{O0}:{O0+3}], v[{VX0}:{VX0+3}], v[{PX}:{PX+3}], v[{O0}:{O0+3}]
v_mfma_f32_16x16x32_bf16 v[{O1}:{O1+3}], v[{VP1}:{VP1+3}], v[{PM}:{PM+3}], 0
v_mfma_f32_16x16x32_bf16 v[{O1}:{O1+3}], v[{VX1}:{VX1+3}], v[{PX}:{PX+3}], v[{O1}:{O1+3}]
v_mov_b64 v[28:29], 0
v_mov_b64 v[30:31], 0
v_rcp_f32 v{LS}, v{LS}
v_xor_b32 v{V_T}, 32, v{V_OW}
""")
    def pkm(d): a(f"v_pk_mul_f32 v[{d}:{d+1}], v[{d}:{d+1}], v[{LS}:{LS+1}] op_sel_hi:[1,0]")
    pkm(O0); pkm(O0+2)
    a(f"v_cvt_pk_bf16_f32 v{O0}, v{O0}, v{O0+1}\nv_cvt_pk_bf16_f32 v{O0+1}, v{O0+2}, v{O0+3}")
    pkm(O1); pkm(O1+2)
    a(f"""
v_cvt_pk_bf16_f32 v{O1}, v{O1}, v{O1+1}
v_cvt_pk_bf16_f32 v{O1+1}, v{O1+2}, v{O1+3}
s_mov_b64 exec, s[{S_L8}:{S_L8+1}]
ds_write_b64 v{V_OW}, v[{O0}:{O0+1}]
ds_write_b64 v{V_T}, v[{O1}:{O1+1}]
s_mov_b64 exec, -1
v_xor_b32 v{V_T}, 128, v{V_OR}
""")
    if not KVLATE: vxload()
    zero(40, 46); zero(48, 50); zero(52, 56)
    single_addr(a, SA, SA + 1)
    L.wait_all()
    stp(6)
    a("s_barrier")
    stp(7)
    OA = 64
    L.issue("o0", f"ds_read_b128 v[{OA}:{OA+3}], v{V_OR}")
    L.issue("o1", f"ds_read_b128 v[{OA+4}:{OA+7}], v{V_T}")
    zero(56, 64)
    D = lambda n: 28 + 4*n
    def hsum(n):
        x = D(n)
        return [f"v_add_f32 v{x}, v{x}, v{x+2}", f"v_add_f32 v{x+1}, v{x+1}, v{x+3}"]
    def quad_ops(q, pk=False):
        o = 72 if q == 0 else 28
        ops = []
        for i in range(4):
            x = D(4*q + i)
            ops += [f"v_pk_add_f32 v[{x}:{x+1}], v[{x}:{x+1}], v[{x+2}:{x+3}]"] if pk else hsum(4*q + i)
            ops += [f"v_cvt_pk_bf16_f32 v{o+i}, v{x}, v{x+1}"]
        ops += [f"v_bfi_b32 v{o}, 1, s{S_TAG}, v{o}",
                f"buffer_store_dwordx4 v[{o}:{o+3}], v{V_PST}, {ws}, s{S_PST if q == 0 else S_PST1} offen{st}"]
        return ops
    def single_ops():
        x = D(8)
        return hsum(8) + [
            f"v_cvt_pk_bf16_f32 v{x}, v{x}, v{x+1}",
            f"v_mov_b32_dpp v{x+1}, v{x} row_ror:8 row_mask:0xf bank_mask:0xf",
            f"v_bfi_b32 v{x}, 1, s{S_TAG}, v{x}",
            f"s_mov_b64 exec, s[{S_L8}:{S_L8+1}]\nbuffer_store_dwordx2 v[{x}:{x+1}], v{SA}, {ws}, s{S_PST2} offen{st}\ns_mov_b64 exec, -1"]
    order = [8, 0, 1, 2, 3, 4, 5, 6, 7]
    def smo(n, ks): return f"v_smfmac_f32_16x16x64_bf16 v[{D(n)}:{D(n)+3}], v[{OA+4*ks}:{OA+4*ks+3}], {R(WO(n,ks),8)}, v{V_IDX}"
    L.wait("o0")
    for n in order[:3]: a(smo(n, 0))
    L.wait("o1")
    seq = [smo(n, 1) for n in order[:3]]
    for n in order[3:]: seq += [smo(n, 0), smo(n, 1)]
    pend = []; q1ops = quad_ops(1)
    done_at = {2: single_ops(), 8: quad_ops(0), 12: q1ops[:6]}
    for i, ins in enumerate(seq):
        a(ins)
        if i in done_at: pend += done_at[i]
        for _ in range(2):
            if pend: a(pend.pop(0))
    for p in pend: a(p)
    for p in quad_ops(1, True)[4:]: a(p)
    if KVLATE: kxload(V_T); vxload()
    stp(8)
    Lnr = a.label_name("Lnored"); Lr = a.label_name("Lred"); Lr2 = a.label_name("Lred2"); Lpub = a.label_name("Lpub"); Lw2 = a.label_name("Lw2")
    a(f"s_cmp_eq_u32 s{S_W}, 3\ns_cbranch_scc1 {Lnr}")
    P = 28; Dr = 60
    def sel():
        a(f"""
v_and_b32 v{V_T}, 1, v0
v_lshlrev_b32 v{V_T}, 4, v{V_T}
v_mov_b32 v70, 0x3f80
v_lshlrev_b32 v70, v{V_T}, v70
v_bfe_u32 v{V_T}, v0, 1, 3
""")
        for d in range(4): a(f"v_cmp_eq_u32 vcc, {d}, v{V_T}\nv_cndmask_b32 v{SEL+d}, 0, v70, vcc")
    sel()
    a(f"s_mov_b32 s{S_SPIN}, 0\ns_sub_u32 s{S_TMP}, s{S_TAG}, 1")
    a(f"s_cmp_eq_u32 s{S_W}, 2\ns_cbranch_scc1 {Lw2}")
    def pload(n):
        for t_ in range(n):
            a(f"buffer_load_dwordx4 v[{P+4*t_}:{P+4*t_+3}], v{V_PLD}, {ws}, s{S_PLD} offen offset:{1024*t_}{POLL_F if fast else ' sc1'}")
    a("v_mov_b32 v68, -1\nv_mov_b32 v69, -1")
    for _ in range(DLY_R): a("s_nop 15")
    a.label(Lr)
    pload(4)
    spin()
    a(f"""
s_waitcnt vmcnt(0)
v_bitop3_b32 v{Dr}, v{P}, v{P+4}, s{S_TMP} bitop3:0x42
v_bitop3_b32 v{Dr+1}, v{P+8}, v{P+12}, s{S_TMP} bitop3:0x42
v_bitop3_b32 v{Dr}, v{Dr}, v{Dr+1}, 1 bitop3:0x80
v_cmp_eq_u32 vcc, 0, v{Dr}
s_and_b64 exec, exec, vcc
s_cbranch_scc1 {Lr}
s_mov_b64 exec, -1
""")
    if stamps: a(f"s_add_u32 s101, s101, s{S_SPIN}")
    stp(9)
    a(f"v_mfma_f32_16x16x32_bf16 v[{Dr}:{Dr+3}], v[{SEL}:{SEL+3}], v[{P}:{P+3}], 0")
    a(f"v_mfma_f32_16x16x32_bf16 v[44:47], v[{SEL}:{SEL+3}], v[{P+4}:{P+7}], 0")
    a(f"v_mfma_f32_16x16x32_bf16 v[{Dr}:{Dr+3}], v[{SEL}:{SEL+3}], v[{P+8}:{P+11}], v[{Dr}:{Dr+3}]")
    a(f"v_mfma_f32_16x16x32_bf16 v[{Dr}:{Dr+3}], v[{SEL}:{SEL+3}], v[{P+12}:{P+15}], v[{Dr}:{Dr+3}]")
    pka(Dr, 44); pka(Dr+2, 46)
    for r in range(4): a(f"v_add_f32_dpp v{Dr+r}, v{Dr+r}, v{Dr+r} row_ror:8 row_mask:0xf bank_mask:0xf")
    a(f"s_branch {Lpub}")
    a.label(Lw2)
    a("v_mov_b32 v68, -1\nv_mov_b32 v69, -1")
    a.label(Lr2)
    pload(1)
    spin()
    a(f"""
s_waitcnt vmcnt(0)
v_bitop3_b32 v{Dr}, v{P}, v{P+2}, s{S_TMP} bitop3:0x42
v_and_b32 v{Dr}, 1, v{Dr}
v_cmp_eq_u32 vcc, 0, v{Dr}
s_and_b64 exec, exec, vcc
s_cbranch_scc1 {Lr2}
s_mov_b64 exec, -1
""")
    if stamps: a(f"s_add_u32 s101, s101, s{S_SPIN}")
    stp(9)
    a(f"v_mfma_f32_16x16x32_bf16 v[{Dr}:{Dr+3}], v[{SEL}:{SEL+3}], v[{P}:{P+3}], 0")
    for sh in (2, 4, 8):
        for r in range(4): a(f"v_add_f32_dpp v{Dr+r}, v{Dr+r}, v{Dr+r} row_ror:{sh} row_mask:0xf bank_mask:0xf")
    a.label(Lpub)
    a(f"""
v_cvt_pk_bf16_f32 v{Dr}, v{Dr}, v{Dr+1}
v_cvt_pk_bf16_f32 v{Dr+1}, v{Dr+2}, v{Dr+3}
v_min_u32 v{Dr}, s{S_POIS}, v{Dr}
s_mov_b64 exec, s[{S_PUB}:{S_PUB+1}]
buffer_store_dwordx2 v[{Dr}:{Dr+1}], v{V_MST}, {ws}, s{S_MNXT} offen{st}
buffer_store_dwordx2 v[68:69], v{V_MST}, {ws}, s{S_MCUR} offen{st}
s_mov_b64 exec, -1
""")
    a.label(Lnr)
    stp(10)
    a(f"""
s_mov_b32 s{S_TMP}, s{S_MCUR}
s_mov_b32 s{S_MCUR}, s{S_MNXT}
s_mov_b32 s{S_MNXT}, s{S_M3}
s_mov_b32 s{S_M3}, s{S_TMP}
s_xor_b32 s{S_TAG}, s{S_TAG}, 1
s_add_u32 s{S_STEP}, s{S_STEP}, 1
s_branch {Ltop}
""")

def finish(a):
    L = a.label_name("Lfin")
    ws = f"s[{S_WS}:{S_WS+3}]"
    a(f"""
s_waitcnt vmcnt(0)
s_barrier
s_cmp_lg_u32 s{S_W}, 3
s_cbranch_scc1 {L}
v_mov_b32 v52, 0
v_mov_b32 v53, 1
s_mov_b32 s{S_TMP}, {WS_CNT + 36*128}
v_mov_b32 v54, 64
s_mov_b64 exec, 1
buffer_store_dword v54, v52, {ws}, s{S_HD} offen sc1
buffer_atomic_add v53, v52, {ws}, s{S_TMP} offen sc0 sc1
v_lshlrev_b32 v52, 7, v0
s_waitcnt vmcnt(0)
v_readfirstlane_b32 s{S_TMP}, v53
s_mov_b64 exec, -1
v_lshlrev_b32 v52, 7, v0
v_mov_b32 v{V_T}, 64
s_cmp_lg_u32 s{S_TMP}, 31
s_cbranch_scc1 {L}
s_mov_b32 exec_hi, 0
buffer_store_byte v{V_T}, v52, {ws}, s{S_FL} offen sc1
s_mov_b64 exec, -1
s_waitcnt vmcnt(0)
""")
    a.label(L)


def make_kv_wait(Lfail):
    def kv_wait(a, ahead):
        Lp = a.label_name("Lkvp"); Ls = a.label_name("Lkvs")
        a(f"""
s_add_u32 s{S_TMP}, s{S_STEP}, {ahead}
s_and_b32 s{S_TMP2}, s{S_TMP}, 3
s_cmp_lg_u32 s{S_TMP2}, 0
s_cbranch_scc1 {Ls}
s_cmp_gt_u32 s{S_TMP}, 63
s_cbranch_scc1 {Ls}
v_mov_b32 v52, s{S_TMP}
s_mov_b32 s{S_SPIN}, 0
""")
        a.label(Lp)
        a(f"""
global_load_dword v53, v52, s[{S_DBG}:{S_DBG+1}] offset:{DBG_KVRDY*4} sc1
s_add_u32 s{S_SPIN}, s{S_SPIN}, 1
s_cmp_gt_u32 s{S_SPIN}, 0x200000
s_cbranch_scc1 {Lfail}
s_waitcnt vmcnt(0)
v_readfirstlane_b32 s{S_TMP2}, v53
s_and_b32 s{S_TMP2}, s{S_TMP2}, 0xffff
s_cmp_lt_u32 s{S_TMP2}, 128
s_cbranch_scc0 {Ls}
s_sleep 8
s_branch {Lp}
""")
        a.label(Ls)
    return kv_wait
```

```python
from asmlib import *
from layout import *
from rec import Ctr, f32bits, S_WS

S_RB, S_W, S_J = 3, 4, 5
S_A = 12
S_B = 16
S_C = 20
S_PQ, S_PK, S_PV = 24, 26, 28
S_DBG = 30
S_CUR, S_NXT = 32, 33
S_IT, S_ITN, S_END = 34, 35, 36
S_T, S_T2, S_T3 = 37, 38, 39
S_WM0 = 40
S_OB = 41
S_CURC, S_NXTC = 42, 43
S_SPIN = 44
S_H, S_HN, S_HE = 45, 46, 47
S_HELP, S_RBO = 2, 6
S_K = 48
V_FR = 1
V_VO = 4
V_ST = 7
V_T = 9
V_FP = 10
FB = 16
ACC0 = 32
XF = 112
NFB = 4

def OUT(n):
    return 256 + 16*n if n < 16 else 80 + 16*(n - 16)

def load_ptr(a, dst, name):
    a(f"s_load_dwordx2 s[{dst}:{dst+1}], s[0:1], {KA[name]}")

def srd(a, d, ptr, nbytes):
    a(f"s_mov_b32 s{d}, s{ptr}\ns_mov_b32 s{d+1}, s{ptr+1}\ns_mov_b32 s{d+2}, {nbytes}\ns_mov_b32 s{d+3}, 0x20000")

def setup(a):
    a(f"""
v_lshrrev_b32 v{V_T}, 6, v0
v_and_b32 v0, 63, v0
v_readfirstlane_b32 s{S_W}, v{V_T}
v_lshrrev_b32 v10, 4, v0
v_bfe_u32 v11, v0, 2, 2
v_and_b32 v12, 3, v0
v_lshrrev_b32 v13, 2, v0
s_lshl_b32 s{S_WM0}, s{S_W}, 10
""")
    a(f"""
v_lshrrev_b32 v14, 1, v10
v_lshlrev_b32 v14, 9, v14
v_lshl_add_u32 v14, v11, 6, v14
v_and_b32 v15, 1, v10
v_lshl_add_u32 v14, v15, 5, v14
v_lshl_add_u32 v{V_FR}, v12, 3, v14
v_add_u32 v{V_FR+1}, 0x10000, v{V_FR}
v_add_u32 v{V_FR+2}, 0x20000, v{V_FR}
""")
    a(f"""
s_lshr_b32 s{S_T}, s{S_W}, 1
s_and_b32 s{S_T2}, s{S_W}, 1
s_lshl_b32 s{S_T3}, s{S_W}, 16
v_and_b32 v14, 7, v13
v_lshlrev_b32 v14, 13, v14
v_lshl_add_u32 v14, v12, 4, v14
v_lshrrev_b32 v15, 5, v0
v_lshl_add_u32 v14, v15, 6, v14
v_add_u32 v{V_VO}, s{S_T3}, v14
""")
    a(f"""
s_mul_i32 s{S_T3}, s{S_W}, {16*9216}
v_mul_u32_u24 v14, 9216, v13
v_lshl_add_u32 v14, v12, 4, v14
v_add_u32 v{V_VO+1}, s{S_T3}, v14
""")
    a(f"""
s_mul_i32 s{S_T3}, s{S_T2}, {16*1152}
s_lshl_b32 s{S_IT}, s{S_T}, 6
s_add_u32 s{S_T3}, s{S_T3}, s{S_IT}
v_bfe_u32 v14, v13, 2, 1
v_lshlrev_b32 v14, 3, v14
v_lshrrev_b32 v15, 3, v13
v_lshl_add_u32 v14, v15, 2, v14
v_and_b32 v15, 3, v13
v_add_u32 v14, v14, v15
v_mul_u32_u24 v14, 1152, v14
v_lshl_add_u32 v14, v12, 4, v14
v_add_u32 v{V_VO+2}, s{S_T3}, v14
""")
    a(f"""
v_lshrrev_b32 v15, 5, v0
v_lshl_add_u32 v{V_FP}, v15, 9, v{V_FR}
v_add_u32 v{V_FP+1}, 0x10000, v{V_FP}
""")

def layernorm(a):
    load_ptr(a, S_PQ, 'x')
    a(f"""
s_lshl_b32 s{S_T}, s{S_RB}, 2
s_add_u32 s{S_T}, s{S_T}, s{S_W}
s_mul_i32 s{S_T}, s{S_T}, {32*1152}
v_and_b32 v14, 31, v0
v_mul_u32_u24 v14, 1152, v14
v_lshrrev_b32 v15, 5, v0
v_lshl_add_u32 v14, v15, 4, v14
s_waitcnt lgkmcnt(0)
""")
    srd(a, S_A, S_PQ, 2048*1152)
    for t in range(36):
        a(f"buffer_load_dwordx4 v[{XF+4*t}:{XF+4*t+3}], v14, s[{S_A}:{S_A+3}], s{S_T} offen offset:{32*t}")
    a("v_mov_b32 v16, 0x3f803f80")
    for i in range(4): a(f"v_mov_b32 v{20+i}, 0")
    for t in range(36):
        a(f"s_waitcnt vmcnt({35-t})")
        for i in range(4): a(f"v_dot2c_f32_bf16 v{20+i}, v{XF+4*t+i}, v16")
    a(f"""
s_nop 2
v_add_f32 v20, v20, v21
v_add_f32 v22, v22, v23
v_add_f32 v20, v20, v22
v_mov_b32 v21, v20
v_permlane32_swap_b32 v20, v21
v_add_f32 v20, v20, v21
v_mul_f32 v20, {f32bits(1.0/576):#x}, v20
v_cvt_pk_bf16_f32 v21, v20, v20
v_lshlrev_b32 v22, 16, v21
v_mov_b32 v23, v22
v_sub_f32 v24, v20, v22
v_mov_b64 v[26:27], 0
v_mov_b64 v[28:29], 0
""")
    for d in range(144):
        x = XF + d; t0 = 32 + 2*(d % 4); acc = 26 + 2*(d % 2)
        a(f"""
v_lshlrev_b32 v{t0}, 16, v{x}
v_and_b32 v{t0+1}, 0xffff0000, v{x}
v_pk_add_f32 v[{t0}:{t0+1}], v[{t0}:{t0+1}], v[22:23] neg_lo:[0,1] neg_hi:[0,1]
v_pk_fma_f32 v[{acc}:{acc+1}], v[{t0}:{t0+1}], v[{t0}:{t0+1}], v[{acc}:{acc+1}]
v_cvt_pk_bf16_f32 v{x}, v{t0}, v{t0+1}
""")
    a(f"""
v_pk_add_f32 v[26:27], v[26:27], v[28:29]
v_add_f32 v26, v26, v27
v_mov_b32 v27, v26
v_permlane32_swap_b32 v26, v27
v_add_f32 v26, v26, v27
v_mul_f32 v26, {f32bits(1.0/576):#x}, v26
v_fma_f32 v26, -v24, v24, v26
v_max_f32 v26, 0, v26
v_cvt_pk_bf16_f32 v26, v26, v26
v_lshlrev_b32 v26, 16, v26
v_add_f32 v26, {f32bits(1e-5):#x}, v26
v_cvt_pk_bf16_f32 v26, v26, v26
v_lshlrev_b32 v26, 16, v26
v_sqrt_f32 v26, v26
v_cvt_pk_bf16_f32 v26, v26, v26
v_lshlrev_b32 v26, 16, v26
v_rcp_f32 v26, v26
v_mov_b32 v27, v26
""")
    for d in range(144):
        x = XF + d; t0 = 32 + 2*(d % 4)
        a(f"""
v_lshlrev_b32 v{t0}, 16, v{x}
v_and_b32 v{t0+1}, 0xffff0000, v{x}
v_pk_mul_f32 v[{t0}:{t0+1}], v[{t0}:{t0+1}], v[26:27]
v_cvt_pk_bf16_f32 v{x}, v{t0}, v{t0+1}
""")

STAMPS = False
def wstamp(a, i, st=None):
    if not STAMPS: return
    a(f"""
s_memtime s[98:99]
s_waitcnt lgkmcnt(0)
s_sub_u32 s97, s98, s96
s_add_u32 s{84+i}, s{84+i}, s97
s_mov_b32 s96, s98
""")
def wstamp_init(a):
    if not STAMPS: return
    for i in range(12): a(f"s_mov_b32 s{84+i}, 0")
    a("s_memtime s[96:97]\ns_waitcnt lgkmcnt(0)")
def wstamp_dump(a, slot_sgpr):
    if not STAMPS: return
    a(f"s_lshl_b32 s97, s{slot_sgpr}, 2\ns_add_u32 s97, s97, s{S_W}\ns_lshl_b32 s97, s97, 6\ns_add_u32 s97, s97, {61*MiB}\nv_mov_b32 v32, 0\ns_mov_b64 exec, 1")
    for i in range(12): a(f"v_mov_b32 v{36+i}, s{84+i}")
    for i in range(3): a(f"buffer_store_dwordx4 v[{36+4*i}:{39+4*i}], v32, s[{S_WS}:{S_WS+3}], s97 offen offset:{16*i}")
    a("s_mov_b64 exec, -1\ns_waitcnt vmcnt(0)")

class Stream:
    def __init__(self, a, R, D):
        self.a, self.R, self.D = a, R, D
        self.V = Ctr(a, "vmcnt", 63); self.L = Ctr(a, "lgkmcnt", 15)
    def dma(self, slot, i, srd_, vo, sbase, const, tag):
        a = self.a
        a(f"s_add_u32 m0, s{S_WM0}, {slot*12288 + i*4096}")
        if const: a(f"s_add_u32 s{S_T}, s{sbase}, {const}"); so = S_T
        else: so = sbase
        self.V.issue(tag, f"buffer_load_dwordx4 v{vo}, s[{srd_}:{srd_+3}], s{so} offen lds")
    def rd(self, slot, f, buf, tag, paired=False):
        off = slot*12288 + f*1024
        if paired: off = slot*12288 + (f >> 1)*2048 + (f & 1)*512
        b = (V_FP if paired else V_FR) + (off >> 16); off &= 0xffff
        assert off + 256 < 65536
        d = FB + 4*buf
        self.L.issue(tag, f"ds_read_b64_tr_b16 v[{d}:{d+1}], v{b} offset:{off}")
        self.L.issue(tag, f"ds_read_b64_tr_b16 v[{d+2}:{d+3}], v{b} offset:{off+256}")

def qkv_phase(a, Lexit_fail=None, signal=None):
    ws = f"s[{S_WS}:{S_WS+3}]"
    R, D = 6, 4
    load_ptr(a, S_PQ, 'Wq'); load_ptr(a, S_PK, 'Wk'); load_ptr(a, S_PV, 'Wv')
    a("s_waitcnt lgkmcnt(0)")
    def item_src(c, dsrd, doff):
        a(f"""
s_min_u32 s{S_T2}, s{c}, 191
s_cmp_lt_u32 s{S_T2}, 64
s_cselect_b32 s{dsrd}, s{S_PK}, s{S_PV}
s_cselect_b32 s{dsrd+1}, s{S_PK+1}, s{S_PV+1}
s_cmp_lt_u32 s{S_T2}, 128
s_cselect_b32 s{dsrd}, s{dsrd}, s{S_PQ}
s_cselect_b32 s{dsrd+1}, s{dsrd+1}, s{S_PQ+1}
s_mov_b32 s{dsrd+2}, {W_BYTES}
s_mov_b32 s{dsrd+3}, 0x20000
s_and_b32 s{doff}, s{S_T2}, 63
s_lshl_b32 s{doff}, s{doff}, 7
""")
    S_NKV, S_NQ, S_R1, S_R2, S_I, S_N, S_KV0, S_KVS, S_QB = (S_K + i for i in range(9))
    Lsp = a.label_name("Lqsp"); Lse = a.label_name("Lqse")
    a(f"""
s_cmp_lt_u32 s{S_J}, 2
s_cselect_b32 s{S_QB}, 10, 9
s_cmp_lt_u32 s{S_J}, 10
s_cselect_b32 s{S_N}, 14, 13
s_sub_u32 s{S_NQ}, s{S_N}, s{S_QB}
s_mov_b32 s{S_R2}, s{S_RB}
""")
    for _ in range(4):
        a(f"s_sub_u32 s{S_T}, s{S_R2}, s{S_NQ}\ns_cmp_lt_u32 s{S_R2}, s{S_NQ}\ns_cselect_b32 s{S_R2}, s{S_R2}, s{S_T}")
    a(f"""
s_cmp_lg_u32 s{S_HELP}, 0
s_cbranch_scc1 {Lsp}
s_mov_b32 s{S_NKV}, s{S_QB}
s_mov_b32 s{S_KV0}, 0
s_mov_b32 s{S_KVS}, 1
s_sub_u32 s{S_R1}, s{S_RB}, s{S_NKV}
s_cmp_lt_u32 s{S_RB}, s{S_NKV}
s_cselect_b32 s{S_R1}, s{S_RB}, s{S_R1}
s_branch {Lse}
""")
    a.label(Lsp)
    a(f"""
s_sub_u32 s{S_KV0}, s{S_HELP}, 1
s_mov_b32 s{S_KVS}, 5
s_mov_b32 s{S_R1}, 0
s_add_u32 s{S_T}, s{S_KV0}, 5
s_cmp_lt_u32 s{S_T}, s{S_QB}
s_cselect_b32 s{S_NKV}, 2, 1
s_add_u32 s{S_N}, s{S_NKV}, s{S_NQ}
s_cmp_gt_u32 s{S_HELP}, 1
s_cselect_b32 s{S_N}, s{S_NKV}, s{S_N}
""")
    a.label(Lse)
    def calc_c(add, dst):
        a(f"""
s_add_u32 s{S_T}, s{S_I}, {add}
s_add_u32 s{S_T2}, s{S_T}, s{S_R1}
s_sub_u32 s{S_T3}, s{S_T2}, s{S_NKV}
s_cmp_lt_u32 s{S_T2}, s{S_NKV}
s_cselect_b32 s{dst}, s{S_T2}, s{S_T3}
s_mul_i32 s{dst}, s{dst}, s{S_KVS}
s_add_u32 s{dst}, s{dst}, s{S_KV0}
s_sub_u32 s{S_T2}, s{S_T}, s{S_NKV}
s_add_u32 s{S_T2}, s{S_T2}, s{S_R2}
s_sub_u32 s{S_T3}, s{S_T2}, s{S_NQ}
s_cmp_lt_u32 s{S_T2}, s{S_NQ}
s_cselect_b32 s{S_T2}, s{S_T2}, s{S_T3}
s_add_u32 s{S_T2}, s{S_T2}, s{S_QB}
s_cmp_lt_u32 s{S_T}, s{S_NKV}
s_cselect_b32 s{dst}, s{dst}, s{S_T2}
s_mul_i32 s{dst}, s{dst}, 14
s_add_u32 s{dst}, s{dst}, s{S_J}
s_cmp_lt_u32 s{S_T}, s{S_N}
s_cselect_b32 s{dst}, s{dst}, 192
""")
    a(f"s_mov_b32 s{S_I}, 0")
    calc_c(0, S_IT); calc_c(1, S_ITN)
    item_src(S_IT, S_A, S_CUR); item_src(S_ITN, S_B, S_NXT)
    st = Stream(a, R, D)
    def issue(p):
        pp = p % 6
        sr_, sb = (S_A, S_CUR) if p < 6 else (S_B, S_NXT)
        for i in range(3):
            st.dma(pp % R, i, sr_, V_VO, sb, (6*pp + 2*i)*16*8192, ("d", p))
    for p in range(D): issue(p)
    a("s_waitcnt vmcnt(0)\ns_barrier")
    wstamp(a, 1)
    st.V.q = []
    for f in range(NFB - 1): st.rd(0, f, f, ("f", f), True)
    pre_L = list(st.L.q)
    Lloop = a.label_name("Lqkv"); Lv = a.label_name("Lqkv_v"); Lnext = a.label_name("Lqkv_n"); Ldone = a.label_name("Lqkv_d")
    def body(isv, Vq):
        st.V.q = list(Vq); st.L.q = list(pre_L)
        for p in range(6):
            wstamp(a, 2)
            st.V.wait(("d", p + 1))
            wstamp(a, 3)
            a("s_barrier")
            wstamp(a, 4)
            if p == 3 and signal:
                Lns = a.label_name("Lnosig")
                a(f"s_cmp_lg_u32 s{S_I}, s{S_NKV}\ns_cbranch_scc1 {Lns}")
                signal(a, f"s{S_NKV}")
                a.label(Lns)
            issue(p + D)
            for f in range(12):
                phi = 12*p + f; t = phi >> 1; nt = phi & 1
                nx = phi + NFB - 1
                st.rd((nx // 12) % R, nx % 12, nx % NFB, ("f", nx % 72 if nx >= 72 else nx), True)
                st.L.wait(("f", phi))
                W = f"v[{FB+4*(phi%NFB)}:{FB+4*(phi%NFB)+3}]"; X = f"v[{XF+4*t}:{XF+4*t+3}]"
                acc = f"v[{ACC0+16*nt}:{ACC0+16*nt+15}]"
                A_, B_ = (X, W) if isv else (W, X)
                a(f"v_mfma_f32_32x32x16_bf16 {acc}, {A_}, {B_}, {acc if t else 0}")
        wstamp(a, 2)
        a(f"""
s_and_b32 s{S_T2}, s{S_IT}, 63
s_lshr_b32 s{S_OB}, s{S_T2}, 1
s_lshl_b32 s{S_OB}, s{S_OB}, 19
s_and_b32 s{S_T2}, s{S_T2}, 1
s_lshl_b32 s{S_T2}, s{S_T2}, 12
s_add_u32 s{S_OB}, s{S_OB}, s{S_T2}
""")
        if isv: a(f"s_add_u32 s{S_OB}, s{S_OB}, {WS_VT}")
        else: a(f"s_cmp_lt_u32 s{S_IT}, 64\ns_cselect_b32 s{S_T2}, {WS_K}, {WS_Q}\ns_add_u32 s{S_OB}, s{S_OB}, s{S_T2}")
        for nt in range(2):
            for u in range(2):
                b = ACC0 + 16*nt + 8*u; d = 64 + 4*(2*nt + u)
                for i in range(4): a(f"v_cvt_pk_bf16_f32 v{d+i}, v{b+2*i}, v{b+2*i+1}")
                st.V.issue("st", f"buffer_store_dwordx4 v[{d}:{d+3}], v{V_ST}, {ws}, s{S_OB} offen offset:{(2*nt+u)*1024} sc1")
        wstamp(a, 5)
        return [(t_[0], t_[1] - 6) if isinstance(t_, tuple) and t_[0] == "d" else t_ for t_ in st.V.q]
    real = st.a
    scratch = Asm(); st.a = st.V.a = st.L.a = scratch
    g = globals()
    a_save = a
    def with_asm(x):
        nonlocal a
        a = x; st.a = st.V.a = st.L.a = x
    with_asm(scratch); q1 = body(False, []); q2 = body(False, q1); assert q1 == q2, (q1, q2)
    with_asm(a_save)
    a.label(Lloop)
    a(f"s_cmp_lt_u32 s{S_IT}, 64\ns_cbranch_scc1 {Lloop}_k\ns_cmp_lt_u32 s{S_IT}, 128\ns_cbranch_scc1 {Lv}")
    a.label(Lloop + "_k")
    body(False, q1)
    a(f"s_branch {Lnext}")
    a.label(Lv)
    body(True, q1)
    a.label(Lnext)
    a(f"""
s_mov_b32 s{S_IT}, s{S_ITN}
s_add_u32 s{S_I}, s{S_I}, 1
s_mov_b32 s{S_A}, s{S_B}
s_mov_b32 s{S_A+1}, s{S_B+1}
s_mov_b32 s{S_CUR}, s{S_NXT}
""")
    calc_c(1, S_ITN)
    item_src(S_ITN, S_B, S_NXT)
    a(f"s_cmp_lt_u32 s{S_IT}, 192\ns_cbranch_scc1 {Lloop}")
    a("s_waitcnt vmcnt(0) lgkmcnt(0)\ns_barrier")
    if signal:
        a(f"s_lshl_b32 s{S_T2}, s{S_NQ}, 16\ns_cmp_eq_u32 s{S_N}, s{S_NKV}\ns_cselect_b32 s{S_T2}, s{S_NKV}, s{S_T2}")
        signal(a, f"s{S_T2}")

GA, UA, GL, HF = 32, 48, 64, 72
V_C0 = 8
GELU_C0 = -2.0 * 0.7978845608028654 * 1.4426950408889634
GELU_C1 = GELU_C0 * 0.044715
WG_BYTES = 576 * 4608 * 2

def work_split(a):
    L = a.label_name("Lws"); L2 = a.label_name("Lws2")
    a(f"""
s_cmp_ge_u32 s{S_RB}, {RB_MID}
s_cbranch_scc1 {L2}
s_mul_i32 s{S_IT}, s{S_J}, 9
s_add_u32 s{S_END}, s{S_IT}, 9
s_mul_i32 s{S_H}, s{S_J}, 3
s_add_u32 s{S_HE}, s{S_H}, 3
s_cmp_lt_u32 s{S_J}, 4
s_cbranch_scc1 {L}
s_sub_u32 s{S_T}, s{S_J}, 4
s_mul_i32 s{S_IT}, s{S_T}, 11
s_add_u32 s{S_IT}, s{S_IT}, 36
s_add_u32 s{S_END}, s{S_IT}, 11
s_lshl_b32 s{S_H}, s{S_T}, 1
s_add_u32 s{S_H}, s{S_H}, 12
s_add_u32 s{S_HE}, s{S_H}, 2
s_cmp_lt_u32 s{S_J}, 12
s_cbranch_scc1 {L}
s_sub_u32 s{S_T}, s{S_J}, 12
s_mul_i32 s{S_IT}, s{S_T}, 10
s_add_u32 s{S_IT}, s{S_IT}, 124
s_add_u32 s{S_END}, s{S_IT}, 10
s_branch {L}
""")
    a.label(L2)
    a(f"""
s_mul_i32 s{S_IT}, s{S_J}, 10
s_min_u32 s{S_T}, s{S_J}, 4
s_add_u32 s{S_IT}, s{S_IT}, s{S_T}
s_cmp_lt_u32 s{S_J}, 4
s_cselect_b32 s{S_T}, 11, 10
s_add_u32 s{S_END}, s{S_IT}, s{S_T}
""")
    a.label(L)

def gelu_ops(e0, e1):
    ops = []
    S_C1 = S_K + 8
    for e in range(e0, e1, 2):
        x0, x1 = GA + e, GA + e + 1; t0, t1 = 12 + (e & 2), 13 + (e & 2)
        ops += [f"v_mul_f32 v{t0}, v{x0}, v{x0}", f"v_mul_f32 v{t1}, v{x1}, v{x1}",
                f"v_fma_f32 v{t0}, v{t0}, s{S_C1}, v{V_C0}", f"v_fma_f32 v{t1}, v{t1}, s{S_C1}, v{V_C0}",
                f"v_mul_f32 v{t0}, v{t0}, v{x0}", f"v_mul_f32 v{t1}, v{t1}, v{x1}",
                f"v_exp_f32 v{t0}, v{t0}", f"v_exp_f32 v{t1}, v{t1}",
                f"v_add_f32 v{t0}, 1.0, v{t0}", f"v_add_f32 v{t1}, 1.0, v{t1}",
                f"v_rcp_f32 v{t0}, v{t0}", f"v_rcp_f32 v{t1}, v{t1}",
                f"v_mul_f32 v{t0}, v{t0}, v{x0}", f"v_mul_f32 v{t1}, v{t1}, v{x1}",
                f"v_cvt_pk_bf16_f32 v{GL + e//2}, v{t0}, v{t1}"]
    return ops

def h_ops():
    ops = []
    for e in range(0, 16, 2):
        t0, t1 = 12 + (e & 2), 13 + (e & 2)
        ops += [f"v_lshlrev_b32 v{t0}, 16, v{GL + e//2}", f"v_and_b32 v{t1}, 0xffff0000, v{GL + e//2}",
                f"v_mul_f32 v{t0}, v{t0}, v{UA+e}", f"v_mul_f32 v{t1}, v{t1}, v{UA+e+1}",
                f"v_cvt_pk_bf16_f32 v{HF + e//2}, v{t0}, v{t1}"]
    return ops

def zero_out_acc(a):
    for n in range(16):
        for r in range(16): a(f"v_accvgpr_write_b32 a{16*n + r}, 0")
    for r in range(80, 112, 2): a(f"v_mov_b64 v[{r}:{r+1}], 0")

def ffn_phase(a):
    R, D = 9, 7
    S_C1 = S_K + 8; S_FIRST = S_K + 9
    load_ptr(a, S_PQ, 'Wg'); load_ptr(a, S_PK, 'Wu'); load_ptr(a, S_PV, 'Wd')
    a(f"s_mov_b32 s{S_C1}, {f32bits(GELU_C1):#x}\nv_mov_b32 v{V_C0}, {f32bits(GELU_C0):#x}\ns_mov_b32 s{S_FIRST}, s{S_IT}\ns_waitcnt lgkmcnt(0)")
    srd(a, S_A, S_PQ, WG_BYTES); srd(a, S_B, S_PK, WG_BYTES); srd(a, S_C, S_PV, WG_BYTES)
    OOB = 0x7f000000
    def bases():
        a(f"""
s_lshl_b32 s{S_CUR}, s{S_IT}, 6
s_cmp_lt_u32 s{S_IT}, s{S_END}
s_cselect_b32 s{S_CUR}, s{S_CUR}, {OOB}
s_add_u32 s{S_T}, s{S_IT}, 1
s_lshl_b32 s{S_NXT}, s{S_T}, 6
s_cmp_lt_u32 s{S_T}, s{S_END}
s_cselect_b32 s{S_NXT}, s{S_NXT}, {OOB}
s_mul_i32 s{S_NXTC}, s{S_IT}, {32*1152}
s_sub_u32 s{S_CURC}, s{S_NXTC}, {32*1152}
s_cmp_lt_u32 s{S_IT}, s{S_END}
s_cselect_b32 s{S_NXTC}, s{S_NXTC}, {OOB}
s_cmp_gt_u32 s{S_IT}, s{S_FIRST}
s_cselect_b32 s{S_CURC}, s{S_CURC}, {OOB}
""")
    bases()
    st = Stream(a, R, D)
    def issue(p):
        pp = p % 9; nxt = p >= 9; grp, q = divmod(pp, 3)
        for i in range(3):
            if grp < 2:
                st.dma(pp, i, S_A if grp == 0 else S_B, V_VO + 1, S_NXT if nxt else S_CUR, (12*q + 4*i)*16*9216, ("d", p))
            else:
                st.dma(pp, i, S_C, V_VO + 2, S_NXTC if nxt else S_CURC, (6*q + 2*i)*64, ("d", p))
    for p in range(D): issue(p)
    zero_out_acc(a)
    a("s_waitcnt vmcnt(0)\ns_barrier")
    st.V.q = []
    for f in range(NFB - 1): st.rd(0, f, f, ("f", f))
    pre_L = list(st.L.q)
    def group(grp, full, valu):
        valu = list(valu)
        per = -(-len(valu) // 34) if full else 0
        for q in range(3):
            p = 3*grp + q
            st.V.wait(("d", p + 1))
            a("s_barrier")
            issue(p + D)
            for f in range(12):
                phi = 12*p + f; g = phi - 36*grp
                nx = phi + NFB - 1
                if not full and g < 36 - (NFB - 1): continue
                if not full and g == 36 - (NFB - 1):
                    st.L.wait_all()
                    for v in valu: a(v)
                    valu = []
                st.rd((nx // 12) % R, nx % 12, nx % NFB, ("f", nx % 108))
                if not full: continue
                st.L.wait(("f", phi))
                Wf = f"v[{FB+4*(phi%NFB)}:{FB+4*(phi%NFB)+3}]"
                if grp < 2:
                    acc = f"v[{(GA, UA)[grp]}:{(GA, UA)[grp]+15}]"
                    a(f"v_mfma_f32_32x32x16_bf16 {acc}, {Wf}, v[{XF+4*g}:{XF+4*g+3}], {acc if g else 0}")
                else:
                    n, u2 = g >> 1, g & 1
                    acc = R_(OUT(n), 16)
                    a(f"v_mfma_f32_32x32x16_bf16 {acc}, {Wf}, v[{HF+4*u2}:{HF+4*u2+3}], {acc}")
                if g >= 1:
                    for _ in range(per):
                        if valu: a(valu.pop(0))
        for v in valu: a(v)
    def rename(q): return [(t[0], t[1] - 9) for t in q]
    a_save = a
    def with_asm(x):
        nonlocal a
        a = x; st.a = st.V.a = st.L.a = x
    payload = [h_ops(), gelu_ops(0, 8), gelu_ops(8, 16)]
    with_asm(Asm())
    st.V.q = []; qs = None
    for it in range(2):
        qs = []
        for grp in range(3):
            qs.append(list(st.V.q)); st.L.q = [("f", 36*grp + k) for k in range(NFB - 1) for _ in range(2)]
            group(grp, True, payload[grp])
        st.V.q = rename(st.V.q)
    with_asm(a_save)
    Lloop = a.label_name("Lffn")
    a.label(Lloop)
    for grp in range(3):
        Ll = a.label_name("Lffn_l"); Le = a.label_name("Lffn_e")
        if grp < 2: a(f"s_cmp_lt_u32 s{S_IT}, s{S_END}\ns_cbranch_scc0 {Ll}")
        else: a(f"s_cmp_gt_u32 s{S_IT}, s{S_FIRST}\ns_cbranch_scc0 {Ll}")
        for full in (True, False):
            if not full: a.label(Ll)
            st.V.q = list(qs[grp]); st.L.q = [("f", 36*grp + k) for k in range(NFB - 1) for _ in range(2)]
            group(grp, full, payload[grp] if (full or grp != 1) else [])
            if full: a(f"s_branch {Le}")
        a.label(Le)
    a(f"s_add_u32 s{S_IT}, s{S_IT}, 1")
    bases()
    a(f"s_cmp_le_u32 s{S_IT}, s{S_END}\ns_cbranch_scc1 {Lloop}")
    a("s_waitcnt vmcnt(0) lgkmcnt(0)\ns_barrier")

R_ = R

QF, KF, KMF, VF, VMF = 112, 144, 176, 208, 240
SX, SM, PX, PM = 32, 48, 64, 72
OT, OB = 112, 32
S_MASK = 64
SCALE_LOG2E = 0.08838834764831845 * 1.4426950408889634

S_PB = S_K + 12
S_ITEM = S_K + 13
S_TBL = S_K + 14
S_REP = 7
S_G = 6
S_GR = 24

def rb_consts(a):
    S_SEG = S_K + 9
    a(f"""
s_mul_i32 s{S_PB}, s{S_RB}, {14*PART_BYTES}
s_sub_u32 s{S_T}, s{S_RB}, {RB_MID}
s_max_i32 s{S_T}, s{S_T}, 0
s_mul_i32 s{S_T}, s{S_T}, {16*PART_BYTES}
s_add_u32 s{S_PB}, s{S_PB}, s{S_T}
s_sub_u32 s{S_T}, s{S_RB}, {RB_FINE}
s_max_i32 s{S_T}, s{S_T}, 0
s_mul_i32 s{S_T}, s{S_T}, {16*PART_BYTES}
s_add_u32 s{S_PB}, s{S_PB}, s{S_T}
s_add_u32 s{S_PB}, s{S_PB}, {WS_OUTP}
s_lshl_b32 s{S_SEG}, s{S_RB}, 2
s_add_u32 s{S_SEG}, s{S_SEG}, s{S_W}
s_lshl_b32 s{S_T}, s{S_SEG}, 13
v_and_b32 v12, 31, v0
v_lshrrev_b32 v13, 5, v0
v_lshlrev_b32 v{V_ST}, 5, v12
v_lshl_add_u32 v{V_ST}, v13, 4, v{V_ST}
v_add_u32 v{V_ST}, s{S_T}, v{V_ST}
""")

def store_tiles(a, part_sgpr, nt0_sgpr, ntiles, regf, own=False):
    ws = f"s[{S_WS}:{S_WS+3}]"
    a(f"""
s_lshl_b32 s{S_T}, s{part_sgpr}, 2
s_add_u32 s{S_T}, s{S_T}, s{S_W}
s_mul_i32 s{S_T}, s{S_T}, 73728
s_add_u32 s{S_T}, s{S_T}, s{S_PB}
""")
    if nt0_sgpr is not None: a(f"s_lshl_b32 s{S_T2}, s{nt0_sgpr}, 12\ns_add_u32 s{S_T}, s{S_T}, s{S_T2}")
    a("v_lshlrev_b32 v12, 4, v0\ns_nop 7")
    for n in range(ntiles):
        for q in range(4):
            a(f"buffer_store_dwordx4 {R_(regf(n) + 4*q, 4)}, v12, {ws}, s{S_T} offen offset:{q*1024} sc1")
        a(f"s_add_u32 s{S_T}, s{S_T}, 4096")
    a("s_waitcnt vmcnt(0)\ns_barrier")
    L = a.label_name("Ldn")
    a(f"""
s_cmp_lg_u32 s{S_W}, 0
s_cbranch_scc1 {L}
s_lshl_b32 s{S_T}, s{S_RB}, 7
s_add_u32 s{S_T}, s{S_T}, {WS_CNT}
v_mov_b32 v12, 0
v_mov_b32 v13, {1 if own else 0x10000}
s_mov_b64 exec, 1
buffer_atomic_add v13, v12, {ws}, s{S_T} offen sc0 sc1
s_cmp_ge_u32 s{S_RB}, {RB_FINE}
s_cselect_b32 s{S_T3}, {13 if own else 95}, {13 if own else 47}
s_waitcnt vmcnt(0)
v_readfirstlane_b32 s{S_T}, v13
s_mov_b64 exec, -1
{f"s_and_b32 s{S_T}, s{S_T}, 0xffff" if own else f"s_lshr_b32 s{S_T}, s{S_T}, 16"}
s_cmp_lg_u32 s{S_T}, s{S_T3}
s_cbranch_scc1 {L}
s_add_u32 s{S_T}, s{S_RB}, {WS_FLAGS + (48 if own else 32)}
v_lshlrev_b32 v12, 7, v0
v_mov_b32 v13, 1
s_mov_b32 exec_hi, 0
buffer_store_byte v13, v12, {ws}, s{S_T} offen sc1
s_mov_b64 exec, -1
""")
    a.label(L)

def attn_setup(a, Lfail):
    S_SC = S_K + 8
    load_ptr(a, S_PQ, 'Wo'); load_ptr(a, S_PK, 'x'); load_ptr(a, S_PV, 'out')
    a(f"""
s_mov_b32 s{S_SC}, {f32bits(SCALE_LOG2E):#x}
v_and_b32 v12, 31, v0
v_lshrrev_b32 v13, 5, v0
v_lshlrev_b32 v14, 2, v13
v_sub_u32 v14, v12, v14
""")
    for r in range(16):
        a(f"v_cmp_ge_i32 s[{S_MASK+2*r}:{S_MASK+2*r+1}], v14, {8*(r>>2) + (r&3)}")
    a(f"""
v_and_b32 v10, 7, v0
v_lshlrev_b32 v10, 5, v10
v_lshl_add_u32 v10, v13, 4, v10
v_lshlrev_b32 v11, 4, v12
v_lshl_add_u32 v11, v13, 3, v11
v_mul_u32_u24 v8, 1152, v12
v_lshl_add_u32 v8, v13, 3, v8
s_getpc_b64 s[{S_TBL}:{S_TBL+1}]
s_add_u32 s{S_TBL}, s{S_TBL}, queue_table@rel32@lo+4
s_addc_u32 s{S_TBL+1}, s{S_TBL+1}, queue_table@rel32@hi+12
s_waitcnt lgkmcnt(0)
""")
    srd(a, S_A, S_PQ, W_BYTES); srd(a, S_B, S_PK, 2048*1152); srd(a, S_C, S_PV, 2048*1152)
    Lh = a.label_name("Lhs"); Lo = a.label_name("Lhso")
    a(f"""
s_lshl_b32 s{S_REP}, s{S_J}, 4
s_add_u32 s{S_REP}, s{S_REP}, s{S_RB}
s_and_b32 s{S_REP}, s{S_REP}, 31
s_lshl_b32 s{S_REP}, s{S_REP}, 7
s_add_u32 s{S_REP}, s{S_REP}, {WS_FLAGS}
v_mov_b32 v12, 0
s_mov_b32 s{S_SPIN}, 0
""")
    a.label(Lh)
    a(f"""
global_load_dword v14, v12, s[{S_DBG}:{S_DBG+1}] offset:{DBG_XMASK*4 + 4} sc1
s_add_u32 s{S_SPIN}, s{S_SPIN}, 1
s_cmp_gt_u32 s{S_SPIN}, 0x40000
s_cbranch_scc1 {Lfail}
s_waitcnt vmcnt(0)
v_readfirstlane_b32 s{S_T}, v14
s_lshr_b32 s{S_T}, s{S_T}, 24
s_cmp_ge_u32 s{S_T}, 32
s_cbranch_scc1 {Lo}
s_sleep 64
s_branch {Lh}
""")
    a.label(Lo)

ITEM_TL = False
def item_stamp(a, k):
    if not ITEM_TL: return
    L = a.label_name("Lits")
    a(f"""
s_cmp_lg_u32 s{S_W}, 3
s_cbranch_scc1 {L}
s_memrealtime s[98:99]
s_lshl_b32 s100, s101, 2
s_add_u32 s100, s100, {63*MiB + 4*k}
s_waitcnt lgkmcnt(0)
v_mov_b32 v14, s98
v_mov_b32 v15, 0
s_mov_b64 exec, 1
buffer_store_dword v14, v15, s[{S_WS}:{S_WS+3}], s100 offen
s_mov_b64 exec, -1
""")
    a.label(L)

def next_item(a, Lexit):
    L = a.label_name("Lq"); Lpk = a.label_name("Lqpk"); Ltk = a.label_name("Lqtk"); Lgot = a.label_name("Lqgot"); Lng = a.label_name("Lqng")
    ng = len(queue_groups())
    GT = 72 + 24
    a(f"""
s_barrier
v_mov_b32 v12, 0
s_cmp_lg_u32 s{S_W}, 0
s_cbranch_scc1 {L}
s_mov_b64 exec, 1
""")
    a.label(Lng)
    a(f"""
s_mov_b32 s{S_T}, -1
s_cmp_ge_u32 s{S_G}, {ng}
s_cbranch_scc1 {Lgot}
s_lshl_b32 s{S_T}, s{S_G}, 4
s_load_dwordx4 s[{S_GR}:{S_GR+3}], s[{S_TBL}:{S_TBL+1}], s{S_T}
s_mov_b32 s{S_SPIN}, 0
""")
    a.label(Lpk)
    a(f"""
buffer_load_ubyte v15, v12, s[{S_WS}:{S_WS+3}], s{S_REP} offen sc1
s_add_u32 s{S_SPIN}, s{S_SPIN}, 1
s_cmp_gt_u32 s{S_SPIN}, 0x20000
s_cbranch_scc1 {Ltk}
s_waitcnt vmcnt(0) lgkmcnt(0)
v_readfirstlane_b32 s{S_T2}, v15
s_cmp_ge_u32 s{S_T2}, s{S_GR}
s_cbranch_scc1 {Ltk}
s_sleep 16
s_branch {Lpk}
""")
    a.label(Ltk)
    a(f"""
s_waitcnt vmcnt(0) lgkmcnt(0)
v_mov_b32 v14, 1
buffer_atomic_add v14, v12, s[{S_WS}:{S_WS+3}], s{S_GR+1} offen sc0 sc1
s_waitcnt vmcnt(0)
v_readfirstlane_b32 s{S_T}, v14
s_cmp_lt_u32 s{S_T}, s{S_GR+3}
s_cselect_b32 s{S_T2}, 0, 1
s_add_u32 s{S_G}, s{S_G}, s{S_T2}
s_cmp_lg_u32 s{S_T2}, 0
s_cbranch_scc1 {Lng}
s_add_u32 s{S_T}, s{S_T}, s{S_GR+2}
""")
    a.label(Lgot)
    a(f"""
v_mov_b32 v14, s{S_T}
ds_write_b32 v12, v14
s_mov_b64 exec, -1
""")
    a.label(L)
    a(f"""
s_waitcnt lgkmcnt(0)
s_barrier
ds_read_b32 v14, v12
s_waitcnt lgkmcnt(0)
v_readfirstlane_b32 s{S_T}, v14
s_barrier
s_cmp_eq_u32 s{S_T}, -1
s_cbranch_scc1 {Lexit}
s_lshl_b32 s{S_T}, s{S_T}, 2
s_add_u32 s{S_T2}, s{S_T}, {16*ng}
s_load_dword s{S_ITEM}, s[{S_TBL}:{S_TBL+1}], s{S_T2}
s_waitcnt lgkmcnt(0)
s_bfe_u32 s{S_RB}, s{S_ITEM}, 0x40018
s_mov_b32 s101, s{S_T}
""")
    item_stamp(a, 0)

def attn_item(a, wait_head, tl=None, full=False):
    ws = f"s[{S_WS}:{S_WS+3}]"
    R = 12
    S_SC = S_K + 8; S_SEG = S_K + 9; S_O1, S_O2 = S_K + 10, S_K + 11
    S_TH, S_PART = S_IT, S_ITN
    ACC = OUT if full else (lambda n: 256 + 16*n)
    if full: a(f"s_mov_b32 s{S_TH}, 0")
    else: a(f"""
s_bfe_u32 s{S_H}, s{S_ITEM}, 0x80010
s_bfe_u32 s{S_HE}, s{S_ITEM}, 0x80008
s_add_u32 s{S_HE}, s{S_HE}, s{S_H}
s_and_b32 s{S_TH}, s{S_ITEM}, 3
s_bfe_u32 s{S_PART}, s{S_ITEM}, 0x60002
""")
    OOB = 0x7f000000
    def bases():
        a(f"""
s_mul_i32 s{S_CUR}, s{S_H}, 147456
s_mul_i32 s{S_T}, s{S_TH}, 384
s_add_u32 s{S_CUR}, s{S_CUR}, s{S_T}
s_add_u32 s{S_NXT}, s{S_CUR}, 147456
s_add_u32 s{S_T}, s{S_H}, 1
s_cmp_lt_u32 s{S_T}, s{S_HE}
s_cselect_b32 s{S_NXT}, s{S_NXT}, {OOB}
""")
    bases()
    st = Stream(a, R, 4)
    S_SLOT = S_CURC
    def issue(te, nxt):
        for i in range(3):
            a(f"s_add_u32 s{S_T2}, s{S_WM0}, {te*12288 + i*4096}")
            a(f"s_xor_b32 s{S_T3}, s{S_SLOT}, {49152 if nxt else 0}\ns_add_u32 m0, s{S_T2}, s{S_T3}")
            a(f"s_add_u32 s{S_T}, s{S_NXT if nxt else S_CUR}, {te*32*1152 + 2*i*64}")
            a(f"buffer_load_dwordx4 v{V_VO+2}, s[{S_A}:{S_A+3}], s{S_T} offen lds")
    D = 10
    def issue_f(p):
        pp = p % 12; te, q = divmod(pp, 3)
        for i in range(3):
            st.dma(pp, i, S_A, V_VO + 2, S_NXT if p >= 12 else S_CUR, te*32*1152 + (6*q + 2*i)*64, ("d", p))
    if full:
        for p in range(D): issue_f(p)
    else:
        a(f"s_mov_b32 s{S_SLOT}, 0")
        for te in range(4): issue(te, False)
        for n in range(6):
            for r in range(16): a(f"v_accvgpr_write_b32 a{16*n + r}, 0")
    def load_qkv(hreg):
        a(f"s_lshl_b32 s{S_O1}, s{hreg}, 19\ns_add_u32 s{S_O2}, s{S_O1}, {WS_K}")
        for s_ in range(8):
            if s_ == 4: a(f"s_add_u32 s{S_O1}, s{S_O1}, 4096\ns_add_u32 s{S_O2}, s{S_O2}, 4096")
            a(f"buffer_load_dwordx4 v[{QF+4*s_}:{QF+4*s_+3}], v{V_ST}, {ws}, s{S_O1} offen offset:{(s_&3)*1024} sc1")
            a(f"buffer_load_dwordx4 v[{KF+4*s_}:{KF+4*s_+3}], v{V_ST}, {ws}, s{S_O2} offen offset:{(s_&3)*1024} sc1")
        a(f"s_lshl_b32 s{S_O1}, s{hreg}, 19\ns_add_u32 s{S_O1}, s{S_O1}, {WS_VT}")
        for s_ in range(8):
            if s_ == 4: a(f"s_add_u32 s{S_O1}, s{S_O1}, 4096")
            a(f"buffer_load_dwordx4 v[{VF+4*s_}:{VF+4*s_+3}], v{V_ST}, {ws}, s{S_O1} offen offset:{(s_&3)*1024} sc1")
    def load_m(hreg):
        a(f"""
s_lshl_b32 s{S_O1}, s{S_SEG}, 5
s_add_u32 s{S_O1}, s{S_O1}, s{hreg}
s_lshl_b32 s{S_O1}, s{S_O1}, 11
s_add_u32 s{S_O2}, s{S_O1}, {WS_VM}
s_add_u32 s{S_O1}, s{S_O1}, {WS_KM}
""")
        for s_ in range(8):
            a(f"buffer_load_dwordx4 v[{KMF+4*s_}:{KMF+4*s_+3}], v10, {ws}, s{S_O1} offen offset:{s_*256} sc1")
        for te in range(4):
            a(f"buffer_load_dwordx2 v[{VMF+4*te}:{VMF+4*te+1}], v11, {ws}, s{S_O2} offen offset:{te*512} sc1")
    for te in range(4): a(f"v_mov_b64 v[{VMF+4*te+2}:{VMF+4*te+3}], 0")
    wait_head(a, 0)
    load_qkv(S_H)
    wait_head(a, 1)
    if tl: tl(a)
    if not full: item_stamp(a, 1)
    load_m(S_H)
    Lloop = a.label_name("Lattn")
    a.label(Lloop)
    Lfirst = a.label_name("Lattn1")
    if full:
        pass
    a("s_waitcnt vmcnt(20)")
    for s_ in range(8):
        a(f"v_mfma_f32_32x32x16_bf16 v[{SX}:{SX+15}], v[{KF+4*s_}:{KF+4*s_+3}], v[{QF+4*s_}:{QF+4*s_+3}], {f'v[{SX}:{SX+15}]' if s_ else 0}")
    for s_ in range(8):
        a(f"s_waitcnt vmcnt({11 - s_})")
        a(f"v_mfma_f32_32x32x16_bf16 v[{SM}:{SM+15}], v[{KMF+4*s_}:{KMF+4*s_+3}], v[{QF+4*s_}:{QF+4*s_+3}], {f'v[{SM}:{SM+15}]' if s_ else 0}")
    a("v_mov_b32 v12, 0xff800000")
    for r in range(16):
        a(f"v_cndmask_b32 v{SX+r}, v12, v{SX+r}, s[{S_MASK+2*r}:{S_MASK+2*r+1}]")
    xs = [SX + r for r in range(16)]; ms = [SM + r for r in range(4)]; vals = xs + ms
    a(f"v_max3_f32 v12, v{xs[0]}, v{xs[1]}, v{xs[2]}")
    for i in range(3, 15, 2): a(f"v_max3_f32 v12, v12, v{xs[i]}, v{xs[i+1]}")
    a(f"v_max_f32 v12, v12, v{xs[15]}")
    a(f"""
v_max3_f32 v12, v12, v{ms[0]}, v{ms[1]}
v_max3_f32 v12, v12, v{ms[2]}, v{ms[3]}
v_mov_b32 v13, v12
v_permlane32_swap_b32 v12, v13
v_max_f32 v12, v12, v13
v_mul_f32 v12, s{S_SC}, v12
""")
    for v in vals: a(f"v_fma_f32 v{v}, v{v}, s{S_SC}, -v12")
    for v in vals: a(f"v_exp_f32 v{v}, v{v}")
    a(f"v_add_f32 v12, v{vals[0]}, v{vals[1]}\nv_add_f32 v13, v{vals[2]}, v{vals[3]}")
    for i in range(4, 20, 2): a(f"v_add_f32 v12, v12, v{vals[i]}\nv_add_f32 v13, v13, v{vals[i+1]}")
    a(f"""
v_add_f32 v12, v12, v13
v_mov_b32 v13, v12
v_permlane32_swap_b32 v12, v13
v_add_f32 v12, v12, v13
v_rcp_f32 v12, v12
""")
    for v in range(0, 20, 2): a(f"v_pk_mul_f32 v[{vals[v]}:{vals[v]+1}], v[{vals[v]}:{vals[v]+1}], v[12:13] op_sel_hi:[1,0]")
    for i in range(8): a(f"v_cvt_pk_bf16_f32 v{PX+i}, v{SX+2*i}, v{SX+2*i+1}")
    a(f"v_cvt_pk_bf16_f32 v{PM}, v{SM}, v{SM+1}\nv_cvt_pk_bf16_f32 v{PM+1}, v{SM+2}, v{SM+3}\nv_mov_b64 v[{PM+2}:{PM+3}], 0")
    a("s_waitcnt vmcnt(0)")
    for te in range(4):
        o = f"v[{OT+16*te}:{OT+16*te+15}]"
        a(f"v_mfma_f32_32x32x16_bf16 {o}, v[{VMF+4*te}:{VMF+4*te+3}], v[{PM}:{PM+3}], 0")
        a(f"v_mfma_f32_32x32x16_bf16 {o}, v[{VF+8*te}:{VF+8*te+3}], v[{PX}:{PX+3}], {o}")
        a(f"v_mfma_f32_32x32x16_bf16 {o}, v[{VF+8*te+4}:{VF+8*te+7}], v[{PX+4}:{PX+7}], {o}")
    if not full: a(f"v_add_u32 v14, s{S_SLOT}, v{V_FR}")
    a("s_barrier")
    if not full:
        for te in range(4): issue(te, True)
    for te in range(4):
        for i in range(8): a(f"v_cvt_pk_bf16_f32 v{OB+8*te+i}, v{OT+16*te+2*i}, v{OT+16*te+2*i+1}")
    a(f"s_add_u32 s{S_HN}, s{S_H}, 1\ns_sub_u32 s{S_T}, s{S_HE}, 1\ns_min_u32 s{S_HN}, s{S_HN}, s{S_T}")
    Lnl = a.label_name("Lnl")
    a(f"s_cmp_eq_u32 s{S_HN}, s{S_H}\ns_cbranch_scc1 {Lnl}")
    load_qkv(S_HN); load_m(S_HN)
    a.label(Lnl)
    if full:
        st.V.q = []; st.L.q = []
        for f in range(NFB - 1): st.rd(0, f, f, ("f", f))
        for p in range(12):
            te, q = divmod(p, 3)
            if p:
                st.V.wait(("d", p + 1))
                a("s_barrier")
            issue_f(p + D)
            for f in range(12):
                phi = 12*p + f; g = phi - 36*te
                nx = phi + NFB - 1
                if nx < 144: st.rd(nx // 12, nx % 12, nx % NFB, ("f", nx))
                st.L.wait(("f", phi))
                n, u2 = g >> 1, g & 1
                acc = R_(OUT(n), 16)
                a(f"v_mfma_f32_32x32x16_bf16 {acc}, v[{FB+4*(phi%NFB)}:{FB+4*(phi%NFB)+3}], v[{OB+8*te+4*u2}:{OB+8*te+4*u2+3}], {acc}")
    else:
        L = Ctr(a, "lgkmcnt", 15)
        def rd(phi):
            d = FB + 4*(phi % NFB); off = phi*1024
            L.issue(phi, f"ds_read_b64_tr_b16 v[{d}:{d+1}], v14 offset:{off}")
            L.issue(phi, f"ds_read_b64_tr_b16 v[{d+2}:{d+3}], v14 offset:{off+256}")
        for phi in range(NFB - 1): rd(phi)
        for phi in range(48):
            te, f = divmod(phi, 12); n, u2 = f >> 1, f & 1
            if phi + NFB - 1 < 48: rd(phi + NFB - 1)
            L.wait(phi)
            acc = R_(ACC(n), 16)
            a(f"v_mfma_f32_32x32x16_bf16 {acc}, v[{FB+4*(phi%NFB)}:{FB+4*(phi%NFB)+3}], v[{OB+8*te+4*u2}:{OB+8*te+4*u2+3}], {acc}")
    a(f"s_add_u32 s{S_H}, s{S_H}, 1\ns_xor_b32 s{S_SLOT}, s{S_SLOT}, 49152")
    bases()
    a(f"s_cmp_lt_u32 s{S_H}, s{S_HE}\ns_cbranch_scc1 {Lloop}")
    if full: return
    a(f"s_mul_i32 s{S_TH}, s{S_TH}, 6")
    item_stamp(a, 2)
    store_tiles(a, S_PART, S_TH, 6, ACC)

def reduce_item(a, Lfail):
    ws = f"s[{S_WS}:{S_WS+3}]"
    S_SEG = S_K + 9
    S_NT, S_Q, S_NQ, S_XO, S_PO = S_IT, S_ITN, S_H, S_HE, S_HN
    Lq = a.label_name("Lrq"); Lbig = a.label_name("Lrbig"); Lfin = a.label_name("Lrfin"); Lnw = a.label_name("Lrnw")
    def wait_flag(off):
        L1 = a.label_name("Lrw"); L2 = a.label_name("Lrw2")
        a(f"s_cmp_lg_u32 s{S_W}, 0\ns_cbranch_scc1 {L2}\nv_mov_b32 v14, s{S_RB}\ns_mov_b32 s{S_SPIN}, 0")
        a.label(L1)
        a(f"""
buffer_load_ubyte v16, v14, {ws}, s{S_REP} offen offset:{off} sc1
s_add_u32 s{S_SPIN}, s{S_SPIN}, 1
s_cmp_gt_u32 s{S_SPIN}, 0x100000
s_cbranch_scc1 {Lfail}
s_waitcnt vmcnt(0)
v_readfirstlane_b32 s{S_T2}, v16
s_cmp_lg_u32 s{S_T2}, 0
s_cbranch_scc1 {L2}
s_sleep 4
s_branch {L1}
""")
        a.label(L2)
        a("s_barrier")
    a(f"""
s_bfe_u32 s{S_NT}, s{S_ITEM}, 0x80010
s_bfe_u32 s{S_Q}, s{S_ITEM}, 0x80008
s_and_b32 s{S_NQ}, s{S_ITEM}, 0xff
""")
    wait_flag(48)
    a("v_lshlrev_b32 v15, 4, v0")
    a.label(Lq)
    a(f"""
s_mul_i32 s{S_PO}, s{S_W}, 73728
s_add_u32 s{S_PO}, s{S_PO}, s{S_PB}
s_lshl_b32 s{S_T2}, s{S_NT}, 12
s_add_u32 s{S_PO}, s{S_PO}, s{S_T2}
s_lshl_b32 s{S_T2}, s{S_Q}, 10
s_add_u32 s{S_PO}, s{S_PO}, s{S_T2}
s_mul_i32 s{S_XO}, s{S_SEG}, {32*1152}
s_lshl_b32 s{S_T2}, s{S_NT}, 6
s_add_u32 s{S_XO}, s{S_XO}, s{S_T2}
s_lshl_b32 s{S_T2}, s{S_Q}, 4
s_add_u32 s{S_XO}, s{S_XO}, s{S_T2}
buffer_load_dwordx2 v[12:13], v8, s[{S_B}:{S_B+3}], s{S_XO} offen
""")
    P0 = 32
    def batch(np_, first):
        base = P0 if first else P0 + 8
        for p in range(np_):
            a(f"buffer_load_dwordx4 v[{base+4*p}:{base+4*p+3}], v15, {ws}, s{S_PO} offen sc1\ns_add_u32 s{S_PO}, s{S_PO}, {PART_BYTES}")
        for p in range(2 if first else 0, np_):
            a(f"s_waitcnt vmcnt({np_-1-p})")
            d = P0 + 4*(p & 1)
            a(f"v_pk_add_f32 v[{d}:{d+1}], v[{d}:{d+1}], v[{base+4*p}:{base+4*p+1}]\nv_pk_add_f32 v[{d+2}:{d+3}], v[{d+2}:{d+3}], v[{base+4*p+2}:{base+4*p+3}]")
    batch(14, True)
    a(f"s_cmp_lt_u32 s{S_RB}, {RB_MID}\ns_cbranch_scc1 {Lfin}")
    wait_flag(32)
    item_stamp(a, 1)
    if ITEM_TL: a("v_lshlrev_b32 v15, 4, v0")
    a(f"s_cmp_ge_u32 s{S_RB}, {RB_FINE}\ns_cbranch_scc1 {Lbig}")
    batch(16, False)
    a(f"s_branch {Lfin}")
    a.label(Lbig)
    batch(32, False)
    a.label(Lfin)
    a(f"""
v_pk_add_f32 v[{P0}:{P0+1}], v[{P0}:{P0+1}], v[{P0+4}:{P0+5}]
v_pk_add_f32 v[{P0+2}:{P0+3}], v[{P0+2}:{P0+3}], v[{P0+6}:{P0+7}]
v_lshlrev_b32 v16, 16, v12
v_and_b32 v17, 0xffff0000, v12
v_lshlrev_b32 v18, 16, v13
v_and_b32 v19, 0xffff0000, v13
v_pk_add_f32 v[{P0}:{P0+1}], v[{P0}:{P0+1}], v[16:17]
v_pk_add_f32 v[{P0+2}:{P0+3}], v[{P0+2}:{P0+3}], v[18:19]
v_cvt_pk_bf16_f32 v16, v{P0}, v{P0+1}
v_cvt_pk_bf16_f32 v17, v{P0+2}, v{P0+3}
buffer_store_dwordx2 v[16:17], v8, s[{S_C}:{S_C+3}], s{S_XO} offen
s_add_u32 s{S_Q}, s{S_Q}, 1
s_sub_u32 s{S_NQ}, s{S_NQ}, 1
s_cmp_lg_u32 s{S_NQ}, 0
s_cbranch_scc1 {Lq}
""")

def queue_loop(a, Lexit, tl=None):
    Ltop = a.label_name("Lqtop"); Lred = a.label_name("Lqred")
    a(f"s_mov_b32 s{S_G}, 0")
    a.label(Ltop)
    next_item(a, Lexit)
    rb_consts(a)
    a(f"s_bitcmp1_b32 s{S_ITEM}, 31\ns_cbranch_scc1 {Lred}")
    attn_item(a, make_wait_head(Lexit, True), tl)
    item_stamp(a, 3)
    a(f"s_branch {Ltop}")
    a.label(Lred)
    reduce_item(a, Lexit)
    a("s_waitcnt vmcnt(0)") if ITEM_TL else None
    item_stamp(a, 3)
    a(f"s_branch {Ltop}")

def queue_table():
    g = queue_groups(); s = ""; first = 0
    for gate, off, sh, it in g:
        s += f".long {gate}, {off}, {first}, {len(it)}\n"; first += len(it)
    s += "".join(f".long {x:#x}\n" for x in queue_items())
    return ".p2align 4\n.type queue_table,@object\nqueue_table:\n" + s + f".size queue_table, {16*len(g) + 4*first}\n"

def signal_rb(a, val, base=DBG_KVRDY):
    L = a.label_name("Lsig")
    a(f"""
s_cmp_lg_u32 s{S_W}, 0
s_cbranch_scc1 {L}
s_lshl_b32 s{S_T}, s{S_RB}, 2
v_mov_b32 v12, s{S_T}
v_mov_b32 v13, {val}
s_mov_b64 exec, 1
global_atomic_add v12, v13, s[{S_DBG}:{S_DBG+1}] offset:{base*4} sc1
s_mov_b64 exec, -1
""")
    a.label(L)

def make_wait_head(Lfail, direct=False):
    def wait_head(a, which):
        S_SEG = S_K + 9
        L1 = a.label_name("Lwh1"); L2 = a.label_name("Lwh2"); L3 = a.label_name("Lwh3")
        a(f"s_cmp_lg_u32 s{S_W}, 0\ns_cbranch_scc1 {L3}\ns_add_u32 s{S_NXTC}, s{S_SEG}, 3")
        if which == 0: a(f"s_lshl_b32 s{S_T}, s{S_RB}, 2\nv_mov_b32 v12, s{S_T}")
        elif direct: a(f"s_lshl_b32 s{S_T}, s{S_H}, 7\nv_mov_b32 v12, s{S_T}\ns_lshl_b32 s{S_T}, s{S_HE}, 7\nv_mov_b32 v13, s{S_T}\ns_mov_b32 s{S_T3}, {WS_HDONE}\ns_mov_b32 s{S_T2}, {WS_HDONE - 128}")
        else: a(f"v_mov_b32 v12, 0")
        a(f"s_mov_b32 s{S_SPIN}, 0")
        a.label(L1)
        if which == 0: a(f"global_load_dword v14, v12, s[{S_DBG}:{S_DBG+1}] offset:{DBG_KVRDY*4} sc1")
        elif direct: a(f"buffer_load_dword v14, v12, s[{S_WS}:{S_WS+3}], s{S_T3} offen sc1\nbuffer_load_dword v15, v13, s[{S_WS}:{S_WS+3}], s{S_T2} offen sc1")
        else: a(f"buffer_load_ubyte v14, v12, s[{S_WS}:{S_WS+3}], s{S_REP} offen sc1")
        a(f"""
s_add_u32 s{S_SPIN}, s{S_SPIN}, 1
s_cmp_gt_u32 s{S_SPIN}, 0x40000
s_cbranch_scc1 {Lfail}
s_waitcnt vmcnt(0)
""")
        if which and direct: a("v_min_u32 v14, v14, v15")
        a(f"v_readfirstlane_b32 s{S_T}, v14")
        if which == 0:
            a(f"s_cmp_eq_u32 s{S_T}, {128 + (64 << 16)}\ns_cbranch_scc1 {L3}\ns_sleep 32\ns_branch {L1}")
        else:
            a(f"""
s_cmp_gt_u32 s{S_T}, s{S_NXTC}
s_cbranch_scc1 {L3}
s_add_u32 s{S_T}, s{S_T}, {0 if direct else 2}
s_cmp_ge_u32 s{S_T}, s{S_NXTC}
s_cbranch_scc1 {L2}
s_sleep 32
""")
            a.label(L2)
            a(f"s_sleep 2\ns_branch {L1}")
        a.label(L3)
        a("s_barrier")
    return wait_head


def own_attention(a, Lexit):
    L = a.label_name("Lnoown")
    attn_setup(a, Lexit)
    rb_consts(a)
    a(f"s_cmp_ge_u32 s{S_RB}, {RB_MID}\ns_cbranch_scc1 {L}")
    attn_item(a, make_wait_head(Lexit), full=True)
    a.label(L)
    store_tiles(a, S_J, None, 18, OUT, own=True)


def projections(a, tl=None):
    Lp = a.label_name("Lpass"); Lo = a.label_name("Lown"); Le = a.label_name("Lpend")
    a(f"""
s_mov_b32 s{S_RBO}, s{S_RB}
s_cmp_lt_u32 s{S_RB}, 2
s_cselect_b32 s{S_HELP}, 1, 0
s_cmp_lt_u32 s{S_RB}, 8
s_cbranch_scc1 {Lp}
s_and_b32 s{S_HELP}, s{S_RB}, 3
s_add_u32 s{S_HELP}, s{S_HELP}, 2
s_bfe_u32 s{S_RB}, s{S_RB}, 0x10002
""")
    a.label(Lp)
    rb_consts(a)
    layernorm(a)
    if tl: tl(a, 1)
    qkv_phase(a, signal=signal_rb)
    a(f"""
s_cmp_lt_u32 s{S_HELP}, 2
s_cbranch_scc1 {Le}
s_mov_b32 s{S_HELP}, 0
s_mov_b32 s{S_RB}, s{S_RBO}
s_branch {Lp}
""")
    a.label(Le)
```

```python
from asmlib import *
from layout import *
from rec import S_WS
S_GRP, S_TKT, S_XCC = 70, 71, 57
S_DBGP = 72

import os
SPREAD = bool(os.environ.get('SPREAD'))
def entry(a, Lexit, nwg=256):
    a(f"""
s_load_dwordx2 s[{S_WS}:{S_WS+1}], s[0:1], {KA['ws']}
s_load_dwordx2 s[{S_DBGP}:{S_DBGP+1}], s[0:1], {KA['dbg']}
s_cmp_ge_u32 s2, {nwg}
s_cbranch_scc1 {Lexit}
s_getreg_b32 s{S_XCC}, hwreg(HW_REG_XCC_ID)
s_and_b32 s{S_XCC}, s{S_XCC}, 7
s_waitcnt lgkmcnt(0)
s_mov_b32 s{S_WS+2}, 0x10000000
s_mov_b32 s{S_WS+3}, 0x20000
""")
    Lskip = a.label_name("Lcl_skip"); Ltry = a.label_name("Lcl_try"); Lgot = a.label_name("Lcl_got")
    a(f"""
v_mov_b32 v4, 0
v_cmp_eq_u32 vcc, 0, v0
s_and_saveexec_b64 s[74:75], vcc
s_cbranch_execz {Lskip}
{f's_lshr_b32 s{S_GRP}, s2, 5' if SPREAD else f's_add_u32 s{S_GRP}, s{S_XCC}, 7'}
s_and_b32 s{S_GRP}, s{S_GRP}, 7
s_mov_b32 s76, 0
v_mov_b32 v2, 1
""")
    a.label(Ltry)
    a(f"""
s_lshl_b32 s77, s{S_GRP}, 2
s_cmp_eq_u32 s{S_GRP}, 7
s_cselect_b32 s77, 252, s77
v_mov_b32 v1, s77
global_atomic_add v3, v1, v2, s[{S_DBGP}:{S_DBGP+1}] sc0 sc1
s_waitcnt vmcnt(0)
v_readfirstlane_b32 s{S_TKT}, v3
s_cmp_lt_u32 s{S_TKT}, 32
s_cbranch_scc1 {Lgot}
s_add_u32 s{S_GRP}, s{S_GRP}, 1
s_and_b32 s{S_GRP}, s{S_GRP}, 7
s_add_u32 s76, s76, 1
s_cmp_lt_u32 s76, 8
s_cbranch_scc1 {Ltry}
s_mov_b32 s{S_GRP}, 8
""")
    a.label(Lgot)
    a(f"""
s_lshl_b32 s77, s{S_GRP}, 8
s_or_b32 s77, s77, s{S_TKT}
v_mov_b32 v3, s77
ds_write_b32 v4, v3
""")
    a.label(Lskip)
    a(f"""
s_mov_b64 exec, -1
s_waitcnt lgkmcnt(0)
s_barrier
ds_read_b32 v3, v4
s_waitcnt lgkmcnt(0)
v_readfirstlane_b32 s77, v3
s_barrier
s_lshr_b32 s{S_GRP}, s77, 8
s_and_b32 s{S_TKT}, s77, 0xff
s_cmp_gt_u32 s{S_GRP}, 7
s_cbranch_scc1 {Lexit}
""")
```

```python
from asmlib import *
from layout import *
import struct

L_WV = 0
L_MEMT = 147456
L_XT = 156672
L_SP = 158720
L_END = 163840
assert L_SP + 4 * 1280 == L_END

V_IDX, V_ARD, V_WV, V_XTW, V_XTR, V_SPR, V_SP0R, V_OW, V_OR, V_PST, V_PLD, V_MST, V_VX, V_JUNK, V_T = range(1, 16)
VX1 = 16
VX0 = 76
KX = 20
ACC = 28
AB = 52

def WQ(c, t): return 256 + (c * 2 + t) * 8
def WK(c, t):
    i = c * 2 + t
    return 256 + 144 + i * 8 if i < 14 else 80 + (i - 14) * 8
def WO(n, ks): return 112 + (n * 2 + ks) * 8

S_H, S_W = 3, 4
S_WS = 8
S_WT = 12
S_PTR = 16
S_DBG = 26
S_PST, S_PLD, S_PST1, S_PST2 = 28, 29, 30, 31
S_L8 = 32
S_HF8 = 34
S_XK = 36
S_MCUR, S_MNXT, S_M3 = 37, 38, 39
S_KX, S_VX, S_KM, S_VM = 40, 41, 42, 43
S_TAG, S_STEP, S_TMP, S_TMP2 = 44, 45, 46, 47
S_W1280, S_SP0K, S_MLK, S_FL, S_HD = 48, 49, 50, 51, 52
S_PUB = 54
S_SC = 56
S_XCC = 57
S_MG = 58
S_PF, S_PF2 = 59, 60
S_T0 = 62
S_SPIN = 66
S_POIS = 67

SCALE_LOG2E = 0.08838834764831845 * 1.4426950408889634
def f32bits(x): return struct.unpack("<I", struct.pack("<f", x))[0]

def gamma_base(g):
    w, rho = divmod(g, 9)
    if rho < 8: return 144*w + 32*(rho >> 1) + 8*(rho & 1), 16
    return 144*w + 128, 8

class Ctr:
    def __init__(self, a, name, cap): self.a, self.name, self.cap, self.q = a, name, cap, []
    def issue(self, tag, text):
        self.a(text); self.q.append(tag)
    def wait(self, tag):
        if tag not in self.q: return
        last = max(i for i, t in enumerate(self.q) if t == tag)
        n = len(self.q) - 1 - last
        assert n <= self.cap, (tag, n)
        self.a(f"s_waitcnt {self.name}({n})"); self.q = self.q[last+1:]
    def wait_all(self):
        self.a(f"s_waitcnt {self.name}(0)"); self.q = []

def setup_consts(a):
    a(f"""
v_lshrrev_b32 v{V_T}, 6, v0
v_and_b32 v0, 63, v0
v_readfirstlane_b32 s{S_W}, v{V_T}
v_and_b32 v40, 15, v0
v_lshrrev_b32 v41, 4, v0
v_bfe_u32 v42, v0, 2, 2
v_and_b32 v43, 3, v0
v_and_b32 v44, 7, v0
v_bfe_u32 v45, v0, 3, 1
""")
    a(f"""
v_mov_b32 v46, 0x4444
v_mov_b32 v47, 0xeeee
v_and_b32 v48, 2, v0
v_cmp_eq_u32 vcc, 0, v48
v_cndmask_b32 v{V_IDX}, v47, v46, vcc
""")
    a(f"""
v_lshrrev_b32 v46, 1, v41
v_lshlrev_b32 v46, 4, v46
v_and_b32 v47, 1, v41
v_lshl_add_u32 v46, v47, 2, v46
v_add_u32 v46, v46, v42
v_lshlrev_b32 v46, 5, v46
v_lshl_add_u32 v46, v43, 3, v46
v_add_u32 v{V_ARD}, {L_MEMT}, v46
s_mul_i32 s{S_TMP}, s{S_W}, 36864
v_lshlrev_b32 v46, 4, v0
v_add_u32 v{V_WV}, s{S_TMP}, v46
""")
    a(f"""
s_lshl_b32 s{S_TMP}, s{S_W}, 9
s_add_u32 s{S_TMP}, s{S_TMP}, {L_XT}
v_lshlrev_b32 v46, 4, v40
v_lshl_add_u32 v46, v41, 2, v46
v_add_u32 v{V_XTW}, s{S_TMP}, v46
s_mul_i32 s{S_XK}, s{S_W}, 768
s_add_u32 s{S_XK}, s{S_XK}, {L_SP - L_XT}
""")
    a(f"""
v_lshrrev_b32 v46, 1, v41
v_lshlrev_b32 v46, 4, v46
v_and_b32 v47, 1, v41
v_lshl_add_u32 v46, v47, 2, v46
v_add_u32 v46, v46, v42
v_lshlrev_b32 v46, 4, v46
v_and_b32 v47, 1, v43
v_lshl_add_u32 v46, v47, 3, v46
v_add_u32 v{V_XTR}, s{S_TMP}, v46
""")
    a(f"""
s_mul_i32 s{S_TMP}, s{S_W}, 1280
v_lshl_add_u32 v46, v41, 3, v44
v_lshlrev_b32 v46, 4, v46
v_lshl_add_u32 v46, v45, 9, v46
v_add_u32 v{V_SPR}, {L_SP}, v46
s_mov_b32 s{S_W1280}, s{S_TMP}
s_add_u32 s{S_SP0K}, s{S_TMP}, {L_SP + 1024}
v_and_b32 v47, 1, v41
v_lshrrev_b32 v46, 1, v41
v_lshl_add_u32 v46, v46, 3, v44
v_lshlrev_b32 v46, 4, v46
v_lshl_add_u32 v47, v47, 1, v45
v_lshl_add_u32 v46, v47, 2, v46
v_add_u32 v{V_SP0R}, {L_SP + 1024}, v46
""")
    a(f"""
s_lshl_b32 s{S_TMP}, s{S_W}, 2
v_lshrrev_b32 v46, 1, v41
v_add_u32 v46, s{S_TMP}, v46
v_lshlrev_b32 v47, 1, v44
v_xor_b32 v46, v46, v47
v_lshlrev_b32 v46, 4, v46
v_lshl_add_u32 v46, v44, 8, v46
v_and_b32 v48, 1, v41
v_lshl_add_u32 v46, v48, 3, v46
v_add_u32 v{V_OW}, {L_XT}, v46
""")
    a(f"""
v_and_b32 v47, 1, v0
v_lshl_add_u32 v47, v42, 1, v47
v_bfe_u32 v48, v0, 1, 1
v_lshl_add_u32 v46, v41, 1, v48
v_lshlrev_b32 v48, 1, v47
v_xor_b32 v46, v46, v48
v_lshlrev_b32 v46, 4, v46
v_lshl_add_u32 v46, v47, 8, v46
v_add_u32 v{V_OR}, {L_XT}, v46
""")
    a(f"""
s_lshl_b32 s{S_TMP}, s{S_W}, 3
v_lshrrev_b32 v46, 3, v0
v_add_u32 v46, s{S_TMP}, v46
v_mul_u32_u24 v46, 9216, v46
v_lshl_add_u32 v{V_PST}, v44, 4, v46
""")
    Lw2 = a.label_name("Lc2"); Lce = a.label_name("Lce")
    a(f"""
s_mul_i32 s{S_TMP}, s{S_H}, 9216
s_lshl_b32 s{S_TMP2}, s{S_W}, 12
s_add_u32 s{S_TMP}, s{S_TMP}, s{S_TMP2}
s_lshr_b32 s{S_PF}, s{S_H}, 3
s_mul_i32 s{S_PF}, s{S_PF}, 72
s_and_b32 s{S_PF2}, s{S_H}, 7
s_cmp_ge_u32 s{S_W}, 2
s_cbranch_scc1 {Lw2}
v_lshl_add_u32 v46, v41, 1, v45
v_lshlrev_b32 v46, 7, v46
v_lshl_add_u32 v46, v44, 4, v46
v_add_u32 v{V_PLD}, s{S_TMP}, v46
s_lshl_b32 s{S_PF2}, s{S_PF2}, 3
v_add_u32 v46, s{S_PF2}, v44
s_lshl_b32 s{S_TMP2}, s{S_W}, 5
s_add_u32 s{S_PF}, s{S_PF}, s{S_TMP2}
v_and_b32 v48, 15, v46
v_lshl_add_u32 v47, v41, 4, v48
v_add_u32 v47, s{S_PF}, v47
v_lshlrev_b32 v47, 5, v47
v_lshrrev_b32 v48, 4, v46
v_lshl_add_u32 v{V_MST}, v48, 3, v47
s_mov_b32 s{S_PUB}, 0x00ff00ff
s_branch {Lce}
""")
    a.label(Lw2)
    a(f"""
v_lshrrev_b32 v46, 1, v40
v_lshl_add_u32 v46, v46, 2, v41
v_lshlrev_b32 v46, 5, v46
v_and_b32 v47, 1, v0
v_lshl_add_u32 v46, v47, 4, v46
v_add_u32 v{V_PLD}, s{S_TMP}, v46
s_lshl_b32 s{S_PF2}, s{S_PF2}, 2
v_lshl_add_u32 v47, v47, 1, v41
v_add_u32 v47, s{S_PF2}, v47
v_and_b32 v48, 7, v47
s_add_u32 s{S_PF}, s{S_PF}, 64
v_add_u32 v48, s{S_PF}, v48
v_lshlrev_b32 v48, 5, v48
v_lshrrev_b32 v47, 3, v47
v_lshl_add_u32 v{V_MST}, v47, 3, v48
s_mov_b32 s{S_PUB}, 0x00030003
""")
    a.label(Lce)
    a(f"""
s_mul_i32 s{S_TMP}, s{S_W}, {192 * 16 - 36864}
s_add_u32 s{S_MLK}, s{S_TMP}, {L_MEMT}
""")
    a(f"""
s_lshl_b32 s{S_TMP}, s{S_W}, 11
v_lshrrev_b32 v48, 1, v41
v_lshlrev_b32 v48, 10, v48
v_and_b32 v47, 1, v41
v_lshl_add_u32 v48, v47, 4, v48
v_add_u32 v48, s{S_TMP}, v48
v_lshl_add_u32 v{V_VX}, v40, 5, v48
""")
    a(f"""
s_mov_b32 s{S_L8}, 0x00ff00ff
s_mov_b32 s{S_L8+1}, 0x00ff00ff
s_mov_b32 s{S_HF8}, 0xff00ff00
s_mov_b32 s{S_HF8+1}, 0xff00ff00
s_mov_b32 s{S_PUB+1}, 0
s_mov_b32 s{S_SC}, {f32bits(SCALE_LOG2E):#x}
s_mov_b32 s{S_POIS}, 0xfffffffe
s_lshl_b32 s{S_PST}, s{S_H}, 7
s_add_u32 s{S_PST}, s{S_PST}, {WS_PART}
s_add_u32 s{S_PST1}, s{S_PST}, 4096
s_lshl_b32 s{S_PST2}, s{S_H}, 5
s_add_u32 s{S_PST2}, s{S_PST2}, {WS_PART + 8192}
s_mov_b32 s{S_PLD}, {WS_PART}
s_mov_b32 s{S_MCUR}, {WS_MEMT}
s_mov_b32 s{S_MNXT}, {WS_MEMT + MEMT_STRIDE}
s_mov_b32 s{S_M3}, {WS_MEMT + 2 * MEMT_STRIDE}
s_lshl_b32 s{S_TMP}, s{S_H}, 19
s_add_u32 s{S_KX}, s{S_TMP}, {WS_K}
s_add_u32 s{S_VX}, s{S_TMP}, {WS_VT}
s_lshl_b32 s{S_TMP}, s{S_H}, 11
s_add_u32 s{S_KM}, s{S_TMP}, {WS_KM}
s_add_u32 s{S_VM}, s{S_TMP}, {WS_VM - L_XT}
s_mov_b32 s{S_STEP}, 0
s_mov_b32 s{S_FL}, {WS_FLAGS}
s_lshl_b32 s{S_HD}, s{S_H}, 7
s_add_u32 s{S_HD}, s{S_HD}, {WS_HDONE}
s_mov_b32 s{S_TAG}, 1
""")

def single_addr(a, dst, tmp):
    a(f"""
s_lshl_b32 s{S_TMP}, s{S_W}, 3
v_lshrrev_b32 v{dst}, 4, v0
v_bfe_u32 v{tmp}, v0, 2, 1
v_lshl_add_u32 v{dst}, v{dst}, 1, v{tmp}
v_add_u32 v{dst}, s{S_TMP}, v{dst}
v_mul_u32_u24 v{dst}, 9216, v{dst}
v_and_b32 v{tmp}, 3, v0
v_lshl_add_u32 v{dst}, v{tmp}, 3, v{dst}
""")

def set_wsrd(a, ptr):
    a(f"""
s_mov_b32 s{S_WT}, s{ptr}
s_mov_b32 s{S_WT+1}, s{ptr+1}
s_mov_b32 s{S_WT+2}, {W_BYTES}
s_mov_b32 s{S_WT+3}, 0x20000
""")

def prologue(a):
    ws = f"s[{S_WS}:{S_WS+3}]"; wt = f"s[{S_WT}:{S_WT+3}]"
    a("v_mov_b32 v28, 0\nv_mov_b32 v29, 0\nv_mov_b32 v30, 0\nv_mov_b32 v31, 0\nv_mov_b32 v32, -1\nv_mov_b32 v33, -1")
    a(f"buffer_store_dwordx4 v[28:31], v{V_PST}, {ws}, s{S_PST} offen sc1")
    a(f"buffer_store_dwordx4 v[28:31], v{V_PST}, {ws}, s{S_PST1} offen sc1")
    single_addr(a, 34, 35)
    a(f"s_mov_b64 exec, s[{S_L8}:{S_L8+1}]")
    a(f"buffer_store_dwordx2 v[28:29], v34, {ws}, s{S_PST2} offen sc1")
    a(f"s_mov_b64 exec, -1\ns_cmp_eq_u32 s{S_W}, 3")
    L = a.label_name("Lnopois")
    L3 = a.label_name("Lfl")
    a(f"s_cbranch_scc1 {L3}\ns_mov_b64 exec, s[{S_PUB}:{S_PUB+1}]")
    a(f"buffer_store_dwordx2 v[32:33], v{V_MST}, {ws}, s{S_MNXT} offen sc1")
    a(f"buffer_store_dwordx2 v[32:33], v{V_MST}, {ws}, s{S_M3} offen sc1")
    a(f"s_mov_b64 exec, -1\ns_branch {L}")
    a.label(L3)
    a(f"""
v_lshlrev_b32 v34, 7, v0
s_mov_b32 exec_hi, 0
buffer_store_byte v28, v34, {ws}, s{S_FL} offen sc1
s_add_u32 s{S_TMP}, s{S_H}, {WS_FLAGS + 32}
buffer_store_byte v28, v34, {ws}, s{S_TMP} offen sc1
s_add_u32 s{S_TMP}, s{S_TMP}, 32
buffer_store_byte v28, v34, {ws}, s{S_TMP} offen sc1
s_lshl_b32 s{S_TMP}, s{S_H}, 7
s_add_u32 s{S_TMP}, s{S_TMP}, {WS_CNT}
s_mov_b32 exec_lo, 1
buffer_store_dword v28, v28, {ws}, s{S_TMP} offen sc1
s_sub_u32 s{S_TMP}, s{S_TMP}, {WS_CNT - WS_HDONE}
buffer_store_dword v28, v28, {ws}, s{S_TMP} offen sc1
s_and_b32 s{S_TMP}, s{S_H}, 7
s_lshl_b32 s{S_TMP}, s{S_TMP}, 7
s_add_u32 s{S_TMP}, s{S_TMP}, {WS_CNT + 32*128}
buffer_store_dword v28, v28, {ws}, s{S_TMP} offen sc1
s_mov_b64 exec, -1
""")
    a.label(L)
    a(f"""
s_mul_i32 s{S_TMP}, s{S_W}, {2 * 1152}
v_lshlrev_b32 v46, 1, v0
v_add_u32 v46, s{S_TMP}, v46
""")
    for tt in range(2):
        for j in range(9):
            a(f"global_load_ushort v{52 + tt*9 + j}, v46, s[{S_PTR}:{S_PTR+1}] offset:{tt*1152 + j*128}")
    a(f"""
s_mul_i32 s{S_TMP2}, s{S_W}, 36864
s_mul_i32 s{S_PF}, s{S_H}, 147456
s_mul_i32 s{S_PF2}, s{S_W}, 288
s_add_u32 s{S_PF}, s{S_PF}, s{S_PF2}
""")
    set_wsrd(a, S_PTR + 8)
    a(f"s_mov_b32 s{S_PF2}, 3641")
    for m in range(36):
        a(f"""
v_add_u32 v46, {64*m}, v0
v_mul_u32_u24 v47, s{S_PF2}, v46
v_lshrrev_b32 v47, 16, v47
v_mul_u32_u24 v48, 18, v47
v_sub_u32 v48, v46, v48
v_mul_u32_u24 v47, 1152, v47
v_lshl_add_u32 v47, v48, 4, v47
s_add_u32 s{S_TMP}, s{S_TMP2}, {m*1024}
s_mov_b32 m0, s{S_TMP}
buffer_load_dwordx4 v47, {wt}, s{S_PF} offen lds
""")
    a(f"s_lshl_b32 s{S_TMP}, s{S_W}, 3\ns_add_u32 s{S_TMP}, s{S_TMP}, {L_MEMT}\ns_mov_b32 s{S_TMP2}, 7282")
    for j in range(9):
        d = 28 + j
        a(f"""
v_add_u32 v46, {64*j}, v0
v_mul_u32_u24 v47, s{S_TMP2}, v46
v_lshrrev_b32 v47, 20, v47
v_mul_u32_u24 v48, 144, v47
v_sub_u32 v46, v46, v48
v_mul_u32_u24 v47, 72, v47
v_lshrrev_b32 v48, 5, v46
v_lshlrev_b32 v48, 4, v48
v_and_b32 v49, 15, v46
v_add_u32 v48, v48, v49
v_bfe_u32 v49, v46, 4, 1
v_and_b32 v50, 7, v46
v_add_u32 v50, 64, v50
v_bfe_u32 v51, v46, 3, 1
v_cmp_gt_u32 vcc, 128, v46
v_cndmask_b32 v48, v50, v48, vcc
v_cndmask_b32 v49, v51, v49, vcc
v_add_u32 v48, v48, v47
v_lshlrev_b32 v48, 5, v48
v_lshl_add_u32 v48, v49, 2, v48
v_add_u32 v{d}, s{S_TMP}, v48
""")
    a("s_waitcnt vmcnt(36)")
    for tt in range(2):
        for j in range(9):
            a(f"ds_write_b16 v{28+j}, v{52 + tt*9 + j} offset:{tt*2}")
    a("s_barrier")
    L = a.label_name("Lnoarr")
    a(f"""
s_cmp_lg_u32 s{S_W}, 0
s_cbranch_scc1 {L}
s_mul_i32 s{S_TMP}, s{S_XCC}, 6
s_mov_b64 s[{S_T0}:{S_T0+1}], 1
s_lshl_b64 s[{S_T0}:{S_T0+1}], s[{S_T0}:{S_T0+1}], s{S_TMP}
s_or_b32 s{S_T0+1}, s{S_T0+1}, 0x01000000
v_mov_b32 v38, s{S_T0}
v_mov_b32 v39, s{S_T0+1}
v_mov_b32 v37, 0
s_mov_b64 exec, 1
global_atomic_add_x2 v37, v[38:39], s[{S_DBG}:{S_DBG+1}] offset:{DBG_XMASK*4} sc1
s_mov_b64 exec, -1
""")
    a.label(L)
    a(f"s_mul_i32 s{S_TMP2}, s{S_W}, 36864")
    a(f"""
v_lshrrev_b32 v46, 1, v41
v_lshlrev_b32 v46, 4, v46
v_lshrrev_b32 v47, 1, v42
v_lshl_add_u32 v46, v47, 3, v46
v_and_b32 v47, 1, v41
v_lshl_add_u32 v46, v47, 2, v46
v_and_b32 v47, 1, v42
v_add_u32 v46, v46, v47
v_mul_u32_u24 v46, 288, v46
v_lshl_add_u32 v46, v43, 3, v46
v_add_u32 v49, s{S_TMP2}, v46
""")
    a(f"""
v_and_b32 v46, 1, v41
v_lshlrev_b32 v46, 4, v46
v_lshrrev_b32 v47, 1, v42
v_lshl_add_u32 v46, v47, 3, v46
v_lshrrev_b32 v47, 1, v41
v_lshl_add_u32 v46, v47, 2, v46
v_and_b32 v47, 1, v42
v_add_u32 v46, v46, v47
v_lshlrev_b32 v46, 6, v46
v_lshl_add_u32 v46, v43, 3, v46
v_add_u32 v50, s{S_TMP2}, v46
""")
    a(f"""
s_lshl_b32 s{S_PF}, s{S_H}, 8
s_lshl_b32 s{S_PF2}, s{S_W}, 6
s_add_u32 s{S_PF}, s{S_PF}, s{S_PF2}
v_bfe_u32 v46, v0, 2, 3
v_lshrrev_b32 v47, 5, v0
v_lshl_add_u32 v48, v47, 3, v46
v_lshl_add_u32 v46, v47, 4, v46
v_lshlrev_b32 v46, 13, v46
v_lshl_add_u32 v46, v43, 4, v46
v_add_u32 v51, s{S_PF}, v46
v_lshlrev_b32 v48, 13, v48
v_lshl_add_u32 v48, v43, 4, v48
v_add_u32 v48, s{S_PF}, v48
""")
    V = Ctr(a, "vmcnt", 63)
    V.q = ["wo0"] * 18 + ["wo1"] * 18
    S_TS = S_WT + 0
    TS = 76
    a(f"""
s_lshl_b32 s{S_TMP}, s{S_H}, 2
s_add_u32 s{S_TMP}, s{S_TMP}, s{S_W}
s_lshl_b32 s{S_TMP}, s{S_TMP}, 12
v_lshlrev_b32 v47, 6, v0
v_add_u32 v47, s{S_TMP}, v47
s_mov_b32 s{TS+2}, {W_BYTES}
s_mov_b32 s{TS+3}, 0x20000
""")
    AHEAD = 4
    def touch(g):
        if g >= 27 or not TOUCH: return
        m_, c = divmod(g, 9)
        if c == 0 or g == 0: a(f"s_mov_b32 s{TS}, s{S_PTR+2+2*m_}\ns_mov_b32 s{TS+1}, s{S_PTR+3+2*m_}")
        a(f"s_mov_b32 s{S_PF2}, {c*64*8192}")
        V.issue("t", f"buffer_load_dword v{V_JUNK}, v47, s[{TS}:{TS+3}], s{S_PF2} offen")
    def dma_chunk(c, tag):
        for m in range(4):
            base, stride = gamma_base(4*c + m)
            a(f"""
s_add_u32 s{S_TMP}, s{S_TMP2}, {c*4096 + m*1024}
s_mov_b32 m0, s{S_TMP}
s_mov_b32 s{S_PF}, {base * 8192}
""")
            V.issue(tag, f"buffer_load_dwordx4 v{51 if stride == 16 else 48}, {wt}, s{S_PF} offen lds")
    def wo_half(ks):
        for n in range(9):
            for q in range(4):
                off = (64*ks + 32*(q >> 1) + 2*(q & 1)) * 288 + 32*n
                a(f"ds_read_b64_tr_b16 {R(WO(n, ks) + 2*q, 2)}, v49 offset:{off}")
            if n % 3 == 2: a("s_waitcnt lgkmcnt(0)")
    def rd_chunk(c, dst):
        for t in range(2):
            for q in range(4):
                off = c*4096 + (32*(q >> 1) + 2*(q & 1)) * 64 + 32*t
                a(f"ds_read_b64_tr_b16 {R(dst(c, t) + 2*q, 2)}, v50 offset:{off}")
        a("s_waitcnt lgkmcnt(0)")
    for g in range(7): touch(g)
    V.wait("wo0")
    wo_half(0)
    set_wsrd(a, S_PTR + 2)
    for c in range(4): dma_chunk(c, ("q", c))
    touch(7); touch(8)
    V.wait("wo1")
    wo_half(1)
    for c in range(4, 9):
        dma_chunk(c, ("q", c)); touch(9 + c - 4)
    for c in range(9):
        V.wait(("q", c))
        rd_chunk(c, WQ)
        if c == 0: set_wsrd(a, S_PTR + 4)
        dma_chunk(c, ("k", c)); touch(9 + c + 5)
    for c in range(9):
        V.wait(("k", c))
        rd_chunk(c, WK)
        if c == 0: set_wsrd(a, S_PTR + 6)
        dma_chunk(c, ("v", c)); touch(18 + c + 5)
    for c in range(9):
        V.wait(("v", c))
        rd_chunk(c, lambda c_, t: 52 + 8*t)
        for t in range(2):
            for hf in range(2):
                a(f"ds_write_b128 v{V_WV}, v[{52+8*t+4*hf}:{52+8*t+4*hf+3}] offset:{c*4096 + t*2048 + hf*1024}")
        a("s_waitcnt lgkmcnt(0)")

def help_touch(a, nrows):
    TS = 76
    per = nrows // 128
    a(f"""
s_mov_b32 s{TS}, s{S_PTR+6}
s_mov_b32 s{TS+1}, s{S_PTR+7}
s_mov_b32 s{TS+2}, {W_BYTES}
s_mov_b32 s{TS+3}, 0x20000
s_lshl_b32 s{S_TMP}, s{S_H}, 2
s_add_u32 s{S_TMP}, s{S_TMP}, s{S_W}
s_lshl_b32 s{S_TMP}, s{S_TMP}, 13
s_add_u32 s{S_TMP}, s{S_TMP}, {(576 - nrows) * 8192}
v_lshlrev_b32 v47, 7, v0
""")
    for i in range(per):
        a(f"buffer_load_dword v{V_JUNK}, v47, s[{TS}:{TS+3}], s{S_TMP} offen\ns_add_u32 s{S_TMP}, s{S_TMP}, {128*8192}")

HELP_ROWS = 0
def handshake(a, Lfast, Lslow, Lfail):
    if HELP_ROWS: help_touch(a, HELP_ROWS)
    Lp = a.label_name("Lhs")
    a(f"v_mov_b32 v30, 0\ns_mov_b32 s{S_SPIN}, 0")
    a.label(Lp)
    a(f"""
global_load_dwordx2 v[28:29], v30, s[{S_DBG}:{S_DBG+1}] offset:{DBG_XMASK*4} sc1
s_add_u32 s{S_SPIN}, s{S_SPIN}, 1
s_cmp_gt_u32 s{S_SPIN}, 0x400000
s_cbranch_scc1 {Lfail}
s_waitcnt vmcnt(0)
v_readfirstlane_b32 s{S_T0}, v28
v_readfirstlane_b32 s{S_T0+1}, v29
s_lshr_b32 s{S_TMP}, s{S_T0+1}, 24
s_cmp_lt_u32 s{S_TMP}, 32
s_cbranch_scc1 {Lp}
s_mul_i32 s{S_TMP}, s{S_XCC}, 6
s_lshr_b64 s[{S_T0}:{S_T0+1}], s[{S_T0}:{S_T0+1}], s{S_TMP}
s_and_b32 s{S_T0}, s{S_T0}, 63
s_cmp_eq_u32 s{S_T0}, 32
s_cbranch_scc1 {Lfast}
s_branch {Lslow}
""")

S_ST = 84
RT_STEP = None
def stamp(a, on, i):
    if RT_STEP is not None:
        L = a.label_name("Lrt")
        a(f"s_cmp_lg_u32 s{S_STEP}, {RT_STEP + (1 if i < 2 else 0)}\ns_cbranch_scc1 {L}\ns_memrealtime s[98:99]\ns_waitcnt lgkmcnt(0)\ns_mov_b32 s{S_ST+i}, s98")
        a.label(L)
        return
    if not on: return
    a(f"""
s_memtime s[98:99]
s_waitcnt lgkmcnt(0)
s_sub_u32 s97, s98, s96
s_add_u32 s{S_ST+i}, s{S_ST+i}, s97
s_mov_b32 s96, s98
""")

PFLAT = False
ALIGN_PAD = None
STEP_TL = False
FAST_ST = ""
POLL_F = " sc1"
KVLATE = False
TOUCH = False
KVF = ""
DLY_G = 0
DLY_R = 4
def step_loop(a, fast, Ldone, Lfail, stamps=False, kv_wait=None, tlf=None):
    ws = f"s[{S_WS}:{S_WS+3}]"
    st = FAST_ST if fast else " sc1"
    L = Ctr(a, "lgkmcnt", 15)
    def stp(i):
        if stamps: L.q = []
        stamp(a, stamps, i)
    Ltop = a.label_name("Lstep"); Lnog = a.label_name("Lnog")
    q0, q1, k0, k1, v0_, v1_ = (ACC + 4*i for i in range(6))
    ABUF = (52, 56)
    WB = (60, 68)
    def wbuf(f): return WB[f % 2]
    def kxload(t):
        a(f"v_bfe_u32 v{t}, v0, 3, 1\nv_lshl_add_u32 v{t}, v{t}, 8, v{V_VX}")
        a(f"buffer_load_dwordx4 v[{KX}:{KX+3}], v{t}, {ws}, s{S_KX} offen{KVF}")
        a(f"buffer_load_dwordx4 v[{KX+4}:{KX+7}], v{t}, {ws}, s{S_KX} offen offset:256{KVF}")
    def vxload():
        a(f"buffer_load_dwordx4 v[{VX0}:{VX0+3}], v{V_VX}, {ws}, s{S_VX} offen{KVF}")
        a(f"buffer_load_dwordx4 v[{VX1}:{VX1+3}], v{V_VX}, {ws}, s{S_VX} offen offset:512{KVF}")
    def wrd(f):
        b = wbuf(f)
        for hf in range(2):
            L.issue(("W", f), f"ds_read_b128 v[{b+4*hf}:{b+4*hf+3}], v{V_WV} offset:{(f//2)*4096 + (f%2)*2048 + hf*1024}")
    def zero(lo, hi):
        for r in range(lo, hi, 2): a(f"v_mov_b64 v[{r}:{r+1}], 0")
    def spin():
        a(f"s_add_u32 s{S_SPIN}, s{S_SPIN}, 1\ns_cmp_gt_u32 s{S_SPIN}, 0x100000\ns_cbranch_scc1 {Lfail}")
    if kv_wait: kv_wait(a, 0)
    if tlf: tlf(a)
    if PFLAT: a("s_mov_b32 s84, 0\ns_mov_b32 s85, 0")
    kxload(V_T); vxload()
    zero(ACC, ACC + 24)
    L.q = []
    wrd(0); wrd(1)
    a(f"v_mov_b32 v{V_JUNK}, 128\ns_waitcnt vmcnt(0)")
    if stamps:
        for i in range(12): a(f"s_mov_b32 s{S_ST+i}, 0")
        a("s_mov_b32 s100, 0\ns_mov_b32 s101, 0\ns_memtime s[96:97]\ns_waitcnt lgkmcnt(0)")
    a(f"s_branch {Lnog}")
    if ALIGN_PAD is not None:
        a(".p2align 6")
        a.auto = False
        for _ in range(ALIGN_PAD): a.ins.append(Ins("s_nop 0"))
        a.auto = True
    a.label(Ltop)
    stp(0)
    if STEP_TL:
        Lx = a.label_name("Lstl")
        a(f"""
s_lshl_b32 s100, s{S_H}, 2
s_add_u32 s100, s100, s{S_W}
s_cmp_lg_u32 s100, 3
s_cbranch_scc1 {Lx}
s_memrealtime s[98:99]
s_lshl_b32 s100, s{S_STEP}, 2
s_add_u32 s100, s100, {62*MiB + 65536}
s_waitcnt lgkmcnt(0)
v_mov_b32 v52, s98
v_mov_b32 v53, 0
s_mov_b64 exec, 1
buffer_store_dword v52, v53, {ws}, s100 offen
s_mov_b64 exec, -1
""")
        a.label(Lx)
    Lg = a.label_name("Lgather"); Lw3 = a.label_name("Lw3")
    GR = (52, 56, 72); V_MLD = V_JUNK
    def gload():
        for j in range(3):
            a(f"buffer_load_dwordx4 v[{GR[j]}:{GR[j]+3}], v{V_MLD}, {ws}, s{S_MG} offen offset:{1024*j}{POLL_F if fast else ' sc1'}")
    a(f"s_cmp_eq_u32 s{S_W}, 3\ns_cbranch_scc1 {Lw3}")
    a(f"s_sub_u32 s{S_MG}, s{S_MCUR}, {L_MEMT}\ns_mov_b32 s{S_SPIN}, 0\nv_add_u32 v{V_MLD}, s{S_MLK}, v{V_WV}")
    L.q = []
    wrd(0)
    zero(ACC, ACC + 24)
    for _ in range(DLY_G): a("s_nop 15")
    a.label(Lg)
    gload()
    spin()
    a(f"""
s_waitcnt vmcnt(0)
v_max3_u32 v{V_T}, v{GR[0]}, v{GR[0]+2}, v{GR[1]}
v_max3_u32 v{V_T}, v{V_T}, v{GR[1]+2}, v{GR[2]}
v_max_u32 v{V_T}, v{V_T}, v{GR[2]+2}
v_cmp_eq_u32 vcc, -1, v{V_T}
s_and_b64 exec, exec, vcc
s_cbranch_scc1 {Lg}
s_mov_b64 exec, -1
""")
    if stamps: a(f"s_add_u32 s100, s100, s{S_SPIN}")
    stp(1)
    for j in range(3):
        a(f"ds_write_b128 v{V_MLD}, v[{GR[j]}:{GR[j]+3}] offset:{1024*j}")
    wrd(1)
    a(f"s_branch {Lnog}")
    a.label(Lw3)
    L.q = []
    wrd(0); wrd(1)
    zero(ACC, ACC + 24)
    a(f"s_waitcnt vmcnt({0 if KVLATE else 3})")
    if kv_wait:
        Lok = a.label_name("Lkvok")
        a(f"""
v_readfirstlane_b32 s{S_TMP}, v{V_JUNK}
s_and_b32 s{S_TMP}, s{S_TMP}, 0xffff
s_cmp_ge_u32 s{S_TMP}, 128
s_cbranch_scc1 {Lok}
""")
        kv_wait(a, 1)
        a.label(Lok)
    a.label(Lnog)
    a(f"""
s_cmp_lt_u32 s{S_STEP}, 63
s_cselect_b32 s{S_PF2}, 8192, 0
s_add_u32 s{S_PF}, s{S_KX}, s{S_PF2}
s_add_u32 s{S_PF2}, s{S_VX}, s{S_PF2}
s_add_u32 s{S_TMP}, s{S_STEP}, 2
s_min_u32 s{S_TMP}, s{S_TMP}, 63
s_and_b32 s{S_TMP}, s{S_TMP}, 0x3c
""")
    L.wait_all()
    a("s_barrier")
    stp(2)
    def ard(ks):
        b = ABUF[ks & 1]
        L.issue(("A", ks), f"ds_read_b64_tr_b16 v[{b}:{b+1}], v{V_ARD} offset:{1024*ks}")
        L.issue(("A", ks), f"ds_read_b64_tr_b16 v[{b+2}:{b+3}], v{V_ARD} offset:{1024*ks + 256}")
    ard(0)
    Lnp = a.label_name("Lnopf")
    a(f"""
s_cmp_lg_u32 s{S_W}, 3
s_cbranch_scc1 {Lnp}
v_lshlrev_b32 v56, 7, v0
v_mov_b32 v57, s{S_TMP}
s_sub_u32 s{S_TMP}, s{S_STEP}, 1
s_max_i32 s{S_TMP}, s{S_TMP}, 0
v_mov_b32 v59, s{S_TMP}
{"s_waitcnt lgkmcnt(0) vmcnt(0)" + chr(10) + "s_memtime s[98:99]" if PFLAT else ""}
buffer_load_dword v{V_JUNK}, v56, {ws}, s{S_PF} offen{KVF}
buffer_load_dword v{V_JUNK}, v56, {ws}, s{S_PF2} offen{KVF}
{("s_waitcnt vmcnt(0)" + chr(10) + "s_memtime s[96:97]" + chr(10) + "s_waitcnt lgkmcnt(0)" + chr(10) + "s_sub_u32 s96, s96, s98" + chr(10) + "s_add_u32 s84, s84, s96" + chr(10) + "s_max_u32 s85, s85, s96") if PFLAT else ""}
global_load_dword v{V_JUNK}, v57, s[{S_DBG}:{S_DBG+1}] offset:{DBG_KVRDY*4} sc1
v_mov_b32 v58, s{S_STEP}
s_mov_b64 exec, 1
buffer_store_dword v58, v56, {ws}, s{S_HD} offen sc1
s_mov_b64 exec, -1
s_cmp_lg_u32 s{S_H}, 0
s_cbranch_scc1 {Lnp}
s_mov_b32 exec_hi, 0
buffer_store_byte v59, v56, {ws}, s{S_FL} offen sc1
s_mov_b64 exec, -1
""")
    a.label(Lnp)
    ard(1)
    for ks in range(9):
        A = f"v[{ABUF[ks&1]}:{ABUF[ks&1]+3}]"
        L.wait(("A", ks))
        def sm(acc, B): a(f"v_smfmac_f32_16x16x64_bf16 v[{acc}:{acc+3}], {A}, {B}, v{V_IDX}")
        def smv(acc, f):
            L.wait(("W", f)); sm(acc, f"v[{wbuf(f)}:{wbuf(f)+7}]")
            if f + 2 < 18: wrd(f + 2)
        if ks < 8:
            sm(q0, R(WQ(ks,0),8)); smv(v0_, 2*ks); sm(q1, R(WQ(ks,1),8)); sm(k0, R(WK(ks,0),8)); smv(v1_, 2*ks + 1); sm(k1, R(WK(ks,1),8))
            if ks + 2 < 9: ard(ks + 2)
        else:
            sm(q0, R(WQ(ks,0),8)); sm(q1, R(WQ(ks,1),8)); sm(k0, R(WK(ks,0),8)); sm(k1, R(WK(ks,1),8))
            smv(v0_, 16); smv(v1_, 17)
    stp(3)
    QF, KF, T1, T2, T0 = 52, 56, 60, 64, 68
    def post(x, dst):
        a(f"v_pk_add_f32 v[{x}:{x+1}], v[{x}:{x+1}], v[{x+2}:{x+3}]\nv_cvt_pk_bf16_f32 v{dst}, v{x}, v{x+1}")
    post(q0, q0); post(q1, q1)
    L.issue("xq", f"ds_write2_b32 v{V_XTW}, v{q0}, v{q1} offset0:0 offset1:64")
    a(f"v_add_u32 v{V_T}, s{S_XK}, v{V_XTW}\nv_add_u32 v{T1}, s{S_XK}, v{V_XTR}")
    L.issue("qf", f"ds_read_b64_tr_b16 v[{QF}:{QF+1}], v{V_XTR}")
    L.issue("qf", f"ds_read_b64_tr_b16 v[{QF+2}:{QF+3}], v{V_XTR} offset:128")
    post(k0, k0); post(k1, k1)
    L.issue("xk", f"ds_write2_b32 v{V_T}, v{k0}, v{k1} offset0:0 offset1:64")
    L.issue("kf", f"ds_read_b64_tr_b16 v[{KF}:{KF+1}], v{T1}")
    L.issue("kf", f"ds_read_b64_tr_b16 v[{KF+2}:{KF+3}], v{T1} offset:128")
    a(f"v_add_u32 v72, s{S_W1280}, v{V_SPR}\nv_and_b32 v73, 0xff, v{V_SPR}\nv_add_u32 v73, s{S_SP0K}, v73")
    VP0, VP1 = v0_, v1_
    KMA = q0 + 1
    post(v0_, VP0); post(v1_, VP1)
    L.wait("qf")
    a(f"v_mfma_f32_16x16x32_bf16 v[{T1}:{T1+3}], v[{KX}:{KX+3}], v[{QF}:{QF+3}], 0")
    a(f"v_mfma_f32_16x16x32_bf16 v[{T2}:{T2+3}], v[{KX+4}:{KX+7}], v[{QF}:{QF+3}], 0")
    a(f"v_lshrrev_b32 v{KMA}, 10, v{V_VX}\nv_and_b32 v{KMA+1}, 0xf0, v{V_VX}")
    L.wait("kf")
    a(f"v_mfma_f32_16x16x32_bf16 v[{T0}:{T0+3}], v[{KF}:{KF+3}], v[{QF}:{QF+3}], 0")
    a(f"v_lshl_or_b32 v{KMA}, v{KMA}, 8, v{KMA+1}")
    a(f"buffer_store_dword v{VP0}, v{V_XTW}, {ws}, s{S_VM} offen sc1")
    a(f"buffer_store_dword v{VP1}, v{V_XTW}, {ws}, s{S_VM} offen offset:256 sc1")
    a(f"buffer_store_dwordx4 v[{KF}:{KF+3}], v{KMA}, {ws}, s{S_KM} offen sc1")
    a(f"s_cmp_eq_u32 s{S_STEP}, 63\ns_cbranch_scc1 {Ldone}")
    for r in range(4): a(f"v_cndmask_b32 v{T1+r}, v{T1+r}, v{T2+r}, s[{S_HF8}:{S_HF8+1}]")
    L.issue("sp", f"ds_write_b128 v72, v[{T1}:{T1+3}]")
    L.issue("sp", f"ds_write_b128 v73, v[{T0}:{T0+3}]")
    ONE = 64; SA = 72; SEL = 64
    for r in range(4): a(f"v_mov_b32 v{ONE+r}, 0x3f803f80")
    a(f"v_mov_b32 v{VP0+1}, 0\nv_mov_b32 v{VP1+1}, 0")
    zero(46, 48); zero(50, 52)
    L.wait_all()
    stp(4)
    a("s_barrier")
    stp(5)
    X = 28; M = 52
    for w in range(4): L.issue(("x", w), f"ds_read_b128 v[{X+4*w}:{X+4*w+3}], v{V_SPR} offset:{1280*w}")
    for w in range(4): L.issue("m", f"ds_read_b32 v{M+w}, v{V_SP0R} offset:{1280*w}")
    a(f"s_add_u32 s{S_KX}, s{S_KX}, 8192\ns_add_u32 s{S_VX}, s{S_VX}, 8192\ns_add_u32 s{S_KM}, s{S_KM}, 65536\ns_add_u32 s{S_VM}, s{S_VM}, 65536")
    if not KVLATE: kxload(V_T)
    def pka(d, s_): a(f"v_pk_add_f32 v[{d}:{d+1}], v[{d}:{d+1}], v[{s_}:{s_+1}]")
    L.wait(("x", 1))
    pka(X, X+4); pka(X+2, X+6)
    L.wait(("x", 3))
    pka(X+8, X+12); pka(X+10, X+14)
    L.wait("m")
    pka(M, M+2); pka(X, X+8); pka(X+2, X+10)
    a(f"v_add_f32 v{M}, v{M}, v{M+1}")
    t = 60
    a(f"""
v_max3_f32 v{t}, v{X}, v{X+1}, v{X+2}
v_max3_f32 v{t}, v{t}, v{X+3}, v{M}
v_mov_b64 v[32:33], 0
v_mov_b64 v[34:35], 0
v_max_f32_dpp v{t}, v{t}, v{t} row_ror:8 row_mask:0xf bank_mask:0xf
v_mov_b32 v{t+1}, v{t}
v_mov_b64 v[36:37], 0
v_mov_b64 v[38:39], 0
v_permlane16_swap_b32 v{t}, v{t+1}
v_max_f32 v{t}, v{t}, v{t+1}
v_mov_b32 v{t+1}, v{t}
s_nop 1
v_permlane32_swap_b32 v{t}, v{t+1}
v_max_f32 v{t}, v{t}, v{t+1}
v_mul_f32 v{t}, s{S_SC}, v{t}
""")
    vals = [M, X, X+1, X+2, X+3]
    for v in vals: a(f"v_fma_f32 v{v}, v{v}, s{S_SC}, -v{t}")
    for v in vals: a(f"v_exp_f32 v{v}, v{v}")
    PX, PM, O0, O1, LS = 60, 52, 68, 56, 40
    a(f"""
v_mov_b32_dpp v{M+1}, v{M} row_ror:8 row_mask:0xf bank_mask:0xf
v_cvt_pk_bf16_f32 v{PX}, v{X}, v{X+1}
v_cvt_pk_bf16_f32 v{PX+1}, v{X+2}, v{X+3}
v_cvt_pk_bf16_f32 v{PM}, v{M}, v{M+1}
v_mov_b32 v{PM+1}, 0
v_mov_b64 v[{PM+2}:{PM+3}], 0
v_mov_b32_dpp v{PX+2}, v{PX} row_ror:8 row_mask:0xf bank_mask:0xf
v_mov_b32_dpp v{PX+3}, v{PX+1} row_ror:8 row_mask:0xf bank_mask:0xf
v_mfma_f32_16x16x32_bf16 v[{LS}:{LS+3}], v[{ONE}:{ONE+3}], v[{PM}:{PM+3}], 0
v_mfma_f32_16x16x32_bf16 v[{LS}:{LS+3}], v[{ONE}:{ONE+3}], v[{PX}:{PX+3}], v[{LS}:{LS+3}]
v_mfma_f32_16x16x32_bf16 v[{O0}:{O0+3}], v[{VP0}:{VP0+3}], v[{PM}:{PM+3}], 0
v_mfma_f32_16x16x32_bf16 v[{O0}:{O0+3}], v[{VX0}:{VX0+3}], v[{PX}:{PX+3}], v[{O0}:{O0+3}]
v_mfma_f32_16x16x32_bf16 v[{O1}:{O1+3}], v[{VP1}:{VP1+3}], v[{PM}:{PM+3}], 0
v_mfma_f32_16x16x32_bf16 v[{O1}:{O1+3}], v[{VX1}:{VX1+3}], v[{PX}:{PX+3}], v[{O1}:{O1+3}]
v_mov_b64 v[28:29], 0
v_mov_b64 v[30:31], 0
v_rcp_f32 v{LS}, v{LS}
v_xor_b32 v{V_T}, 32, v{V_OW}
""")
    def pkm(d): a(f"v_pk_mul_f32 v[{d}:{d+1}], v[{d}:{d+1}], v[{LS}:{LS+1}] op_sel_hi:[1,0]")
    pkm(O0); pkm(O0+2)
    a(f"v_cvt_pk_bf16_f32 v{O0}, v{O0}, v{O0+1}\nv_cvt_pk_bf16_f32 v{O0+1}, v{O0+2}, v{O0+3}")
    pkm(O1); pkm(O1+2)
    a(f"""
v_cvt_pk_bf16_f32 v{O1}, v{O1}, v{O1+1}
v_cvt_pk_bf16_f32 v{O1+1}, v{O1+2}, v{O1+3}
s_mov_b64 exec, s[{S_L8}:{S_L8+1}]
ds_write_b64 v{V_OW}, v[{O0}:{O0+1}]
ds_write_b64 v{V_T}, v[{O1}:{O1+1}]
s_mov_b64 exec, -1
v_xor_b32 v{V_T}, 128, v{V_OR}
""")
    if not KVLATE: vxload()
    zero(40, 46); zero(48, 50); zero(52, 56)
    single_addr(a, SA, SA + 1)
    L.wait_all()
    stp(6)
    a("s_barrier")
    stp(7)
    OA = 64
    L.issue("o0", f"ds_read_b128 v[{OA}:{OA+3}], v{V_OR}")
    L.issue("o1", f"ds_read_b128 v[{OA+4}:{OA+7}], v{V_T}")
    zero(56, 64)
    D = lambda n: 28 + 4*n
    def hsum(n):
        x = D(n)
        return [f"v_add_f32 v{x}, v{x}, v{x+2}", f"v_add_f32 v{x+1}, v{x+1}, v{x+3}"]
    def quad_ops(q, pk=False):
        o = 72 if q == 0 else 28
        ops = []
        for i in range(4):
            x = D(4*q + i)
            ops += [f"v_pk_add_f32 v[{x}:{x+1}], v[{x}:{x+1}], v[{x+2}:{x+3}]"] if pk else hsum(4*q + i)
            ops += [f"v_cvt_pk_bf16_f32 v{o+i}, v{x}, v{x+1}"]
        ops += [f"v_bfi_b32 v{o}, 1, s{S_TAG}, v{o}",
                f"buffer_store_dwordx4 v[{o}:{o+3}], v{V_PST}, {ws}, s{S_PST if q == 0 else S_PST1} offen{st}"]
        return ops
    def single_ops():
        x = D(8)
        return hsum(8) + [
            f"v_cvt_pk_bf16_f32 v{x}, v{x}, v{x+1}",
            f"v_mov_b32_dpp v{x+1}, v{x} row_ror:8 row_mask:0xf bank_mask:0xf",
            f"v_bfi_b32 v{x}, 1, s{S_TAG}, v{x}",
            f"s_mov_b64 exec, s[{S_L8}:{S_L8+1}]\nbuffer_store_dwordx2 v[{x}:{x+1}], v{SA}, {ws}, s{S_PST2} offen{st}\ns_mov_b64 exec, -1"]
    order = [8, 0, 1, 2, 3, 4, 5, 6, 7]
    def smo(n, ks): return f"v_smfmac_f32_16x16x64_bf16 v[{D(n)}:{D(n)+3}], v[{OA+4*ks}:{OA+4*ks+3}], {R(WO(n,ks),8)}, v{V_IDX}"
    L.wait("o0")
    for n in order[:3]: a(smo(n, 0))
    L.wait("o1")
    seq = [smo(n, 1) for n in order[:3]]
    for n in order[3:]: seq += [smo(n, 0), smo(n, 1)]
    pend = []; q1ops = quad_ops(1)
    done_at = {2: single_ops(), 8: quad_ops(0), 12: q1ops[:6]}
    for i, ins in enumerate(seq):
        a(ins)
        if i in done_at: pend += done_at[i]
        for _ in range(2):
            if pend: a(pend.pop(0))
    for p in pend: a(p)
    for p in quad_ops(1, True)[4:]: a(p)
    if KVLATE: kxload(V_T); vxload()
    stp(8)
    Lnr = a.label_name("Lnored"); Lr = a.label_name("Lred"); Lr2 = a.label_name("Lred2"); Lpub = a.label_name("Lpub"); Lw2 = a.label_name("Lw2")
    a(f"s_cmp_eq_u32 s{S_W}, 3\ns_cbranch_scc1 {Lnr}")
    P = 28; Dr = 60
    def sel():
        a(f"""
v_and_b32 v{V_T}, 1, v0
v_lshlrev_b32 v{V_T}, 4, v{V_T}
v_mov_b32 v70, 0x3f80
v_lshlrev_b32 v70, v{V_T}, v70
v_bfe_u32 v{V_T}, v0, 1, 3
""")
        for d in range(4): a(f"v_cmp_eq_u32 vcc, {d}, v{V_T}\nv_cndmask_b32 v{SEL+d}, 0, v70, vcc")
    sel()
    a(f"s_mov_b32 s{S_SPIN}, 0\ns_sub_u32 s{S_TMP}, s{S_TAG}, 1")
    a(f"s_cmp_eq_u32 s{S_W}, 2\ns_cbranch_scc1 {Lw2}")
    def pload(n):
        for t_ in range(n):
            a(f"buffer_load_dwordx4 v[{P+4*t_}:{P+4*t_+3}], v{V_PLD}, {ws}, s{S_PLD} offen offset:{1024*t_}{POLL_F if fast else ' sc1'}")
    a("v_mov_b32 v68, -1\nv_mov_b32 v69, -1")
    for _ in range(DLY_R): a("s_nop 15")
    a.label(Lr)
    pload(4)
    spin()
    a(f"""
s_waitcnt vmcnt(0)
v_bitop3_b32 v{Dr}, v{P}, v{P+4}, s{S_TMP} bitop3:0x42
v_bitop3_b32 v{Dr+1}, v{P+8}, v{P+12}, s{S_TMP} bitop3:0x42
v_bitop3_b32 v{Dr}, v{Dr}, v{Dr+1}, 1 bitop3:0x80
v_cmp_eq_u32 vcc, 0, v{Dr}
s_and_b64 exec, exec, vcc
s_cbranch_scc1 {Lr}
s_mov_b64 exec, -1
""")
    if stamps: a(f"s_add_u32 s101, s101, s{S_SPIN}")
    stp(9)
    a(f"v_mfma_f32_16x16x32_bf16 v[{Dr}:{Dr+3}], v[{SEL}:{SEL+3}], v[{P}:{P+3}], 0")
    a(f"v_mfma_f32_16x16x32_bf16 v[44:47], v[{SEL}:{SEL+3}], v[{P+4}:{P+7}], 0")
    a(f"v_mfma_f32_16x16x32_bf16 v[{Dr}:{Dr+3}], v[{SEL}:{SEL+3}], v[{P+8}:{P+11}], v[{Dr}:{Dr+3}]")
    a(f"v_mfma_f32_16x16x32_bf16 v[{Dr}:{Dr+3}], v[{SEL}:{SEL+3}], v[{P+12}:{P+15}], v[{Dr}:{Dr+3}]")
    pka(Dr, 44); pka(Dr+2, 46)
    for r in range(4): a(f"v_add_f32_dpp v{Dr+r}, v{Dr+r}, v{Dr+r} row_ror:8 row_mask:0xf bank_mask:0xf")
    a(f"s_branch {Lpub}")
    a.label(Lw2)
    a("v_mov_b32 v68, -1\nv_mov_b32 v69, -1")
    a.label(Lr2)
    pload(1)
    spin()
    a(f"""
s_waitcnt vmcnt(0)
v_bitop3_b32 v{Dr}, v{P}, v{P+2}, s{S_TMP} bitop3:0x42
v_and_b32 v{Dr}, 1, v{Dr}
v_cmp_eq_u32 vcc, 0, v{Dr}
s_and_b64 exec, exec, vcc
s_cbranch_scc1 {Lr2}
s_mov_b64 exec, -1
""")
    if stamps: a(f"s_add_u32 s101, s101, s{S_SPIN}")
    stp(9)
    a(f"v_mfma_f32_16x16x32_bf16 v[{Dr}:{Dr+3}], v[{SEL}:{SEL+3}], v[{P}:{P+3}], 0")
    for sh in (2, 4, 8):
        for r in range(4): a(f"v_add_f32_dpp v{Dr+r}, v{Dr+r}, v{Dr+r} row_ror:{sh} row_mask:0xf bank_mask:0xf")
    a.label(Lpub)
    a(f"""
v_cvt_pk_bf16_f32 v{Dr}, v{Dr}, v{Dr+1}
v_cvt_pk_bf16_f32 v{Dr+1}, v{Dr+2}, v{Dr+3}
v_min_u32 v{Dr}, s{S_POIS}, v{Dr}
s_mov_b64 exec, s[{S_PUB}:{S_PUB+1}]
buffer_store_dwordx2 v[{Dr}:{Dr+1}], v{V_MST}, {ws}, s{S_MNXT} offen{st}
buffer_store_dwordx2 v[68:69], v{V_MST}, {ws}, s{S_MCUR} offen{st}
s_mov_b64 exec, -1
""")
    a.label(Lnr)
    stp(10)
    a(f"""
s_mov_b32 s{S_TMP}, s{S_MCUR}
s_mov_b32 s{S_MCUR}, s{S_MNXT}
s_mov_b32 s{S_MNXT}, s{S_M3}
s_mov_b32 s{S_M3}, s{S_TMP}
s_xor_b32 s{S_TAG}, s{S_TAG}, 1
s_add_u32 s{S_STEP}, s{S_STEP}, 1
s_branch {Ltop}
""")

def finish(a):
    L = a.label_name("Lfin")
    ws = f"s[{S_WS}:{S_WS+3}]"
    a(f"""
s_waitcnt vmcnt(0)
s_barrier
s_cmp_lg_u32 s{S_W}, 3
s_cbranch_scc1 {L}
v_mov_b32 v52, 0
v_mov_b32 v53, 1
s_mov_b32 s{S_TMP}, {WS_CNT + 36*128}
v_mov_b32 v54, 64
s_mov_b64 exec, 1
buffer_store_dword v54, v52, {ws}, s{S_HD} offen sc1
buffer_atomic_add v53, v52, {ws}, s{S_TMP} offen sc0 sc1
v_lshlrev_b32 v52, 7, v0
s_waitcnt vmcnt(0)
v_readfirstlane_b32 s{S_TMP}, v53
s_mov_b64 exec, -1
v_lshlrev_b32 v52, 7, v0
v_mov_b32 v{V_T}, 64
s_cmp_lg_u32 s{S_TMP}, 31
s_cbranch_scc1 {L}
s_mov_b32 exec_hi, 0
buffer_store_byte v{V_T}, v52, {ws}, s{S_FL} offen sc1
s_mov_b64 exec, -1
s_waitcnt vmcnt(0)
""")
    a.label(L)


def make_kv_wait(Lfail):
    def kv_wait(a, ahead):
        Lp = a.label_name("Lkvp"); Ls = a.label_name("Lkvs")
        a(f"""
s_add_u32 s{S_TMP}, s{S_STEP}, {ahead}
s_and_b32 s{S_TMP2}, s{S_TMP}, 3
s_cmp_lg_u32 s{S_TMP2}, 0
s_cbranch_scc1 {Ls}
s_cmp_gt_u32 s{S_TMP}, 63
s_cbranch_scc1 {Ls}
v_mov_b32 v52, s{S_TMP}
s_mov_b32 s{S_SPIN}, 0
""")
        a.label(Lp)
        a(f"""
global_load_dword v53, v52, s[{S_DBG}:{S_DBG+1}] offset:{DBG_KVRDY*4} sc1
s_add_u32 s{S_SPIN}, s{S_SPIN}, 1
s_cmp_gt_u32 s{S_SPIN}, 0x200000
s_cbranch_scc1 {Lfail}
s_waitcnt vmcnt(0)
v_readfirstlane_b32 s{S_TMP2}, v53
s_and_b32 s{S_TMP2}, s{S_TMP2}, 0xffff
s_cmp_lt_u32 s{S_TMP2}, 128
s_cbranch_scc0 {Ls}
s_sleep 8
s_branch {Lp}
""")
        a.label(Ls)
    return kv_wait
```

```python
from asmlib import *
from layout import *
from rec import Ctr, f32bits, S_WS

S_RB, S_W, S_J = 3, 4, 5
S_A = 12
S_B = 16
S_C = 20
S_PQ, S_PK, S_PV = 24, 26, 28
S_DBG = 30
S_CUR, S_NXT = 32, 33
S_IT, S_ITN, S_END = 34, 35, 36
S_T, S_T2, S_T3 = 37, 38, 39
S_WM0 = 40
S_OB = 41
S_CURC, S_NXTC = 42, 43
S_SPIN = 44
S_H, S_HN, S_HE = 45, 46, 47
S_HELP, S_RBO = 2, 6
S_K = 48
V_FR = 1
V_VO = 4
V_ST = 7
V_T = 9
V_FP = 10
FB = 16
ACC0 = 32
XF = 112
NFB = 4

def OUT(n):
    return 256 + 16*n if n < 16 else 80 + 16*(n - 16)

def load_ptr(a, dst, name):
    a(f"s_load_dwordx2 s[{dst}:{dst+1}], s[0:1], {KA[name]}")

def srd(a, d, ptr, nbytes):
    a(f"s_mov_b32 s{d}, s{ptr}\ns_mov_b32 s{d+1}, s{ptr+1}\ns_mov_b32 s{d+2}, {nbytes}\ns_mov_b32 s{d+3}, 0x20000")

def setup(a):
    a(f"""
v_lshrrev_b32 v{V_T}, 6, v0
v_and_b32 v0, 63, v0
v_readfirstlane_b32 s{S_W}, v{V_T}
v_lshrrev_b32 v10, 4, v0
v_bfe_u32 v11, v0, 2, 2
v_and_b32 v12, 3, v0
v_lshrrev_b32 v13, 2, v0
s_lshl_b32 s{S_WM0}, s{S_W}, 10
""")
    a(f"""
v_lshrrev_b32 v14, 1, v10
v_lshlrev_b32 v14, 9, v14
v_lshl_add_u32 v14, v11, 6, v14
v_and_b32 v15, 1, v10
v_lshl_add_u32 v14, v15, 5, v14
v_lshl_add_u32 v{V_FR}, v12, 3, v14
v_add_u32 v{V_FR+1}, 0x10000, v{V_FR}
v_add_u32 v{V_FR+2}, 0x20000, v{V_FR}
""")
    a(f"""
s_lshr_b32 s{S_T}, s{S_W}, 1
s_and_b32 s{S_T2}, s{S_W}, 1
s_lshl_b32 s{S_T3}, s{S_W}, 16
v_and_b32 v14, 7, v13
v_lshlrev_b32 v14, 13, v14
v_lshl_add_u32 v14, v12, 4, v14
v_lshrrev_b32 v15, 5, v0
v_lshl_add_u32 v14, v15, 6, v14
v_add_u32 v{V_VO}, s{S_T3}, v14
""")
    a(f"""
s_mul_i32 s{S_T3}, s{S_W}, {16*9216}
v_mul_u32_u24 v14, 9216, v13
v_lshl_add_u32 v14, v12, 4, v14
v_add_u32 v{V_VO+1}, s{S_T3}, v14
""")
    a(f"""
s_mul_i32 s{S_T3}, s{S_T2}, {16*1152}
s_lshl_b32 s{S_IT}, s{S_T}, 6
s_add_u32 s{S_T3}, s{S_T3}, s{S_IT}
v_bfe_u32 v14, v13, 2, 1
v_lshlrev_b32 v14, 3, v14
v_lshrrev_b32 v15, 3, v13
v_lshl_add_u32 v14, v15, 2, v14
v_and_b32 v15, 3, v13
v_add_u32 v14, v14, v15
v_mul_u32_u24 v14, 1152, v14
v_lshl_add_u32 v14, v12, 4, v14
v_add_u32 v{V_VO+2}, s{S_T3}, v14
""")
    a(f"""
v_lshrrev_b32 v15, 5, v0
v_lshl_add_u32 v{V_FP}, v15, 9, v{V_FR}
v_add_u32 v{V_FP+1}, 0x10000, v{V_FP}
""")

def layernorm(a):
    load_ptr(a, S_PQ, 'x')
    a(f"""
s_lshl_b32 s{S_T}, s{S_RB}, 2
s_add_u32 s{S_T}, s{S_T}, s{S_W}
s_mul_i32 s{S_T}, s{S_T}, {32*1152}
v_and_b32 v14, 31, v0
v_mul_u32_u24 v14, 1152, v14
v_lshrrev_b32 v15, 5, v0
v_lshl_add_u32 v14, v15, 4, v14
s_waitcnt lgkmcnt(0)
""")
    srd(a, S_A, S_PQ, 2048*1152)
    for t in range(36):
        a(f"buffer_load_dwordx4 v[{XF+4*t}:{XF+4*t+3}], v14, s[{S_A}:{S_A+3}], s{S_T} offen offset:{32*t}")
    a("v_mov_b32 v16, 0x3f803f80")
    for i in range(4): a(f"v_mov_b32 v{20+i}, 0")
    for t in range(36):
        a(f"s_waitcnt vmcnt({35-t})")
        for i in range(4): a(f"v_dot2c_f32_bf16 v{20+i}, v{XF+4*t+i}, v16")
    a(f"""
s_nop 2
v_add_f32 v20, v20, v21
v_add_f32 v22, v22, v23
v_add_f32 v20, v20, v22
v_mov_b32 v21, v20
v_permlane32_swap_b32 v20, v21
v_add_f32 v20, v20, v21
v_mul_f32 v20, {f32bits(1.0/576):#x}, v20
v_cvt_pk_bf16_f32 v21, v20, v20
v_lshlrev_b32 v22, 16, v21
v_mov_b32 v23, v22
v_sub_f32 v24, v20, v22
v_mov_b64 v[26:27], 0
v_mov_b64 v[28:29], 0
""")
    for d in range(144):
        x = XF + d; t0 = 32 + 2*(d % 4); acc = 26 + 2*(d % 2)
        a(f"""
v_lshlrev_b32 v{t0}, 16, v{x}
v_and_b32 v{t0+1}, 0xffff0000, v{x}
v_pk_add_f32 v[{t0}:{t0+1}], v[{t0}:{t0+1}], v[22:23] neg_lo:[0,1] neg_hi:[0,1]
v_pk_fma_f32 v[{acc}:{acc+1}], v[{t0}:{t0+1}], v[{t0}:{t0+1}], v[{acc}:{acc+1}]
v_cvt_pk_bf16_f32 v{x}, v{t0}, v{t0+1}
""")
    a(f"""
v_pk_add_f32 v[26:27], v[26:27], v[28:29]
v_add_f32 v26, v26, v27
v_mov_b32 v27, v26
v_permlane32_swap_b32 v26, v27
v_add_f32 v26, v26, v27
v_mul_f32 v26, {f32bits(1.0/576):#x}, v26
v_fma_f32 v26, -v24, v24, v26
v_max_f32 v26, 0, v26
v_cvt_pk_bf16_f32 v26, v26, v26
v_lshlrev_b32 v26, 16, v26
v_add_f32 v26, {f32bits(1e-5):#x}, v26
v_cvt_pk_bf16_f32 v26, v26, v26
v_lshlrev_b32 v26, 16, v26
v_sqrt_f32 v26, v26
v_cvt_pk_bf16_f32 v26, v26, v26
v_lshlrev_b32 v26, 16, v26
v_rcp_f32 v26, v26
v_mov_b32 v27, v26
""")
    for d in range(144):
        x = XF + d; t0 = 32 + 2*(d % 4)
        a(f"""
v_lshlrev_b32 v{t0}, 16, v{x}
v_and_b32 v{t0+1}, 0xffff0000, v{x}
v_pk_mul_f32 v[{t0}:{t0+1}], v[{t0}:{t0+1}], v[26:27]
v_cvt_pk_bf16_f32 v{x}, v{t0}, v{t0+1}
""")

STAMPS = False
def wstamp(a, i, st=None):
    if not STAMPS: return
    a(f"""
s_memtime s[98:99]
s_waitcnt lgkmcnt(0)
s_sub_u32 s97, s98, s96
s_add_u32 s{84+i}, s{84+i}, s97
s_mov_b32 s96, s98
""")
def wstamp_init(a):
    if not STAMPS: return
    for i in range(12): a(f"s_mov_b32 s{84+i}, 0")
    a("s_memtime s[96:97]\ns_waitcnt lgkmcnt(0)")
def wstamp_dump(a, slot_sgpr):
    if not STAMPS: return
    a(f"s_lshl_b32 s97, s{slot_sgpr}, 2\ns_add_u32 s97, s97, s{S_W}\ns_lshl_b32 s97, s97, 6\ns_add_u32 s97, s97, {61*MiB}\nv_mov_b32 v32, 0\ns_mov_b64 exec, 1")
    for i in range(12): a(f"v_mov_b32 v{36+i}, s{84+i}")
    for i in range(3): a(f"buffer_store_dwordx4 v[{36+4*i}:{39+4*i}], v32, s[{S_WS}:{S_WS+3}], s97 offen offset:{16*i}")
    a("s_mov_b64 exec, -1\ns_waitcnt vmcnt(0)")

class Stream:
    def __init__(self, a, R, D):
        self.a, self.R, self.D = a, R, D
        self.V = Ctr(a, "vmcnt", 63); self.L = Ctr(a, "lgkmcnt", 15)
    def dma(self, slot, i, srd_, vo, sbase, const, tag):
        a = self.a
        a(f"s_add_u32 m0, s{S_WM0}, {slot*12288 + i*4096}")
        if const: a(f"s_add_u32 s{S_T}, s{sbase}, {const}"); so = S_T
        else: so = sbase
        self.V.issue(tag, f"buffer_load_dwordx4 v{vo}, s[{srd_}:{srd_+3}], s{so} offen lds")
    def rd(self, slot, f, buf, tag, paired=False):
        off = slot*12288 + f*1024
        if paired: off = slot*12288 + (f >> 1)*2048 + (f & 1)*512
        b = (V_FP if paired else V_FR) + (off >> 16); off &= 0xffff
        assert off + 256 < 65536
        d = FB + 4*buf
        self.L.issue(tag, f"ds_read_b64_tr_b16 v[{d}:{d+1}], v{b} offset:{off}")
        self.L.issue(tag, f"ds_read_b64_tr_b16 v[{d+2}:{d+3}], v{b} offset:{off+256}")

def qkv_phase(a, Lexit_fail=None, signal=None):
    ws = f"s[{S_WS}:{S_WS+3}]"
    R, D = 6, 4
    load_ptr(a, S_PQ, 'Wq'); load_ptr(a, S_PK, 'Wk'); load_ptr(a, S_PV, 'Wv')
    a("s_waitcnt lgkmcnt(0)")
    def item_src(c, dsrd, doff):
        a(f"""
s_min_u32 s{S_T2}, s{c}, 191
s_cmp_lt_u32 s{S_T2}, 64
s_cselect_b32 s{dsrd}, s{S_PK}, s{S_PV}
s_cselect_b32 s{dsrd+1}, s{S_PK+1}, s{S_PV+1}
s_cmp_lt_u32 s{S_T2}, 128
s_cselect_b32 s{dsrd}, s{dsrd}, s{S_PQ}
s_cselect_b32 s{dsrd+1}, s{dsrd+1}, s{S_PQ+1}
s_mov_b32 s{dsrd+2}, {W_BYTES}
s_mov_b32 s{dsrd+3}, 0x20000
s_and_b32 s{doff}, s{S_T2}, 63
s_lshl_b32 s{doff}, s{doff}, 7
""")
    S_NKV, S_NQ, S_R1, S_R2, S_I, S_N, S_KV0, S_KVS, S_QB = (S_K + i for i in range(9))
    Lsp = a.label_name("Lqsp"); Lse = a.label_name("Lqse")
    a(f"""
s_cmp_lt_u32 s{S_J}, 2
s_cselect_b32 s{S_QB}, 10, 9
s_cmp_lt_u32 s{S_J}, 10
s_cselect_b32 s{S_N}, 14, 13
s_sub_u32 s{S_NQ}, s{S_N}, s{S_QB}
s_mov_b32 s{S_R2}, s{S_RB}
""")
    for _ in range(4):
        a(f"s_sub_u32 s{S_T}, s{S_R2}, s{S_NQ}\ns_cmp_lt_u32 s{S_R2}, s{S_NQ}\ns_cselect_b32 s{S_R2}, s{S_R2}, s{S_T}")
    a(f"""
s_cmp_lg_u32 s{S_HELP}, 0
s_cbranch_scc1 {Lsp}
s_mov_b32 s{S_NKV}, s{S_QB}
s_mov_b32 s{S_KV0}, 0
s_mov_b32 s{S_KVS}, 1
s_sub_u32 s{S_R1}, s{S_RB}, s{S_NKV}
s_cmp_lt_u32 s{S_RB}, s{S_NKV}
s_cselect_b32 s{S_R1}, s{S_RB}, s{S_R1}
s_branch {Lse}
""")
    a.label(Lsp)
    a(f"""
s_sub_u32 s{S_KV0}, s{S_HELP}, 1
s_mov_b32 s{S_KVS}, 5
s_mov_b32 s{S_R1}, 0
s_add_u32 s{S_T}, s{S_KV0}, 5
s_cmp_lt_u32 s{S_T}, s{S_QB}
s_cselect_b32 s{S_NKV}, 2, 1
s_add_u32 s{S_N}, s{S_NKV}, s{S_NQ}
s_cmp_gt_u32 s{S_HELP}, 1
s_cselect_b32 s{S_N}, s{S_NKV}, s{S_N}
""")
    a.label(Lse)
    def calc_c(add, dst):
        a(f"""
s_add_u32 s{S_T}, s{S_I}, {add}
s_add_u32 s{S_T2}, s{S_T}, s{S_R1}
s_sub_u32 s{S_T3}, s{S_T2}, s{S_NKV}
s_cmp_lt_u32 s{S_T2}, s{S_NKV}
s_cselect_b32 s{dst}, s{S_T2}, s{S_T3}
s_mul_i32 s{dst}, s{dst}, s{S_KVS}
s_add_u32 s{dst}, s{dst}, s{S_KV0}
s_sub_u32 s{S_T2}, s{S_T}, s{S_NKV}
s_add_u32 s{S_T2}, s{S_T2}, s{S_R2}
s_sub_u32 s{S_T3}, s{S_T2}, s{S_NQ}
s_cmp_lt_u32 s{S_T2}, s{S_NQ}
s_cselect_b32 s{S_T2}, s{S_T2}, s{S_T3}
s_add_u32 s{S_T2}, s{S_T2}, s{S_QB}
s_cmp_lt_u32 s{S_T}, s{S_NKV}
s_cselect_b32 s{dst}, s{dst}, s{S_T2}
s_mul_i32 s{dst}, s{dst}, 14
s_add_u32 s{dst}, s{dst}, s{S_J}
s_cmp_lt_u32 s{S_T}, s{S_N}
s_cselect_b32 s{dst}, s{dst}, 192
""")
    a(f"s_mov_b32 s{S_I}, 0")
    calc_c(0, S_IT); calc_c(1, S_ITN)
    item_src(S_IT, S_A, S_CUR); item_src(S_ITN, S_B, S_NXT)
    st = Stream(a, R, D)
    def issue(p):
        pp = p % 6
        sr_, sb = (S_A, S_CUR) if p < 6 else (S_B, S_NXT)
        for i in range(3):
            st.dma(pp % R, i, sr_, V_VO, sb, (6*pp + 2*i)*16*8192, ("d", p))
    for p in range(D): issue(p)
    a("s_waitcnt vmcnt(0)\ns_barrier")
    wstamp(a, 1)
    st.V.q = []
    for f in range(NFB - 1): st.rd(0, f, f, ("f", f), True)
    pre_L = list(st.L.q)
    Lloop = a.label_name("Lqkv"); Lv = a.label_name("Lqkv_v"); Lnext = a.label_name("Lqkv_n"); Ldone = a.label_name("Lqkv_d")
    def body(isv, Vq):
        st.V.q = list(Vq); st.L.q = list(pre_L)
        for p in range(6):
            wstamp(a, 2)
            st.V.wait(("d", p + 1))
            wstamp(a, 3)
            a("s_barrier")
            wstamp(a, 4)
            if p == 3 and signal:
                Lns = a.label_name("Lnosig")
                a(f"s_cmp_lg_u32 s{S_I}, s{S_NKV}\ns_cbranch_scc1 {Lns}")
                signal(a, f"s{S_NKV}")
                a.label(Lns)
            issue(p + D)
            for f in range(12):
                phi = 12*p + f; t = phi >> 1; nt = phi & 1
                nx = phi + NFB - 1
                st.rd((nx // 12) % R, nx % 12, nx % NFB, ("f", nx % 72 if nx >= 72 else nx), True)
                st.L.wait(("f", phi))
                W = f"v[{FB+4*(phi%NFB)}:{FB+4*(phi%NFB)+3}]"; X = f"v[{XF+4*t}:{XF+4*t+3}]"
                acc = f"v[{ACC0+16*nt}:{ACC0+16*nt+15}]"
                A_, B_ = (X, W) if isv else (W, X)
                a(f"v_mfma_f32_32x32x16_bf16 {acc}, {A_}, {B_}, {acc if t else 0}")
        wstamp(a, 2)
        a(f"""
s_and_b32 s{S_T2}, s{S_IT}, 63
s_lshr_b32 s{S_OB}, s{S_T2}, 1
s_lshl_b32 s{S_OB}, s{S_OB}, 19
s_and_b32 s{S_T2}, s{S_T2}, 1
s_lshl_b32 s{S_T2}, s{S_T2}, 12
s_add_u32 s{S_OB}, s{S_OB}, s{S_T2}
""")
        if isv: a(f"s_add_u32 s{S_OB}, s{S_OB}, {WS_VT}")
        else: a(f"s_cmp_lt_u32 s{S_IT}, 64\ns_cselect_b32 s{S_T2}, {WS_K}, {WS_Q}\ns_add_u32 s{S_OB}, s{S_OB}, s{S_T2}")
        for nt in range(2):
            for u in range(2):
                b = ACC0 + 16*nt + 8*u; d = 64 + 4*(2*nt + u)
                for i in range(4): a(f"v_cvt_pk_bf16_f32 v{d+i}, v{b+2*i}, v{b+2*i+1}")
                st.V.issue("st", f"buffer_store_dwordx4 v[{d}:{d+3}], v{V_ST}, {ws}, s{S_OB} offen offset:{(2*nt+u)*1024} sc1")
        wstamp(a, 5)
        return [(t_[0], t_[1] - 6) if isinstance(t_, tuple) and t_[0] == "d" else t_ for t_ in st.V.q]
    real = st.a
    scratch = Asm(); st.a = st.V.a = st.L.a = scratch
    g = globals()
    a_save = a
    def with_asm(x):
        nonlocal a
        a = x; st.a = st.V.a = st.L.a = x
    with_asm(scratch); q1 = body(False, []); q2 = body(False, q1); assert q1 == q2, (q1, q2)
    with_asm(a_save)
    a.label(Lloop)
    a(f"s_cmp_lt_u32 s{S_IT}, 64\ns_cbranch_scc1 {Lloop}_k\ns_cmp_lt_u32 s{S_IT}, 128\ns_cbranch_scc1 {Lv}")
    a.label(Lloop + "_k")
    body(False, q1)
    a(f"s_branch {Lnext}")
    a.label(Lv)
    body(True, q1)
    a.label(Lnext)
    a(f"""
s_mov_b32 s{S_IT}, s{S_ITN}
s_add_u32 s{S_I}, s{S_I}, 1
s_mov_b32 s{S_A}, s{S_B}
s_mov_b32 s{S_A+1}, s{S_B+1}
s_mov_b32 s{S_CUR}, s{S_NXT}
""")
    calc_c(1, S_ITN)
    item_src(S_ITN, S_B, S_NXT)
    a(f"s_cmp_lt_u32 s{S_IT}, 192\ns_cbranch_scc1 {Lloop}")
    a("s_waitcnt vmcnt(0) lgkmcnt(0)\ns_barrier")
    if signal:
        a(f"s_lshl_b32 s{S_T2}, s{S_NQ}, 16\ns_cmp_eq_u32 s{S_N}, s{S_NKV}\ns_cselect_b32 s{S_T2}, s{S_NKV}, s{S_T2}")
        signal(a, f"s{S_T2}")

GA, UA, GL, HF = 32, 48, 64, 72
V_C0 = 8
GELU_C0 = -2.0 * 0.7978845608028654 * 1.4426950408889634
GELU_C1 = GELU_C0 * 0.044715
WG_BYTES = 576 * 4608 * 2

def work_split(a):
    L = a.label_name("Lws"); L2 = a.label_name("Lws2")
    a(f"""
s_cmp_ge_u32 s{S_RB}, {RB_MID}
s_cbranch_scc1 {L2}
s_mul_i32 s{S_IT}, s{S_J}, 9
s_add_u32 s{S_END}, s{S_IT}, 9
s_mul_i32 s{S_H}, s{S_J}, 3
s_add_u32 s{S_HE}, s{S_H}, 3
s_cmp_lt_u32 s{S_J}, 4
s_cbranch_scc1 {L}
s_sub_u32 s{S_T}, s{S_J}, 4
s_mul_i32 s{S_IT}, s{S_T}, 11
s_add_u32 s{S_IT}, s{S_IT}, 36
s_add_u32 s{S_END}, s{S_IT}, 11
s_lshl_b32 s{S_H}, s{S_T}, 1
s_add_u32 s{S_H}, s{S_H}, 12
s_add_u32 s{S_HE}, s{S_H}, 2
s_cmp_lt_u32 s{S_J}, 12
s_cbranch_scc1 {L}
s_sub_u32 s{S_T}, s{S_J}, 12
s_mul_i32 s{S_IT}, s{S_T}, 10
s_add_u32 s{S_IT}, s{S_IT}, 124
s_add_u32 s{S_END}, s{S_IT}, 10
s_branch {L}
""")
    a.label(L2)
    a(f"""
s_mul_i32 s{S_IT}, s{S_J}, 10
s_min_u32 s{S_T}, s{S_J}, 4
s_add_u32 s{S_IT}, s{S_IT}, s{S_T}
s_cmp_lt_u32 s{S_J}, 4
s_cselect_b32 s{S_T}, 11, 10
s_add_u32 s{S_END}, s{S_IT}, s{S_T}
""")
    a.label(L)

def gelu_ops(e0, e1):
    ops = []
    S_C1 = S_K + 8
    for e in range(e0, e1, 2):
        x0, x1 = GA + e, GA + e + 1; t0, t1 = 12 + (e & 2), 13 + (e & 2)
        ops += [f"v_mul_f32 v{t0}, v{x0}, v{x0}", f"v_mul_f32 v{t1}, v{x1}, v{x1}",
                f"v_fma_f32 v{t0}, v{t0}, s{S_C1}, v{V_C0}", f"v_fma_f32 v{t1}, v{t1}, s{S_C1}, v{V_C0}",
                f"v_mul_f32 v{t0}, v{t0}, v{x0}", f"v_mul_f32 v{t1}, v{t1}, v{x1}",
                f"v_exp_f32 v{t0}, v{t0}", f"v_exp_f32 v{t1}, v{t1}",
                f"v_add_f32 v{t0}, 1.0, v{t0}", f"v_add_f32 v{t1}, 1.0, v{t1}",
                f"v_rcp_f32 v{t0}, v{t0}", f"v_rcp_f32 v{t1}, v{t1}",
                f"v_mul_f32 v{t0}, v{t0}, v{x0}", f"v_mul_f32 v{t1}, v{t1}, v{x1}",
                f"v_cvt_pk_bf16_f32 v{GL + e//2}, v{t0}, v{t1}"]
    return ops

def h_ops():
    ops = []
    for e in range(0, 16, 2):
        t0, t1 = 12 + (e & 2), 13 + (e & 2)
        ops += [f"v_lshlrev_b32 v{t0}, 16, v{GL + e//2}", f"v_and_b32 v{t1}, 0xffff0000, v{GL + e//2}",
                f"v_mul_f32 v{t0}, v{t0}, v{UA+e}", f"v_mul_f32 v{t1}, v{t1}, v{UA+e+1}",
                f"v_cvt_pk_bf16_f32 v{HF + e//2}, v{t0}, v{t1}"]
    return ops

def zero_out_acc(a):
    for n in range(16):
        for r in range(16): a(f"v_accvgpr_write_b32 a{16*n + r}, 0")
    for r in range(80, 112, 2): a(f"v_mov_b64 v[{r}:{r+1}], 0")

def ffn_phase(a):
    R, D = 9, 7
    S_C1 = S_K + 8; S_FIRST = S_K + 9
    load_ptr(a, S_PQ, 'Wg'); load_ptr(a, S_PK, 'Wu'); load_ptr(a, S_PV, 'Wd')
    a(f"s_mov_b32 s{S_C1}, {f32bits(GELU_C1):#x}\nv_mov_b32 v{V_C0}, {f32bits(GELU_C0):#x}\ns_mov_b32 s{S_FIRST}, s{S_IT}\ns_waitcnt lgkmcnt(0)")
    srd(a, S_A, S_PQ, WG_BYTES); srd(a, S_B, S_PK, WG_BYTES); srd(a, S_C, S_PV, WG_BYTES)
    OOB = 0x7f000000
    def bases():
        a(f"""
s_lshl_b32 s{S_CUR}, s{S_IT}, 6
s_cmp_lt_u32 s{S_IT}, s{S_END}
s_cselect_b32 s{S_CUR}, s{S_CUR}, {OOB}
s_add_u32 s{S_T}, s{S_IT}, 1
s_lshl_b32 s{S_NXT}, s{S_T}, 6
s_cmp_lt_u32 s{S_T}, s{S_END}
s_cselect_b32 s{S_NXT}, s{S_NXT}, {OOB}
s_mul_i32 s{S_NXTC}, s{S_IT}, {32*1152}
s_sub_u32 s{S_CURC}, s{S_NXTC}, {32*1152}
s_cmp_lt_u32 s{S_IT}, s{S_END}
s_cselect_b32 s{S_NXTC}, s{S_NXTC}, {OOB}
s_cmp_gt_u32 s{S_IT}, s{S_FIRST}
s_cselect_b32 s{S_CURC}, s{S_CURC}, {OOB}
""")
    bases()
    st = Stream(a, R, D)
    def issue(p):
        pp = p % 9; nxt = p >= 9; grp, q = divmod(pp, 3)
        for i in range(3):
            if grp < 2:
                st.dma(pp, i, S_A if grp == 0 else S_B, V_VO + 1, S_NXT if nxt else S_CUR, (12*q + 4*i)*16*9216, ("d", p))
            else:
                st.dma(pp, i, S_C, V_VO + 2, S_NXTC if nxt else S_CURC, (6*q + 2*i)*64, ("d", p))
    for p in range(D): issue(p)
    zero_out_acc(a)
    a("s_waitcnt vmcnt(0)\ns_barrier")
    st.V.q = []
    for f in range(NFB - 1): st.rd(0, f, f, ("f", f))
    pre_L = list(st.L.q)
    def group(grp, full, valu):
        valu = list(valu)
        per = -(-len(valu) // 34) if full else 0
        for q in range(3):
            p = 3*grp + q
            st.V.wait(("d", p + 1))
            a("s_barrier")
            issue(p + D)
            for f in range(12):
                phi = 12*p + f; g = phi - 36*grp
                nx = phi + NFB - 1
                if not full and g < 36 - (NFB - 1): continue
                if not full and g == 36 - (NFB - 1):
                    st.L.wait_all()
                    for v in valu: a(v)
                    valu = []
                st.rd((nx // 12) % R, nx % 12, nx % NFB, ("f", nx % 108))
                if not full: continue
                st.L.wait(("f", phi))
                Wf = f"v[{FB+4*(phi%NFB)}:{FB+4*(phi%NFB)+3}]"
                if grp < 2:
                    acc = f"v[{(GA, UA)[grp]}:{(GA, UA)[grp]+15}]"
                    a(f"v_mfma_f32_32x32x16_bf16 {acc}, {Wf}, v[{XF+4*g}:{XF+4*g+3}], {acc if g else 0}")
                else:
                    n, u2 = g >> 1, g & 1
                    acc = R_(OUT(n), 16)
                    a(f"v_mfma_f32_32x32x16_bf16 {acc}, {Wf}, v[{HF+4*u2}:{HF+4*u2+3}], {acc}")
                if g >= 1:
                    for _ in range(per):
                        if valu: a(valu.pop(0))
        for v in valu: a(v)
    def rename(q): return [(t[0], t[1] - 9) for t in q]
    a_save = a
    def with_asm(x):
        nonlocal a
        a = x; st.a = st.V.a = st.L.a = x
    payload = [h_ops(), gelu_ops(0, 8), gelu_ops(8, 16)]
    with_asm(Asm())
    st.V.q = []; qs = None
    for it in range(2):
        qs = []
        for grp in range(3):
            qs.append(list(st.V.q)); st.L.q = [("f", 36*grp + k) for k in range(NFB - 1) for _ in range(2)]
            group(grp, True, payload[grp])
        st.V.q = rename(st.V.q)
    with_asm(a_save)
    Lloop = a.label_name("Lffn")
    a.label(Lloop)
    for grp in range(3):
        Ll = a.label_name("Lffn_l"); Le = a.label_name("Lffn_e")
        if grp < 2: a(f"s_cmp_lt_u32 s{S_IT}, s{S_END}\ns_cbranch_scc0 {Ll}")
        else: a(f"s_cmp_gt_u32 s{S_IT}, s{S_FIRST}\ns_cbranch_scc0 {Ll}")
        for full in (True, False):
            if not full: a.label(Ll)
            st.V.q = list(qs[grp]); st.L.q = [("f", 36*grp + k) for k in range(NFB - 1) for _ in range(2)]
            group(grp, full, payload[grp] if (full or grp != 1) else [])
            if full: a(f"s_branch {Le}")
        a.label(Le)
    a(f"s_add_u32 s{S_IT}, s{S_IT}, 1")
    bases()
    a(f"s_cmp_le_u32 s{S_IT}, s{S_END}\ns_cbranch_scc1 {Lloop}")
    a("s_waitcnt vmcnt(0) lgkmcnt(0)\ns_barrier")

R_ = R

QF, KF, KMF, VF, VMF = 112, 144, 176, 208, 240
SX, SM, PX, PM = 32, 48, 64, 72
OT, OB = 112, 32
S_MASK = 64
SCALE_LOG2E = 0.08838834764831845 * 1.4426950408889634

S_PB = S_K + 12
S_ITEM = S_K + 13
S_TBL = S_K + 14
S_REP = 7
S_G = 6
S_GR = 24

def rb_consts(a):
    S_SEG = S_K + 9
    a(f"""
s_mul_i32 s{S_PB}, s{S_RB}, {14*PART_BYTES}
s_sub_u32 s{S_T}, s{S_RB}, {RB_MID}
s_max_i32 s{S_T}, s{S_T}, 0
s_mul_i32 s{S_T}, s{S_T}, {16*PART_BYTES}
s_add_u32 s{S_PB}, s{S_PB}, s{S_T}
s_sub_u32 s{S_T}, s{S_RB}, {RB_FINE}
s_max_i32 s{S_T}, s{S_T}, 0
s_mul_i32 s{S_T}, s{S_T}, {16*PART_BYTES}
s_add_u32 s{S_PB}, s{S_PB}, s{S_T}
s_add_u32 s{S_PB}, s{S_PB}, {WS_OUTP}
s_lshl_b32 s{S_SEG}, s{S_RB}, 2
s_add_u32 s{S_SEG}, s{S_SEG}, s{S_W}
s_lshl_b32 s{S_T}, s{S_SEG}, 13
v_and_b32 v12, 31, v0
v_lshrrev_b32 v13, 5, v0
v_lshlrev_b32 v{V_ST}, 5, v12
v_lshl_add_u32 v{V_ST}, v13, 4, v{V_ST}
v_add_u32 v{V_ST}, s{S_T}, v{V_ST}
""")

def store_tiles(a, part_sgpr, nt0_sgpr, ntiles, regf, own=False):
    ws = f"s[{S_WS}:{S_WS+3}]"
    a(f"""
s_lshl_b32 s{S_T}, s{part_sgpr}, 2
s_add_u32 s{S_T}, s{S_T}, s{S_W}
s_mul_i32 s{S_T}, s{S_T}, 73728
s_add_u32 s{S_T}, s{S_T}, s{S_PB}
""")
    if nt0_sgpr is not None: a(f"s_lshl_b32 s{S_T2}, s{nt0_sgpr}, 11\ns_add_u32 s{S_T}, s{S_T}, s{S_T2}")
    a("v_lshlrev_b32 v12, 4, v0\ns_nop 7")
    for n in range(ntiles):
        if own:
            for q in range(4):
                a(f"buffer_store_dwordx4 {R_(regf(n) + 4*q, 4)}, v12, {ws}, s{S_T} offen offset:{q*1024} sc1")
            a(f"s_add_u32 s{S_T}, s{S_T}, 4096")
        else:
            t = 112 + 24*n
            for r in range(16): a(f"v_accvgpr_read_b32 v{t+r}, a{regf(n) - 256 + r}")
            for i in range(8): a(f"v_cvt_pk_bf16_f32 v{t+16+i}, v{t+2*i}, v{t+2*i+1}")
            for q2 in range(2):
                a(f"buffer_store_dwordx4 v[{t+16+4*q2}:{t+19+4*q2}], v12, {ws}, s{S_T} offen offset:{(n&1)*2048 + q2*1024} sc1")
            if n & 1: a(f"s_add_u32 s{S_T}, s{S_T}, 4096")
    a("s_waitcnt vmcnt(0)\ns_barrier")
    L = a.label_name("Ldn")
    a(f"""
s_cmp_lg_u32 s{S_W}, 0
s_cbranch_scc1 {L}
s_lshl_b32 s{S_T}, s{S_RB}, 7
s_add_u32 s{S_T}, s{S_T}, {WS_CNT}
v_mov_b32 v12, 0
v_mov_b32 v13, {1 if own else 0x10000}
s_mov_b64 exec, 1
buffer_atomic_add v13, v12, {ws}, s{S_T} offen sc0 sc1
s_cmp_ge_u32 s{S_RB}, {RB_FINE}
s_cselect_b32 s{S_T3}, {13 if own else 95}, {13 if own else 47}
s_waitcnt vmcnt(0)
v_readfirstlane_b32 s{S_T}, v13
s_mov_b64 exec, -1
{f"s_and_b32 s{S_T}, s{S_T}, 0xffff" if own else f"s_lshr_b32 s{S_T}, s{S_T}, 16"}
s_cmp_lg_u32 s{S_T}, s{S_T3}
s_cbranch_scc1 {L}
s_add_u32 s{S_T}, s{S_RB}, {WS_FLAGS + (48 if own else 32)}
v_lshlrev_b32 v12, 7, v0
v_mov_b32 v13, 1
s_mov_b32 exec_hi, 0
buffer_store_byte v13, v12, {ws}, s{S_T} offen sc1
s_mov_b64 exec, -1
""")
    a.label(L)

def attn_setup(a, Lfail):
    S_SC = S_K + 8
    load_ptr(a, S_PQ, 'Wo'); load_ptr(a, S_PK, 'x'); load_ptr(a, S_PV, 'out')
    a(f"""
s_mov_b32 s{S_SC}, {f32bits(SCALE_LOG2E):#x}
v_and_b32 v12, 31, v0
v_lshrrev_b32 v13, 5, v0
v_lshlrev_b32 v14, 2, v13
v_sub_u32 v14, v12, v14
""")
    for r in range(16):
        a(f"v_cmp_ge_i32 s[{S_MASK+2*r}:{S_MASK+2*r+1}], v14, {8*(r>>2) + (r&3)}")
    a(f"""
v_and_b32 v10, 7, v0
v_lshlrev_b32 v10, 5, v10
v_lshl_add_u32 v10, v13, 4, v10
v_lshlrev_b32 v11, 4, v12
v_lshl_add_u32 v11, v13, 3, v11
v_mul_u32_u24 v8, 1152, v12
v_lshl_add_u32 v8, v13, 3, v8
s_getpc_b64 s[{S_TBL}:{S_TBL+1}]
s_add_u32 s{S_TBL}, s{S_TBL}, queue_table@rel32@lo+4
s_addc_u32 s{S_TBL+1}, s{S_TBL+1}, queue_table@rel32@hi+12
s_waitcnt lgkmcnt(0)
""")
    srd(a, S_A, S_PQ, W_BYTES); srd(a, S_B, S_PK, 2048*1152); srd(a, S_C, S_PV, 2048*1152)
    Lh = a.label_name("Lhs"); Lo = a.label_name("Lhso")
    a(f"""
s_lshl_b32 s{S_REP}, s{S_J}, 4
s_add_u32 s{S_REP}, s{S_REP}, s{S_RB}
s_and_b32 s{S_REP}, s{S_REP}, 31
s_lshl_b32 s{S_REP}, s{S_REP}, 7
s_add_u32 s{S_REP}, s{S_REP}, {WS_FLAGS}
v_mov_b32 v12, 0
s_mov_b32 s{S_SPIN}, 0
""")
    a.label(Lh)
    a(f"""
global_load_dword v14, v12, s[{S_DBG}:{S_DBG+1}] offset:{DBG_XMASK*4 + 4} sc1
s_add_u32 s{S_SPIN}, s{S_SPIN}, 1
s_cmp_gt_u32 s{S_SPIN}, 0x40000
s_cbranch_scc1 {Lfail}
s_waitcnt vmcnt(0)
v_readfirstlane_b32 s{S_T}, v14
s_lshr_b32 s{S_T}, s{S_T}, 24
s_cmp_ge_u32 s{S_T}, 32
s_cbranch_scc1 {Lo}
s_sleep 64
s_branch {Lh}
""")
    a.label(Lo)

ITEM_TL = False
def item_stamp(a, k):
    if not ITEM_TL: return
    L = a.label_name("Lits")
    a(f"""
s_cmp_lg_u32 s{S_W}, 3
s_cbranch_scc1 {L}
s_memrealtime s[98:99]
s_lshl_b32 s100, s101, 2
s_add_u32 s100, s100, {63*MiB + 4*k}
s_waitcnt lgkmcnt(0)
v_mov_b32 v14, s98
v_mov_b32 v15, 0
s_mov_b64 exec, 1
buffer_store_dword v14, v15, s[{S_WS}:{S_WS+3}], s100 offen
s_mov_b64 exec, -1
""")
    a.label(L)

def next_item(a, Lexit):
    L = a.label_name("Lq"); Lpk = a.label_name("Lqpk"); Ltk = a.label_name("Lqtk"); Lgot = a.label_name("Lqgot"); Lng = a.label_name("Lqng")
    ng = len(queue_groups())
    GT = 72 + 24
    a(f"""
s_barrier
v_mov_b32 v12, 0
s_cmp_lg_u32 s{S_W}, 0
s_cbranch_scc1 {L}
s_mov_b64 exec, 1
""")
    a.label(Lng)
    a(f"""
s_mov_b32 s{S_T}, -1
s_cmp_ge_u32 s{S_G}, {ng}
s_cbranch_scc1 {Lgot}
s_lshl_b32 s{S_T}, s{S_G}, 4
s_load_dwordx4 s[{S_GR}:{S_GR+3}], s[{S_TBL}:{S_TBL+1}], s{S_T}
s_mov_b32 s{S_SPIN}, 0
""")
    a.label(Lpk)
    a(f"""
buffer_load_ubyte v15, v12, s[{S_WS}:{S_WS+3}], s{S_REP} offen sc1
s_add_u32 s{S_SPIN}, s{S_SPIN}, 1
s_cmp_gt_u32 s{S_SPIN}, 0x20000
s_cbranch_scc1 {Ltk}
s_waitcnt vmcnt(0) lgkmcnt(0)
v_readfirstlane_b32 s{S_T2}, v15
s_cmp_ge_u32 s{S_T2}, s{S_GR}
s_cbranch_scc1 {Ltk}
s_sleep 16
s_branch {Lpk}
""")
    a.label(Ltk)
    a(f"""
s_waitcnt vmcnt(0) lgkmcnt(0)
v_mov_b32 v14, 1
buffer_atomic_add v14, v12, s[{S_WS}:{S_WS+3}], s{S_GR+1} offen sc0 sc1
s_waitcnt vmcnt(0)
v_readfirstlane_b32 s{S_T}, v14
s_cmp_lt_u32 s{S_T}, s{S_GR+3}
s_cselect_b32 s{S_T2}, 0, 1
s_add_u32 s{S_G}, s{S_G}, s{S_T2}
s_cmp_lg_u32 s{S_T2}, 0
s_cbranch_scc1 {Lng}
s_add_u32 s{S_T}, s{S_T}, s{S_GR+2}
""")
    a.label(Lgot)
    a(f"""
v_mov_b32 v14, s{S_T}
ds_write_b32 v12, v14
s_mov_b64 exec, -1
""")
    a.label(L)
    a(f"""
s_waitcnt lgkmcnt(0)
s_barrier
ds_read_b32 v14, v12
s_waitcnt lgkmcnt(0)
v_readfirstlane_b32 s{S_T}, v14
s_barrier
s_cmp_eq_u32 s{S_T}, -1
s_cbranch_scc1 {Lexit}
s_lshl_b32 s{S_T}, s{S_T}, 2
s_add_u32 s{S_T2}, s{S_T}, {16*ng}
s_load_dword s{S_ITEM}, s[{S_TBL}:{S_TBL+1}], s{S_T2}
s_waitcnt lgkmcnt(0)
s_bfe_u32 s{S_RB}, s{S_ITEM}, 0x40018
s_mov_b32 s101, s{S_T}
""")
    item_stamp(a, 0)

def attn_item(a, wait_head, tl=None, full=False):
    ws = f"s[{S_WS}:{S_WS+3}]"
    R = 12
    S_SC = S_K + 8; S_SEG = S_K + 9; S_O1, S_O2 = S_K + 10, S_K + 11
    S_TH, S_PART = S_IT, S_ITN
    ACC = OUT if full else (lambda n: 256 + 16*n)
    if full: a(f"s_mov_b32 s{S_TH}, 0")
    else: a(f"""
s_bfe_u32 s{S_H}, s{S_ITEM}, 0x80010
s_bfe_u32 s{S_HE}, s{S_ITEM}, 0x80008
s_add_u32 s{S_HE}, s{S_HE}, s{S_H}
s_and_b32 s{S_TH}, s{S_ITEM}, 3
s_bfe_u32 s{S_PART}, s{S_ITEM}, 0x60002
""")
    OOB = 0x7f000000
    def bases():
        a(f"""
s_mul_i32 s{S_CUR}, s{S_H}, 147456
s_mul_i32 s{S_T}, s{S_TH}, 384
s_add_u32 s{S_CUR}, s{S_CUR}, s{S_T}
s_add_u32 s{S_NXT}, s{S_CUR}, 147456
s_add_u32 s{S_T}, s{S_H}, 1
s_cmp_lt_u32 s{S_T}, s{S_HE}
s_cselect_b32 s{S_NXT}, s{S_NXT}, {OOB}
""")
    bases()
    st = Stream(a, R, 4)
    S_SLOT = S_CURC
    def issue(te, nxt):
        for i in range(3):
            a(f"s_add_u32 s{S_T2}, s{S_WM0}, {te*12288 + i*4096}")
            a(f"s_xor_b32 s{S_T3}, s{S_SLOT}, {49152 if nxt else 0}\ns_add_u32 m0, s{S_T2}, s{S_T3}")
            a(f"s_add_u32 s{S_T}, s{S_NXT if nxt else S_CUR}, {te*32*1152 + 2*i*64}")
            a(f"buffer_load_dwordx4 v{V_VO+2}, s[{S_A}:{S_A+3}], s{S_T} offen lds")
    D = 10
    def issue_f(p):
        pp = p % 12; te, q = divmod(pp, 3)
        for i in range(3):
            st.dma(pp, i, S_A, V_VO + 2, S_NXT if p >= 12 else S_CUR, te*32*1152 + (6*q + 2*i)*64, ("d", p))
    if full:
        for p in range(D): issue_f(p)
    else:
        a(f"s_mov_b32 s{S_SLOT}, 0")
        for te in range(4): issue(te, False)
        for n in range(6):
            for r in range(16): a(f"v_accvgpr_write_b32 a{16*n + r}, 0")
    def load_qkv(hreg):
        a(f"s_lshl_b32 s{S_O1}, s{hreg}, 19\ns_add_u32 s{S_O2}, s{S_O1}, {WS_K}")
        for s_ in range(8):
            if s_ == 4: a(f"s_add_u32 s{S_O1}, s{S_O1}, 4096\ns_add_u32 s{S_O2}, s{S_O2}, 4096")
            a(f"buffer_load_dwordx4 v[{QF+4*s_}:{QF+4*s_+3}], v{V_ST}, {ws}, s{S_O1} offen offset:{(s_&3)*1024} sc1")
            a(f"buffer_load_dwordx4 v[{KF+4*s_}:{KF+4*s_+3}], v{V_ST}, {ws}, s{S_O2} offen offset:{(s_&3)*1024} sc1")
        a(f"s_lshl_b32 s{S_O1}, s{hreg}, 19\ns_add_u32 s{S_O1}, s{S_O1}, {WS_VT}")
        for s_ in range(8):
            if s_ == 4: a(f"s_add_u32 s{S_O1}, s{S_O1}, 4096")
            a(f"buffer_load_dwordx4 v[{VF+4*s_}:{VF+4*s_+3}], v{V_ST}, {ws}, s{S_O1} offen offset:{(s_&3)*1024} sc1")
    def load_m(hreg):
        a(f"""
s_lshl_b32 s{S_O1}, s{S_SEG}, 5
s_add_u32 s{S_O1}, s{S_O1}, s{hreg}
s_lshl_b32 s{S_O1}, s{S_O1}, 11
s_add_u32 s{S_O2}, s{S_O1}, {WS_VM}
s_add_u32 s{S_O1}, s{S_O1}, {WS_KM}
""")
        for s_ in range(8):
            a(f"buffer_load_dwordx4 v[{KMF+4*s_}:{KMF+4*s_+3}], v10, {ws}, s{S_O1} offen offset:{s_*256} sc1")
        for te in range(4):
            a(f"buffer_load_dwordx2 v[{VMF+4*te}:{VMF+4*te+1}], v11, {ws}, s{S_O2} offen offset:{te*512} sc1")
    for te in range(4): a(f"v_mov_b64 v[{VMF+4*te+2}:{VMF+4*te+3}], 0")
    wait_head(a, 0)
    load_qkv(S_H)
    wait_head(a, 1)
    if tl: tl(a)
    if not full: item_stamp(a, 1)
    load_m(S_H)
    Lloop = a.label_name("Lattn")
    a.label(Lloop)
    Lfirst = a.label_name("Lattn1")
    if full:
        pass
    a("s_waitcnt vmcnt(20)")
    for s_ in range(8):
        a(f"v_mfma_f32_32x32x16_bf16 v[{SX}:{SX+15}], v[{KF+4*s_}:{KF+4*s_+3}], v[{QF+4*s_}:{QF+4*s_+3}], {f'v[{SX}:{SX+15}]' if s_ else 0}")
    for s_ in range(8):
        a(f"s_waitcnt vmcnt({11 - s_})")
        a(f"v_mfma_f32_32x32x16_bf16 v[{SM}:{SM+15}], v[{KMF+4*s_}:{KMF+4*s_+3}], v[{QF+4*s_}:{QF+4*s_+3}], {f'v[{SM}:{SM+15}]' if s_ else 0}")
    a("v_mov_b32 v12, 0xff800000")
    for r in range(16):
        a(f"v_cndmask_b32 v{SX+r}, v12, v{SX+r}, s[{S_MASK+2*r}:{S_MASK+2*r+1}]")
    xs = [SX + r for r in range(16)]; ms = [SM + r for r in range(4)]; vals = xs + ms
    a(f"v_max3_f32 v12, v{xs[0]}, v{xs[1]}, v{xs[2]}")
    for i in range(3, 15, 2): a(f"v_max3_f32 v12, v12, v{xs[i]}, v{xs[i+1]}")
    a(f"v_max_f32 v12, v12, v{xs[15]}")
    a(f"""
v_max3_f32 v12, v12, v{ms[0]}, v{ms[1]}
v_max3_f32 v12, v12, v{ms[2]}, v{ms[3]}
v_mov_b32 v13, v12
v_permlane32_swap_b32 v12, v13
v_max_f32 v12, v12, v13
v_mul_f32 v12, s{S_SC}, v12
""")
    for v in vals: a(f"v_fma_f32 v{v}, v{v}, s{S_SC}, -v12")
    for v in vals: a(f"v_exp_f32 v{v}, v{v}")
    a(f"v_add_f32 v12, v{vals[0]}, v{vals[1]}\nv_add_f32 v13, v{vals[2]}, v{vals[3]}")
    for i in range(4, 20, 2): a(f"v_add_f32 v12, v12, v{vals[i]}\nv_add_f32 v13, v13, v{vals[i+1]}")
    a(f"""
v_add_f32 v12, v12, v13
v_mov_b32 v13, v12
v_permlane32_swap_b32 v12, v13
v_add_f32 v12, v12, v13
v_rcp_f32 v12, v12
""")
    for v in range(0, 20, 2): a(f"v_pk_mul_f32 v[{vals[v]}:{vals[v]+1}], v[{vals[v]}:{vals[v]+1}], v[12:13] op_sel_hi:[1,0]")
    for i in range(8): a(f"v_cvt_pk_bf16_f32 v{PX+i}, v{SX+2*i}, v{SX+2*i+1}")
    a(f"v_cvt_pk_bf16_f32 v{PM}, v{SM}, v{SM+1}\nv_cvt_pk_bf16_f32 v{PM+1}, v{SM+2}, v{SM+3}\nv_mov_b64 v[{PM+2}:{PM+3}], 0")
    a("s_waitcnt vmcnt(0)")
    for te in range(4):
        o = f"v[{OT+16*te}:{OT+16*te+15}]"
        a(f"v_mfma_f32_32x32x16_bf16 {o}, v[{VMF+4*te}:{VMF+4*te+3}], v[{PM}:{PM+3}], 0")
        a(f"v_mfma_f32_32x32x16_bf16 {o}, v[{VF+8*te}:{VF+8*te+3}], v[{PX}:{PX+3}], {o}")
        a(f"v_mfma_f32_32x32x16_bf16 {o}, v[{VF+8*te+4}:{VF+8*te+7}], v[{PX+4}:{PX+7}], {o}")
    if not full: a(f"v_add_u32 v14, s{S_SLOT}, v{V_FR}")
    a("s_barrier")
    if not full:
        for te in range(4): issue(te, True)
    for te in range(4):
        for i in range(8): a(f"v_cvt_pk_bf16_f32 v{OB+8*te+i}, v{OT+16*te+2*i}, v{OT+16*te+2*i+1}")
    a(f"s_add_u32 s{S_HN}, s{S_H}, 1\ns_sub_u32 s{S_T}, s{S_HE}, 1\ns_min_u32 s{S_HN}, s{S_HN}, s{S_T}")
    Lnl = a.label_name("Lnl")
    a(f"s_cmp_eq_u32 s{S_HN}, s{S_H}\ns_cbranch_scc1 {Lnl}")
    load_qkv(S_HN); load_m(S_HN)
    a.label(Lnl)
    if full:
        st.V.q = []; st.L.q = []
        for f in range(NFB - 1): st.rd(0, f, f, ("f", f))
        for p in range(12):
            te, q = divmod(p, 3)
            if p:
                st.V.wait(("d", p + 1))
                a("s_barrier")
            issue_f(p + D)
            for f in range(12):
                phi = 12*p + f; g = phi - 36*te
                nx = phi + NFB - 1
                if nx < 144: st.rd(nx // 12, nx % 12, nx % NFB, ("f", nx))
                st.L.wait(("f", phi))
                n, u2 = g >> 1, g & 1
                acc = R_(OUT(n), 16)
                a(f"v_mfma_f32_32x32x16_bf16 {acc}, v[{FB+4*(phi%NFB)}:{FB+4*(phi%NFB)+3}], v[{OB+8*te+4*u2}:{OB+8*te+4*u2+3}], {acc}")
    else:
        L = Ctr(a, "lgkmcnt", 15)
        def rd(phi):
            d = FB + 4*(phi % NFB); off = phi*1024
            L.issue(phi, f"ds_read_b64_tr_b16 v[{d}:{d+1}], v14 offset:{off}")
            L.issue(phi, f"ds_read_b64_tr_b16 v[{d+2}:{d+3}], v14 offset:{off+256}")
        for phi in range(NFB - 1): rd(phi)
        for phi in range(48):
            te, f = divmod(phi, 12); n, u2 = f >> 1, f & 1
            if phi + NFB - 1 < 48: rd(phi + NFB - 1)
            L.wait(phi)
            acc = R_(ACC(n), 16)
            a(f"v_mfma_f32_32x32x16_bf16 {acc}, v[{FB+4*(phi%NFB)}:{FB+4*(phi%NFB)+3}], v[{OB+8*te+4*u2}:{OB+8*te+4*u2+3}], {acc}")
    a(f"s_add_u32 s{S_H}, s{S_H}, 1\ns_xor_b32 s{S_SLOT}, s{S_SLOT}, 49152")
    bases()
    a(f"s_cmp_lt_u32 s{S_H}, s{S_HE}\ns_cbranch_scc1 {Lloop}")
    if full: return
    a(f"s_mul_i32 s{S_TH}, s{S_TH}, 6")
    item_stamp(a, 2)
    store_tiles(a, S_PART, S_TH, 6, ACC)

def reduce_item(a, Lfail):
    ws = f"s[{S_WS}:{S_WS+3}]"
    S_SEG = S_K + 9
    S_NT, S_Q, S_NQ, S_XO, S_PO = S_IT, S_ITN, S_H, S_HE, S_HN
    Lq = a.label_name("Lrq"); Lbig = a.label_name("Lrbig"); Lfin = a.label_name("Lrfin")
    def wait_flag(off):
        L1 = a.label_name("Lrw"); L2 = a.label_name("Lrw2")
        a(f"s_cmp_lg_u32 s{S_W}, 0\ns_cbranch_scc1 {L2}\nv_mov_b32 v14, s{S_RB}\ns_mov_b32 s{S_SPIN}, 0")
        a.label(L1)
        a(f"""
buffer_load_ubyte v20, v14, {ws}, s{S_REP} offen offset:{off} sc1
s_add_u32 s{S_SPIN}, s{S_SPIN}, 1
s_cmp_gt_u32 s{S_SPIN}, 0x100000
s_cbranch_scc1 {Lfail}
s_waitcnt vmcnt(0)
v_readfirstlane_b32 s{S_T2}, v20
s_cmp_lg_u32 s{S_T2}, 0
s_cbranch_scc1 {L2}
s_sleep 3
s_branch {L1}
""")
        a.label(L2)
        a("s_barrier")
    a(f"""
s_bfe_u32 s{S_NT}, s{S_ITEM}, 0x80010
s_bfe_u32 s{S_Q}, s{S_ITEM}, 0x80008
s_and_b32 s{S_NQ}, s{S_ITEM}, 0xff
""")
    wait_flag(48)
    a("v_lshlrev_b32 v15, 4, v0")
    a.label(Lq)
    a(f"""
s_mul_i32 s{S_T3}, s{S_W}, 73728
s_add_u32 s{S_T3}, s{S_T3}, s{S_PB}
s_lshl_b32 s{S_T2}, s{S_NT}, 12
s_add_u32 s{S_PO}, s{S_T3}, s{S_T2}
s_lshl_b32 s{S_T2}, s{S_Q}, 11
s_add_u32 s{S_PO}, s{S_PO}, s{S_T2}
s_mul_i32 s{S_XO}, s{S_SEG}, {32*1152}
s_lshl_b32 s{S_T2}, s{S_NT}, 6
s_add_u32 s{S_XO}, s{S_XO}, s{S_T2}
s_lshl_b32 s{S_T2}, s{S_Q}, 5
s_add_u32 s{S_XO}, s{S_XO}, s{S_T2}
buffer_load_dwordx2 v[16:17], v8, s[{S_B}:{S_B+3}], s{S_XO} offen
buffer_load_dwordx2 v[18:19], v8, s[{S_B}:{S_B+3}], s{S_XO} offen offset:16
""")
    A = 24; P0 = 32
    for p in range(14):
        for h in range(2):
            a(f"buffer_load_dwordx4 v[{P0+8*p+4*h}:{P0+8*p+4*h+3}], v15, {ws}, s{S_PO} offen offset:{1024*h} sc1")
        a(f"s_add_u32 s{S_PO}, s{S_PO}, {PART_BYTES}")
    a("s_waitcnt vmcnt(28)")
    for i in range(4):
        a(f"v_lshlrev_b32 v{A+2*i}, 16, v{16+i}\nv_and_b32 v{A+2*i+1}, 0xffff0000, v{16+i}")
    for p in range(14):
        a(f"s_waitcnt vmcnt({2*(13-p)})")
        for i in range(4): a(f"v_pk_add_f32 v[{A+2*i}:{A+2*i+1}], v[{A+2*i}:{A+2*i+1}], v[{P0+8*p+2*i}:{P0+8*p+2*i+1}]")
    a(f"s_cmp_lt_u32 s{S_RB}, {RB_MID}\ns_cbranch_scc1 {Lfin}")
    a(f"""
s_lshl_b32 s{S_T2}, s{S_NT}, 11
s_add_u32 s{S_PO}, s{S_T3}, s{S_T2}
s_lshl_b32 s{S_T2}, s{S_Q}, 10
s_add_u32 s{S_PO}, s{S_PO}, s{S_T2}
s_add_u32 s{S_PO}, s{S_PO}, {14*PART_BYTES}
""")
    wait_flag(32)
    item_stamp(a, 1)
    if ITEM_TL: a("v_lshlrev_b32 v15, 4, v0")
    a("v_mov_b32 v20, 0x00003f80\nv_mov_b32 v21, 0x3f800000")
    def batch(np_):
        for p in range(np_):
            a(f"buffer_load_dwordx4 v[{P0+4*p}:{P0+4*p+3}], v15, {ws}, s{S_PO} offen sc1\ns_add_u32 s{S_PO}, s{S_PO}, {PART_BYTES}")
        for p in range(np_):
            a(f"s_waitcnt vmcnt({np_-1-p})")
            for i in range(4):
                a(f"v_dot2c_f32_bf16 v{A+2*i}, v{P0+4*p+i}, v20\nv_dot2c_f32_bf16 v{A+2*i+1}, v{P0+4*p+i}, v21")
        a("s_nop 2")
    a(f"s_cmp_ge_u32 s{S_RB}, {RB_FINE}\ns_cbranch_scc1 {Lbig}")
    batch(16)
    a(f"s_branch {Lfin}")
    a.label(Lbig)
    batch(32)
    a.label(Lfin)
    for i in range(4): a(f"v_cvt_pk_bf16_f32 v{16+i}, v{A+2*i}, v{A+2*i+1}")
    a(f"""
buffer_store_dwordx2 v[16:17], v8, s[{S_C}:{S_C+3}], s{S_XO} offen
buffer_store_dwordx2 v[18:19], v8, s[{S_C}:{S_C+3}], s{S_XO} offen offset:16
s_add_u32 s{S_Q}, s{S_Q}, 1
s_sub_u32 s{S_NQ}, s{S_NQ}, 1
s_cmp_lg_u32 s{S_NQ}, 0
s_cbranch_scc1 {Lq}
""")

def queue_loop(a, Lexit, tl=None):
    Ltop = a.label_name("Lqtop"); Lred = a.label_name("Lqred")
    a(f"s_mov_b32 s{S_G}, 0")
    a.label(Ltop)
    next_item(a, Lexit)
    rb_consts(a)
    a(f"s_bitcmp1_b32 s{S_ITEM}, 31\ns_cbranch_scc1 {Lred}")
    attn_item(a, make_wait_head(Lexit, True), tl)
    item_stamp(a, 3)
    a(f"s_branch {Ltop}")
    a.label(Lred)
    reduce_item(a, Lexit)
    a("s_waitcnt vmcnt(0)") if ITEM_TL else None
    item_stamp(a, 3)
    a(f"s_branch {Ltop}")

def queue_table():
    g = queue_groups(); s = ""; first = 0
    for gate, off, sh, it in g:
        s += f".long {gate}, {off}, {first}, {len(it)}\n"; first += len(it)
    s += "".join(f".long {x:#x}\n" for x in queue_items())
    return ".p2align 4\n.type queue_table,@object\nqueue_table:\n" + s + f".size queue_table, {16*len(g) + 4*first}\n"

def signal_rb(a, val, base=DBG_KVRDY):
    L = a.label_name("Lsig")
    a(f"""
s_cmp_lg_u32 s{S_W}, 0
s_cbranch_scc1 {L}
s_lshl_b32 s{S_T}, s{S_RB}, 2
v_mov_b32 v12, s{S_T}
v_mov_b32 v13, {val}
s_mov_b64 exec, 1
global_atomic_add v12, v13, s[{S_DBG}:{S_DBG+1}] offset:{base*4} sc1
s_mov_b64 exec, -1
""")
    a.label(L)

def make_wait_head(Lfail, direct=False):
    def wait_head(a, which):
        S_SEG = S_K + 9
        L1 = a.label_name("Lwh1"); L2 = a.label_name("Lwh2"); L3 = a.label_name("Lwh3")
        a(f"s_cmp_lg_u32 s{S_W}, 0\ns_cbranch_scc1 {L3}\ns_add_u32 s{S_NXTC}, s{S_SEG}, 3")
        if which == 0: a(f"s_lshl_b32 s{S_T}, s{S_RB}, 2\nv_mov_b32 v12, s{S_T}")
        elif direct: a(f"s_lshl_b32 s{S_T}, s{S_H}, 7\nv_mov_b32 v12, s{S_T}\ns_lshl_b32 s{S_T}, s{S_HE}, 7\nv_mov_b32 v13, s{S_T}\ns_mov_b32 s{S_T3}, {WS_HDONE}\ns_mov_b32 s{S_T2}, {WS_HDONE - 128}")
        else: a(f"v_mov_b32 v12, 0")
        a(f"s_mov_b32 s{S_SPIN}, 0")
        a.label(L1)
        if which == 0: a(f"global_load_dword v14, v12, s[{S_DBG}:{S_DBG+1}] offset:{DBG_KVRDY*4} sc1")
        elif direct: a(f"buffer_load_dword v14, v12, s[{S_WS}:{S_WS+3}], s{S_T3} offen sc1\nbuffer_load_dword v15, v13, s[{S_WS}:{S_WS+3}], s{S_T2} offen sc1")
        else: a(f"buffer_load_ubyte v14, v12, s[{S_WS}:{S_WS+3}], s{S_REP} offen sc1")
        a(f"""
s_add_u32 s{S_SPIN}, s{S_SPIN}, 1
s_cmp_gt_u32 s{S_SPIN}, 0x40000
s_cbranch_scc1 {Lfail}
s_waitcnt vmcnt(0)
""")
        if which and direct: a("v_min_u32 v14, v14, v15")
        a(f"v_readfirstlane_b32 s{S_T}, v14")
        if which == 0:
            a(f"s_cmp_eq_u32 s{S_T}, {128 + (64 << 16)}\ns_cbranch_scc1 {L3}\ns_sleep 32\ns_branch {L1}")
        else:
            a(f"""
s_cmp_gt_u32 s{S_T}, s{S_NXTC}
s_cbranch_scc1 {L3}
s_add_u32 s{S_T}, s{S_T}, {0 if direct else 2}
s_cmp_ge_u32 s{S_T}, s{S_NXTC}
s_cbranch_scc1 {L2}
s_sleep 32
""")
            a.label(L2)
            a(f"s_sleep 2\ns_branch {L1}")
        a.label(L3)
        a("s_barrier")
    return wait_head


def own_attention(a, Lexit):
    L = a.label_name("Lnoown")
    attn_setup(a, Lexit)
    rb_consts(a)
    a(f"s_cmp_ge_u32 s{S_RB}, {RB_MID}\ns_cbranch_scc1 {L}")
    attn_item(a, make_wait_head(Lexit), full=True)
    a.label(L)
    store_tiles(a, S_J, None, 18, OUT, own=True)


def projections(a, tl=None):
    Lp = a.label_name("Lpass"); Lo = a.label_name("Lown"); Le = a.label_name("Lpend")
    a(f"""
s_mov_b32 s{S_RBO}, s{S_RB}
s_cmp_lt_u32 s{S_RB}, 2
s_cselect_b32 s{S_HELP}, 1, 0
s_cmp_lt_u32 s{S_RB}, 8
s_cbranch_scc1 {Lp}
s_and_b32 s{S_HELP}, s{S_RB}, 3
s_add_u32 s{S_HELP}, s{S_HELP}, 2
s_bfe_u32 s{S_RB}, s{S_RB}, 0x10002
""")
    a.label(Lp)
    rb_consts(a)
    layernorm(a)
    if tl: tl(a, 1)
    qkv_phase(a, signal=signal_rb)
    a(f"""
s_cmp_lt_u32 s{S_HELP}, 2
s_cbranch_scc1 {Le}
s_mov_b32 s{S_HELP}, 0
s_mov_b32 s{S_RB}, s{S_RBO}
s_branch {Lp}
""")
    a.label(Le)
```

```python
import sys
from asmlib import *
from layout import *
import worker as W, rec, reduce as RD
from rec import S_WS
from entry import *
HDR = open("parallel_sum__memory_aug_recurrent_mem_tr__geglu_ffn__prompt.s.ref").read().split("; Override launch")[0]

def worker_ids(a):
    a(f"""
s_and_b32 s{W.S_RB}, s{S_TKT}, 15
s_lshr_b32 s{W.S_J}, s{S_TKT}, 4
s_lshl_b32 s77, s{S_GRP}, 1
s_add_u32 s{W.S_J}, s{W.S_J}, s77
""")
def chk(a):
    for b in a.check_branches(): print("HAZARD", b)
    return a.text()
TL = len(sys.argv) > 1 and sys.argv[1] == "tl"
def tl(a, i, wreg):
    if not TL: return
    L = a.label_name("Ltl")
    a(f"""
s_cmp_lg_u32 s{wreg}, 0
s_cbranch_scc1 {L}
s_memrealtime s[98:99]
s_lshl_b32 s100, s{S_GRP2}, 6
s_add_u32 s100, s100, {62*MiB + 4*i}
s_waitcnt lgkmcnt(0)
v_mov_b32 v{TLV}, s98
v_mov_b32 v{TLV+1}, 0
s_mov_b64 exec, 1
buffer_store_dword v{TLV}, v{TLV+1}, s[{S_WS}:{S_WS+3}], s100 offen
s_mov_b64 exec, -1
""")
    a.label(L)
S_GRP2 = 97
TLV = 14
W.ITEM_TL = TL
rec.STEP_TL = TL
def k_main():
    a = Asm(); a.uid = 1000
    entry(a, "Lexit")
    a(f"s_lshl_b32 s{S_GRP2}, s{S_GRP}, 5\ns_add_u32 s{S_GRP2}, s{S_GRP2}, s{S_TKT}")
    a(f"s_cmp_eq_u32 s{S_GRP}, 7\ns_cbranch_scc1 Lrec")
    worker_ids(a)
    a(f"s_mov_b32 s{W.S_DBG}, s{S_DBGP}\ns_mov_b32 s{W.S_DBG+1}, s{S_DBGP+1}")
    global TLV
    TLV = 14
    W.setup(a); tl(a, 0, W.S_W); W.projections(a, lambda a_, i: tl(a_, i, W.S_W)); tl(a, 2, W.S_W)
    W.work_split(a); W.ffn_phase(a); tl(a, 3, W.S_W)
    W.own_attention(a, "Lexit"); tl(a, 4, W.S_W)
    W.queue_loop(a, "Lwdone", tl=lambda a_: tl(a_, 5, W.S_W))
    a.label("Lwdone"); tl(a, 6, W.S_W)
    a("s_waitcnt vmcnt(0)\ns_endpgm")
    a.label("Lrec")
    a(f"""
s_mov_b32 s{rec.S_H}, s{S_TKT}
s_mov_b32 s{rec.S_DBG}, s{S_DBGP}
s_mov_b32 s{rec.S_DBG+1}, s{S_DBGP+1}
s_load_dwordx2 s[{rec.S_PTR}:{rec.S_PTR+1}], s[0:1], {KA['mem0']}
s_load_dwordx2 s[{rec.S_PTR+2}:{rec.S_PTR+3}], s[0:1], {KA['Wq']}
s_load_dwordx2 s[{rec.S_PTR+4}:{rec.S_PTR+5}], s[0:1], {KA['Wk']}
s_load_dwordx2 s[{rec.S_PTR+6}:{rec.S_PTR+7}], s[0:1], {KA['Wv']}
s_load_dwordx2 s[{rec.S_PTR+8}:{rec.S_PTR+9}], s[0:1], {KA['Wo']}
s_waitcnt lgkmcnt(0)
""")
    kvw = rec.make_kv_wait("Lexit")
    TLV = 74
    rec.setup_consts(a); tl(a, 0, rec.S_W); rec.prologue(a); tl(a, 1, rec.S_W)
    rec.handshake(a, "Lr_fast", "Lr_slow", "Lexit")
    a.label("Lr_fast"); tl(a, 2, rec.S_W); rec.step_loop(a, True, "Lr_done", "Lexit", kv_wait=kvw, tlf=lambda a_: tl(a_, 3, rec.S_W))
    a.label("Lr_slow"); rec.step_loop(a, False, "Lr_done", "Lexit", kv_wait=kvw)
    a.label("Lr_done"); rec.finish(a); tl(a, 4, rec.S_W); a("s_waitcnt vmcnt(0)")
    a("Lexit:\ns_endpgm"); return chk(a)
s = HDR
KN = "parallel_sum__memory_aug_recurrent_mem_tr__geglu_ffn__prompt_kernel"
s += "; @launch grid=(256,1,1) block=(256,1,1) lds=163840\n"
s += '.amdgcn_target "amdgcn-amd-amdhsa--gfx950"\n.text\n'
for n, t in ((KN, k_main()),):
    s += kernel_header(n) + t
s += '.section .rodata,"a"\n'
s += kernel_desc(KN, 512, 102, 256)
s += W.queue_table()
open("main_tl.s" if TL else "parallel_sum__memory_aug_recurrent_mem_tr__geglu_ffn__prompt.s", "w").write(s)
print(len(s), "bytes")
```
